```python
import torch

def _softmax(x, axis=-1):
    return torch.softmax(x, dim=axis)
def _gelu(x):
    return torch.nn.functional.gelu(x, approximate="tanh")
def _silu(x):
    return torch.nn.functional.silu(x)
def _sigmoid(x):
    return torch.sigmoid(x)
def _layernorm(x, axis=-1, eps=1e-5):
    m = x.mean(dim=axis, keepdim=True)
    v = x.var(dim=axis, keepdim=True, unbiased=False)
    return (x - m) / torch.sqrt(v + eps)
def _scatter_add(tgt, idx, src, axis=0):
    return tgt.clone().index_add_(axis, idx, src)
def _segment_sum(src, seg, n):
    out = torch.zeros((n,) + src.shape[1:], dtype=src.dtype)
    return out.index_add_(0, seg, src)
def _pad(x, pw):
    flat = tuple(v for pair in reversed(pw) for v in pair)
    return torch.nn.functional.pad(x, flat)

kernel_name = 'recurrent_scan__ssm_conv_s5__glu_gated_swiglu__prompt'

def setup_inputs():

    _w = (lambda a: (lambda t: t.to(torch.bfloat16) if t.is_floating_point() else t)(torch.as_tensor(a)))
    def _A_setup():
        B, S, D = 1, 2048, 640
        P = D
        Lambda_re = -0.5 * (lambda _x: torch.exp(torch.as_tensor(_x)))((lambda *s: torch.randn(*s, dtype=torch.bfloat16) * 0.8)(P))
        Lambda_im = (lambda *s: torch.randn(*s, dtype=torch.bfloat16) * 0.8)(P) * 1.0
        B_re = (lambda *s: torch.randn(*s, dtype=torch.bfloat16) * 0.8)(P, D) * (D ** -0.5)
        B_im = (lambda *s: torch.randn(*s, dtype=torch.bfloat16) * 0.8)(P, D) * (D ** -0.5)
        C_re = (lambda *s: torch.randn(*s, dtype=torch.bfloat16) * 0.8)(D, P) * (P ** -0.5)
        C_im = (lambda *s: torch.randn(*s, dtype=torch.bfloat16) * 0.8)(D, P) * (P ** -0.5)
        log_dt = (lambda *s: torch.randn(*s, dtype=torch.bfloat16) * 0.8)(P) * 0.3 - 2.0
        Dskip = (lambda *s: torch.randn(*s, dtype=torch.bfloat16) * 0.8)(D)
        return {
            "x": _w((lambda *s: torch.randn(*s, dtype=torch.bfloat16) * 0.05)(B, S, D)),
            "Lambda_re": _w(Lambda_re),
            "Lambda_im": _w(Lambda_im),
            "B_re": _w(B_re),
            "B_im": _w(B_im),
            "C_re": _w(C_re),
            "C_im": _w(C_im),
            "log_dt": _w(log_dt),
            "Dskip": _w(Dskip),
        }
    _A_in = _A_setup()

    def _B_setup():
        B, S, D, F = 1, 2048, 640, 1728
        return {
            "x": _w((lambda *s: torch.randn(*s, dtype=torch.bfloat16) * 0.05)(B, S, D)),
            "w1": _w((lambda *s: torch.randn(*s, dtype=torch.bfloat16) * 0.2)(D, F) * (2.0 / D) ** 0.5),
            "w3": _w((lambda *s: torch.randn(*s, dtype=torch.bfloat16) * 0.2)(D, F) * (2.0 / D) ** 0.5),
            "w2": _w((lambda *s: torch.randn(*s, dtype=torch.bfloat16) * 0.2)(F, D) * (2.0 / F) ** 0.5),
        }
    _B_in = _B_setup()

    return {
        "A_x": _A_in["x"],
        "A_Lambda_re": _A_in["Lambda_re"],
        "A_Lambda_im": _A_in["Lambda_im"],
        "A_B_re": _A_in["B_re"],
        "A_B_im": _A_in["B_im"],
        "A_C_re": _A_in["C_re"],
        "A_C_im": _A_in["C_im"],
        "A_log_dt": _A_in["log_dt"],
        "A_Dskip": _A_in["Dskip"],
        "B_x": _B_in["x"],
        "B_w1": _B_in["w1"],
        "B_w3": _B_in["w3"],
        "B_w2": _B_in["w2"],
    }

def reference(A_x, A_Lambda_re, A_Lambda_im, A_B_re, A_B_im, A_C_re, A_C_im, A_log_dt, A_Dskip, B_x, B_w1, B_w3, B_w2):
    def _A_ref(x, Lambda_re, Lambda_im, B_re, B_im, C_re, C_im, log_dt, Dskip):
        Bsz, L, H = x.shape
        Lam = Lambda_re + 1j * Lambda_im
        Bmat = B_re + 1j * B_im
        Cmat = C_re + 1j * C_im
        dt = torch.exp(log_dt)
        Lam_bar = torch.exp(dt * Lam)
        B_bar = ((Lam_bar - 1.0) / Lam)[:, None] * Bmat
        Bu = torch.einsum("bld,pd->blp", x + 0j, B_bar)
        h = torch.zeros_like(Bu[:, 0, :])
        hs = []
        for t in range(L):
            h = Lam_bar[None, :] * h + Bu[:, t, :]
            hs.append(h)
        hseq = torch.stack(hs, 1)
        y = 2.0 * torch.einsum("blp,dp->bld", hseq, Cmat).real + x * Dskip[None, None, :]
        return y

    def _B_ref(x, w1, w3, w2):
        gate = torch.einsum("bsd,df->bsf", x, w1)
        up = torch.einsum("bsd,df->bsf", x, w3)
        h = _silu(gate) * up
        out = torch.einsum("bsf,fd->bsd", h, w2)
        return out

    x = A_x
    xn = _layernorm(x, axis=-1)
    s = _A_ref(xn, A_Lambda_re, A_Lambda_im, A_B_re, A_B_im, A_C_re, A_C_im, A_log_dt, A_Dskip)
    g = _silu(_B_ref(xn, B_w1, B_w3, B_w2))
    return x + s * g
```

```python
import sys, struct

L, D, P, F = 2048, 640, 640, 1728
XN_OFF = 0x0
HA_OFF = 0x300000
HA_SLAB = 376 * 1024
WB_OFF = 0x1000000
WB_SLAB = 94 * 5120
AGG_OFF = 0x1400000
STAMP_OFF = 0x1800000
TAG = 0x5A17C0DE

def f2u(x):
    return struct.unpack("<I", struct.pack("<f", x))[0]

class Asm:
    def __init__(self):
        self.l = []
        self.vm = []
        self.lg = []
    def e(self, s):
        self.l.append("    " + s)
    def c(self, s):
        self.l.append("    ; " + s)
    def lab(self, s):
        self.l.append(s + ":")
    def vmem(self, s, tag=None):
        self.e(s); self.vm.append(tag)
    def lds(self, s, tag=None):
        self.e(s); self.lg.append(tag)
    def _need(self, q, tags):
        idx = -1
        for i, t in enumerate(q):
            if t in tags: idx = i
        return idx
    def wait(self, vm=(), lg=(), vm_all=False, lg_all=False):
        parts = []
        if isinstance(vm, (str, tuple)) and not isinstance(vm, list): vm = [vm] if vm != () else []
        if isinstance(lg, (str, tuple)) and not isinstance(lg, list): lg = [lg] if lg != () else []
        i = len(self.vm) - 1 if vm_all else self._need(self.vm, vm)
        if i >= 0:
            n = len(self.vm) - 1 - i
            parts.append(f"vmcnt({min(n, 63)})")
            self.vm = self.vm[i + 1:] if n <= 63 else self.vm[len(self.vm) - 63:]
        i = len(self.lg) - 1 if lg_all else self._need(self.lg, lg)
        if i >= 0:
            n = len(self.lg) - 1 - i
            parts.append(f"lgkmcnt({min(n, 15)})")
            self.lg = self.lg[i + 1:] if n <= 15 else self.lg[len(self.lg) - 15:]
        if parts:
            self.e("s_waitcnt " + " ".join(parts))
    def text(self):
        return "\n".join(self.l) + "\n"

def vr(b, n=1):
    return f"v{b}" if n == 1 else f"v[{b}:{b+n-1}]"
def ar(b, n=1):
    return f"a{b}" if n == 1 else f"a[{b}:{b+n-1}]"
def sr(b, n=1):
    return f"s{b}" if n == 1 else f"s[{b}:{b+n-1}]"

def head(a, name):
    a.l.append(f".globl {name}")
    a.l.append(".p2align 8")
    a.l.append(f".type {name},@function")
    a.lab(name)

def kd(name, vgpr, sgpr, accum):
    return f""".section .rodata,"a"
.p2align 6
.amdhsa_kernel {name}
  .amdhsa_next_free_vgpr {vgpr}
  .amdhsa_next_free_sgpr {sgpr}
  .amdhsa_accum_offset {accum}
  .amdhsa_group_segment_fixed_size 0
  .amdhsa_kernarg_size 128
  .amdhsa_user_sgpr_count 2
  .amdhsa_user_sgpr_kernarg_segment_ptr 1
  .amdhsa_system_sgpr_workgroup_id_x 1
  .amdhsa_float_denorm_mode_32 3
.end_amdhsa_kernel
.text
"""

def srd(a, d, lo, hi, nbytes, add=None):
    if add is None:
        a.e(f"s_mov_b32 s{d}, s{lo}")
        a.e(f"s_mov_b32 s{d+1}, s{hi}")
    else:
        a.e(f"s_add_u32 s{d}, s{lo}, {add}")
        a.e(f"s_addc_u32 s{d+1}, s{hi}, 0")
    a.e(f"s_mov_b32 s{d+2}, {nbytes}")
    a.e(f"s_mov_b32 s{d+3}, 0x00020000")

STAMPS = False
def stamp(a, slot, vreg):
    if not STAMPS: return
    a.e("s_memrealtime s[96:97]")
    a.e("s_waitcnt lgkmcnt(0)")
    a.e(f"v_writelane_b32 v{vreg}, s96, {slot}")
    a.lg = []
def stamp_flush(a, kidx, vreg, tmp, nw):
    if not STAMPS: return
    srd(a, 92, 4, 5, 1 << 22, add=hex(STAMP_OFF))
    a.e(f"s_mul_i32 s98, s2, {nw}")
    a.e("s_add_u32 s98, s98, s3")
    a.e("s_lshl_b32 s98, s98, 8")
    a.e(f"s_add_u32 s98, s98, {kidx << 20}")
    a.e(f"v_lshlrev_b32 v{tmp}, 2, v0")
    a.e(f"buffer_store_dword v{vreg}, v{tmp}, s[92:95], s98 offen")

def gen_k0():
    a = Asm()
    head(a, "prep_kernel")
    a.e("s_cmp_ge_u32 s2, 363")
    a.e("s_cbranch_scc1 K0_done")
    a.e("s_load_dwordx2 s[4:5], s[0:1], 120")
    a.e("s_load_dwordx2 s[6:7], s[0:1], 0")
    a.e("s_load_dwordx2 s[8:9], s[0:1], 96")
    a.e("s_load_dwordx4 s[12:15], s[0:1], 40")
    a.e("v_lshrrev_b32 v1, 6, v0")
    a.e("v_and_b32 v0, 63, v0")
    a.e("v_readfirstlane_b32 s3, v1")
    a.e("s_lshl_b32 s16, s2, 2")
    a.e("s_add_u32 s16, s16, s3")
    a.e("s_waitcnt lgkmcnt(0)")
    a.e("s_cmp_ge_u32 s16, 512")
    a.e("s_cbranch_scc1 K0_notln")
    srd(a, 20, 6, 7, L * D * 2)
    srd(a, 24, 4, 5, L * D * 2)
    a.e("s_lshr_b32 s17, s16, 3")
    a.e("s_and_b32 s18, s16, 7")
    a.e("s_and_b32 s19, s18, 1")
    a.e("s_lshl_b32 s19, s19, 4")
    a.e("s_and_b32 s28, s18, 4")
    a.e("s_add_u32 s19, s19, s28")
    a.e("s_and_b32 s28, s18, 2")
    a.e("s_add_u32 s19, s19, s28")
    a.e("s_lshl_b32 s28, s17, 5")
    a.e("s_add_u32 s19, s19, s28")
    a.e("s_mul_i32 s19, s19, 1280")
    a.e("v_lshrrev_b32 v1, 4, v0")
    a.e("v_and_b32 v2, 15, v0")
    a.e("v_and_b32 v3, 1, v1")
    a.e("v_lshlrev_b32 v3, 3, v3")
    a.e("v_lshrrev_b32 v4, 1, v1")
    a.e("v_add_u32 v3, v3, v4")
    a.e("v_mul_u32_u24 v3, 1280, v3")
    a.e("v_lshl_add_u32 v3, v2, 4, v3")
    for n in range(5):
        a.vmem(f"buffer_load_dwordx4 {vr(8+4*n,4)}, v3, s[20:23], s19 offen offset:{256*n}", ("x", n))
    a.e("v_lshlrev_b32 v5, 9, v2")
    a.e("v_lshl_add_u32 v5, v1, 4, v5")
    a.e("s_mul_i32 s28, s17, 40960")
    a.e("s_lshl_b32 s29, s18, 6")
    a.e("s_add_u32 s28, s28, s29")
    a.e("s_cmp_ge_u32 s16, 80")
    a.e("s_cbranch_scc1 K0_noclr")
    srd(a, 32, 4, 5, 80 * 1024, add=hex(AGG_OFF))
    a.e("v_mov_b32 v80, 0"); a.e("v_mov_b32 v81, 0"); a.e("v_mov_b32 v82, 0"); a.e("v_mov_b32 v83, 0")
    a.e("v_lshlrev_b32 v84, 4, v0")
    a.e("s_lshl_b32 s29, s16, 10")
    a.e("buffer_store_dwordx4 v[80:83], v84, s[32:35], s29 offen")
    a.e("s_waitcnt vmcnt(0)")
    a.lab("K0_noclr")
    a.e("s_mov_b32 s30, 0xffff0000")
    FB = 32
    for n in range(5):
        a.wait(vm=[("x", n)])
        for i in range(4):
            s = 8 + 4 * n + i
            d = FB + 2 * (4 * n + i)
            a.e(f"v_lshlrev_b32 v{d}, 16, v{s}")
            a.e(f"v_and_b32 v{d+1}, s30, v{s}")
    a.e(f"v_pk_add_f32 v[72:73], {vr(FB,2)}, {vr(FB+2,2)}")
    a.e(f"v_pk_add_f32 v[74:75], {vr(FB+4,2)}, {vr(FB+6,2)}")
    for i in range(4, 20):
        t = 72 + 2 * (i & 1)
        a.e(f"v_pk_add_f32 {vr(t,2)}, {vr(t,2)}, {vr(FB+2*i,2)}")
    a.e("v_pk_add_f32 v[72:73], v[72:73], v[74:75]")
    a.e("v_add_f32 v72, v72, v73")
    def red16(r):
        for m in ("quad_perm:[1,0,3,2]", "quad_perm:[2,3,0,1]", "row_half_mirror", "row_mirror"):
            a.e("s_nop 1")
            a.e(f"v_add_f32_dpp v{r}, v{r}, v{r} {m} row_mask:0xf bank_mask:0xf")
    red16(72)
    a.e(f"v_mul_f32 v72, {hex(f2u(1.0/640))}, v72")
    a.e("v_cvt_pk_bf16_f32 v74, v72, v72")
    a.e("v_lshlrev_b32 v74, 16, v74")
    a.e("v_sub_f32 v73, v72, v74")
    for i in range(20):
        a.e(f"v_pk_add_f32 {vr(FB+2*i,2)}, {vr(FB+2*i,2)}, v[74:75] op_sel_hi:[1,0] neg_lo:[0,1] neg_hi:[0,1]")
    a.e(f"v_pk_mul_f32 v[76:77], {vr(FB,2)}, {vr(FB,2)}")
    a.e(f"v_pk_mul_f32 v[78:79], {vr(FB+2,2)}, {vr(FB+2,2)}")
    for i in range(2, 20):
        t = 76 + 2 * (i & 1)
        a.e(f"v_pk_fma_f32 {vr(t,2)}, {vr(FB+2*i,2)}, {vr(FB+2*i,2)}, {vr(t,2)}")
    a.e("v_pk_add_f32 v[76:77], v[76:77], v[78:79]")
    a.e("v_add_f32 v76, v76, v77")
    red16(76)
    for i in range(20):
        a.e(f"v_cvt_pk_bf16_f32 v{8+i}, v{FB+2*i}, v{FB+2*i+1}")
    a.e(f"v_mul_f32 v76, {hex(f2u(1.0/640))}, v76")
    a.e("v_fma_f32 v76, -v73, v73, v76")
    a.e("v_max_f32 v76, 0, v76")
    a.e("v_cvt_pk_bf16_f32 v76, v76, v76")
    a.e("v_lshlrev_b32 v76, 16, v76")
    a.e(f"v_add_f32 v76, {hex(f2u(1e-5))}, v76")
    a.e("v_cvt_pk_bf16_f32 v76, v76, v76")
    a.e("v_lshlrev_b32 v76, 16, v76")
    a.e("v_sqrt_f32 v76, v76")
    a.e("s_nop 0")
    a.e("v_cvt_pk_bf16_f32 v76, v76, v76")
    a.e("v_lshlrev_b32 v76, 16, v76")
    a.e("v_rcp_f32 v76, v76")
    for i in range(20):
        a.e(f"v_lshlrev_b32 v{FB+2*i}, 16, v{8+i}")
        a.e(f"v_and_b32 v{FB+2*i+1}, s30, v{8+i}")
    for n in range(5):
        for i in range(4 * n, 4 * n + 4):
            a.e(f"v_pk_mul_f32 {vr(FB+2*i,2)}, {vr(FB+2*i,2)}, v[76:77] op_sel_hi:[1,0]")
        for i in range(4 * n, 4 * n + 4):
            a.e(f"v_cvt_pk_bf16_f32 v{8+i}, v{FB+2*i}, v{FB+2*i+1}")
        a.e(f"buffer_store_dwordx4 {vr(8+4*n,4)}, v5, s[24:27], s28 offen")
        a.e("s_add_u32 s28, s28, 8192")
    a.e("s_endpgm")
    a.lab("K0_notln")
    srd(a, 24, 4, 5, 8 * WB_SLAB, add=hex(WB_OFF))
    a.e("s_cmp_ge_u32 s16, 1052")
    a.e("s_cbranch_scc1 K0_cpart")
    srd(a, 20, 8, 9, F * D * 2)
    a.e("s_sub_u32 s16, s16, 512")
    a.e("s_mul_i32 s17, s16, 13108")
    a.e("s_lshr_b32 s17, s17, 16")
    a.e("s_mul_i32 s18, s17, 5")
    a.e("s_sub_u32 s18, s16, s18")
    a.e("s_mul_i32 s19, s17, 20480")
    a.e("s_lshl_b32 s28, s18, 8")
    a.e("s_add_u32 s19, s19, s28")
    a.e("v_lshrrev_b32 v1, 5, v0")
    a.e("v_and_b32 v2, 31, v0")
    a.e("v_mul_u32_u24 v3, 10240, v1")
    a.e("v_lshl_add_u32 v3, v2, 3, v3")
    a.e("v_add_u32 v4, 5120, v3")
    for j in range(8):
        base = "v3" if j < 4 else "v4"
        off = 1280 * (j & 3)
        a.e(f"buffer_load_dwordx2 {vr(8+2*j,2)}, {base}, s[20:23], s19 offen offset:{off}")
    a.e("v_lshrrev_b32 v5, 2, v2")
    a.e("s_lshl_b32 s28, s18, 3")
    a.e("v_add_u32 v5, s28, v5")
    a.e("v_mul_u32_u24 v6, 52, v5")
    a.e("v_lshrrev_b32 v6, 8, v6")
    a.e("v_mul_u32_u24 v7, 5, v6")
    a.e("v_sub_u32 v7, v5, v7")
    a.e(f"v_mul_u32_u24 v6, {WB_SLAB}, v6")
    a.e("v_lshl_add_u32 v6, v7, 10, v6")
    a.e("v_and_b32 v7, 3, v2")
    a.e("v_lshl_add_u32 v6, v7, 6, v6")
    a.e("v_lshl_add_u32 v6, v1, 8, v6")
    a.e("s_lshr_b32 s28, s17, 1")
    a.e("s_add_u32 s28, s28, 40")
    a.e("s_mul_i32 s28, s28, 5120")
    a.e("s_and_b32 s29, s17, 1")
    a.e("s_lshl_b32 s29, s29, 9")
    a.e("s_add_u32 s28, s28, s29")
    a.e("s_mov_b32 s30, 0x05040100")
    a.e("s_mov_b32 s31, 0x07060302")
    a.e("s_waitcnt vmcnt(0)")
    for col in range(4):
        dw = col >> 1
        sel = "s30" if (col & 1) == 0 else "s31"
        for jp in range(4):
            a.e(f"v_perm_b32 v{24+4*col+jp}, v{8+2*(2*jp+1)+dw}, v{8+2*(2*jp)+dw}, {sel}")
    for col in range(4):
        a.e(f"buffer_store_dwordx4 {vr(24+4*col,4)}, v6, s[24:27], s28 offen offset:{16*col}")
    a.e("s_endpgm")
    a.lab("K0_cpart")
    srd(a, 20, 12, 13, D * P * 2)
    srd(a, 32, 14, 15, D * P * 2)
    a.e("s_sub_u32 s16, s16, 1052")
    a.e("s_mul_i32 s17, s16, 6554")
    a.e("s_lshr_b32 s17, s17, 16")
    a.e("s_mul_i32 s18, s17, 10")
    a.e("s_sub_u32 s18, s16, s18")
    a.e("s_mul_i32 s19, s17, 20480")
    a.e("s_lshl_b32 s28, s18, 7")
    a.e("s_add_u32 s19, s19, s28")
    a.e("v_and_b32 v1, 15, v0")
    a.e("v_lshrrev_b32 v2, 4, v0")
    a.e("v_mul_u32_u24 v3, 1280, v1")
    a.e("v_lshl_add_u32 v3, v2, 4, v3")
    a.e("buffer_load_dwordx4 v[8:11], v3, s[20:23], s19 offen")
    a.e("buffer_load_dwordx4 v[12:15], v3, s[20:23], s19 offen offset:64")
    a.e("buffer_load_dwordx4 v[16:19], v3, s[32:35], s19 offen")
    a.e("buffer_load_dwordx4 v[20:23], v3, s[32:35], s19 offen offset:64")
    a.e("s_mul_i32 s28, s17, 52")
    a.e("s_lshr_b32 s28, s28, 8")
    a.e("s_mul_i32 s29, s28, 5")
    a.e("s_sub_u32 s29, s17, s29")
    a.e(f"s_mul_i32 s28, s28, {WB_SLAB}")
    a.e("s_lshl_b32 s29, s29, 10")
    a.e("s_add_u32 s28, s28, s29")
    a.e("s_mul_i32 s29, s18, 20480")
    a.e("s_add_u32 s28, s28, s29")
    a.e("v_lshlrev_b32 v4, 4, v0")
    for i in range(4):
        a.e(f"s_waitcnt vmcnt(3)")
        a.e(f"buffer_store_dwordx4 {vr(8+4*i,4)}, v4, s[24:27], s28 offen")
        a.e("s_add_u32 s28, s28, 5120")
    a.lab("K0_done")
    a.e("s_endpgm")
    return a.text() + kd("prep_kernel", 88, 40, 88)

def cmul(a, d, x, y, t):
    a.e(f"v_pk_mul_f32 {vr(t,2)}, {vr(x,2)}, {vr(y,2)} op_sel:[0,0] op_sel_hi:[0,1]")
    a.e(f"v_pk_fma_f32 {vr(d,2)}, {vr(x,2)}, {vr(y,2)}, {vr(t,2)} op_sel:[1,1,0] op_sel_hi:[1,0,1] neg_lo:[1,0,0]")
def cfma(a, d, x, y, z, t):
    a.e(f"v_pk_fma_f32 {vr(t,2)}, {vr(x,2)}, {vr(y,2)}, {vr(z,2)} op_sel:[0,0,0] op_sel_hi:[0,1,1]")
    a.e(f"v_pk_fma_f32 {vr(d,2)}, {vr(x,2)}, {vr(y,2)}, {vr(t,2)} op_sel:[1,1,0] op_sel_hi:[1,0,1] neg_lo:[1,0,0]")

K1_LDS = 147456 + 8192 + 512
def gen_k1():
    a = Asm()
    head(a, "gemm1_kernel")
    a.e("s_cmp_ge_u32 s2, 256")
    a.e("s_cbranch_scc1 K1_done")
    a.e("s_load_dwordx2 s[4:5], s[0:1], 120")
    a.e("s_load_dwordx4 s[8:11], s[0:1], 24")
    a.e("s_load_dwordx4 s[12:15], s[0:1], 80")
    a.e("v_lshrrev_b32 v1, 6, v0")
    a.e("v_and_b32 v0, 63, v0")
    a.e("v_readfirstlane_b32 s3, v1")
    a.e("s_and_b32 s16, s2, 7")
    a.e("s_lshr_b32 s17, s2, 3")
    a.e("s_and_b32 s18, s16, 1")
    a.e("s_lshl_b32 s18, s18, 2")
    a.e("s_and_b32 s19, s17, 3")
    a.e("s_add_u32 s18, s18, s19")
    a.e("s_lshr_b32 s19, s16, 1")
    a.e("s_lshl_b32 s19, s19, 3")
    a.e("s_lshr_b32 s17, s17, 2")
    a.e("s_add_u32 s19, s19, s17")
    a.e("s_lshl_b32 s20, s18, 3")
    a.e("s_add_u32 s20, s20, s3")
    a.e("s_mul_i32 s21, s20, 40960")
    a.e("v_lshlrev_b32 v1, 4, v0")
    a.e("s_waitcnt lgkmcnt(0)")
    srd(a, 24, 4, 5, 40960, add="s21")
    a.e("s_lshr_b32 s22, s20, 1")
    a.e(f"s_mul_i32 s22, s22, {HA_SLAB}")
    a.e("s_and_b32 s23, s20, 1")
    a.e("s_lshl_b32 s23, s23, 11")
    a.e("s_add_u32 s22, s22, s23")
    a.e(f"s_add_u32 s22, s22, {hex(HA_OFF)}")
    srd(a, 28, 4, 5, HA_SLAB - 2048, add="s22")
    a.e("s_cmp_lt_u32 s19, 10")
    a.e("s_cbranch_scc1 K1_ssm")

    NA = 32
    AB = 128
    def aload(a, ks):
        a.vmem(f"buffer_load_dwordx4 {vr(AB+4*(ks%NA),4)}, v1, s[24:27], s{40+(ks>>2)} offen offset:{1024*(ks&3)}", ("A", ks))
    def asoff(a):
        for i in range(10):
            a.e(f"s_mov_b32 s{40+i}, {4096*i}")

    stamp(a, 0, 13)
    a.e("s_sub_u32 s19, s19, 10")
    a.e("s_cmp_ge_u32 s3, 4")
    a.e("s_cselect_b32 s32, s14, s12")
    a.e("s_cselect_b32 s33, s15, s13")
    a.e(f"s_mov_b32 s34, {D*F*2}")
    a.e("s_mov_b32 s35, 0x00020000")
    a.e("s_and_b32 s36, s3, 3")
    a.e("s_lshl_b32 s37, s36, 6")
    a.e("v_add_u32 v2, s37, v0")
    a.e("s_mul_i32 s38, s19, 160")
    a.e("s_lshr_b32 s37, s3, 2")
    a.e("s_mul_i32 s37, s37, 61568")
    a.e("s_lshl_b32 s36, s36, 10")
    a.e("s_add_u32 s36, s36, s37")
    asoff(a)
    for st in range(5):
        a.e(f"s_mov_b32 s{52+st}, {st*128*3456}")
    VO = 4
    def voff_ffn(n):
        if n: a.e(f"v_add_u32 v3, {256*n}, v2")
        src = "v3" if n else "v2"
        a.e(f"v_mul_u32_u24 v9, 6554, {src}")
        a.e("v_lshrrev_b32 v9, 16, v9")
        a.e("v_mul_u32_u24 v10, 10, v9")
        a.e(f"v_sub_u32 v10, {src}, v10")
        a.e("v_mul_u32_u24 v9, 3456, v9")
        a.e("v_lshl_add_u32 v9, v10, 4, v9")
        a.e(f"v_add_u32 v{VO+n}, s38, v9")
    def dma_ffn(rho):
        a.e(f"s_add_u32 m0, s36, {(rho%15)*4096}")
        a.e("s_nop 0")
        a.vmem(f"buffer_load_dwordx4 v{VO+rho%5}, s[32:35], s{52+rho//5} offen lds", ("D", rho))
    need = lambda ks: (160 * (ks + 1) - 1) // 256
    rho_i = 0
    for ks in range(NA):
        while rho_i <= min(need(ks), 14):
            if rho_i < 5: voff_ffn(rho_i)
            dma_ffn(rho_i); rho_i += 1
        aload(a, ks)
    a.e("v_lshrrev_b32 v9, 4, v0")
    a.e("v_and_b32 v10, 1, v9")
    a.e("v_mul_u32_u24 v11, 61568, v10")
    a.e("v_lshrrev_b32 v9, 1, v9")
    a.e("v_lshlrev_b32 v9, 3, v9")
    a.e("v_bfe_u32 v10, v0, 2, 2")
    a.e("v_add_u32 v9, v9, v10")
    a.e("v_mul_u32_u24 v9, 160, v9")
    a.e("v_add_u32 v11, v11, v9")
    a.e("v_and_b32 v9, 1, v0")
    a.e("v_lshl_add_u32 v11, v9, 4, v11")
    a.e("v_bfe_u32 v9, v0, 1, 1")
    a.e("v_lshl_add_u32 v11, v9, 3, v11")
    a.e("v_bfe_u32 v9, v0, 2, 1")
    a.e("v_lshlrev_b32 v12, 10, v9")
    a.e("v_and_b32 v9, 1, v0")
    a.e("v_lshl_add_u32 v12, v9, 7, v12")
    a.e("v_bfe_u32 v9, v0, 4, 1")
    a.e("v_lshl_add_u32 v12, v9, 6, v12")
    a.e("v_bfe_u32 v9, v0, 3, 1")
    a.e("v_lshl_add_u32 v12, v9, 5, v12")
    a.e("v_bfe_u32 v9, v0, 1, 1")
    a.e("v_lshl_add_u32 v12, v9, 4, v12")
    a.e("v_lshrrev_b32 v9, 5, v0")
    a.e("v_lshl_add_u32 v12, v9, 8, v12")
    WBf = 16
    ACC = 40
    def wread_ffn(ks, j):
        off = ((ks >> 3) % 3) * 20480 + (ks & 7) * 2560 + 32 * j
        a.lds(f"ds_read_b64_tr_b16 {vr(WBf+4*j,2)}, v11 offset:{off}", ("W", ks, j))
        a.lds(f"ds_read_b64_tr_b16 {vr(WBf+4*j+2,2)}, v11 offset:{off+640}", ("W", ks, j))
    sync = {0: 1, 3: 4, 8: 9, 16: 14, 24: 19, 32: 24}
    refill = {8: range(15, 20), 16: range(20, 25)}
    def do_sync(ks, drain):
        a.wait(vm=[("D", sync[ks])], lg_all=drain)
        a.e("s_barrier")
    do_sync(0, False)
    stamp(a, 1, 13)
    for j in range(5): wread_ffn(0, j)
    for ks in range(40):
        nxt = ks + 1
        pend = []
        if nxt in sync:
            do_sync(nxt, nxt in refill)
            if nxt in refill: pend = list(refill[nxt])
        for j in range(5):
            a.wait(vm=[("A", ks)], lg=[("W", ks, j)])
            c = "0" if ks == 0 else vr(ACC + 16 * j, 16)
            a.e(f"v_mfma_f32_32x32x16_bf16 {vr(ACC+16*j,16)}, {vr(WBf+4*j,4)}, {vr(AB+4*(ks%NA),4)}, {c}")
            if nxt < 40: wread_ffn(nxt, j)
            if pend: dma_ffn(pend.pop(0))
        if ks + NA < 40: aload(a, ks + NA)
    stamp(a, 2, 13)
    a.e(f"s_mov_b32 s60, {hex(f2u(-1.4426950408889634))}")
    a.e("s_mul_i32 s61, s19, 10")
    a.e("s_add_u32 s61, s61, 160")
    a.e("s_nop 7")
    T = 128
    for j in range(5):
        if j == 3:
            a.e("s_cmp_eq_u32 s19, 21")
            a.e("s_cbranch_scc1 K1_ffn_end")
        g = ACC + 16 * j
        t = T + 16 * (j & 1)
        for p in range(4):
            a.e(f"v_pk_mul_f32 {vr(t+2*p,2)}, {vr(g+2*p,2)}, s[60:61] op_sel_hi:[1,0]")
        for p in range(8):
            a.e(f"v_exp_f32 v{t+p}, v{t+p}")
        for p in range(4):
            a.e(f"v_pk_mul_f32 {vr(g+2*p,2)}, {vr(g+2*p,2)}, {vr(g+8+2*p,2)}")
        for p in range(4):
            a.e(f"v_pk_add_f32 {vr(t+2*p,2)}, {vr(t+2*p,2)}, 1.0 op_sel_hi:[1,0]")
        for p in range(8):
            a.e(f"v_rcp_f32 v{t+p}, v{t+p}")
        a.e(f"s_add_u32 s62, s61, {2*j}")
        a.e("s_lshr_b32 s63, s62, 2")
        a.e("s_lshl_b32 s63, s63, 12")
        a.e("s_and_b32 s62, s62, 3")
        a.e("s_lshl_b32 s62, s62, 8")
        a.e("s_add_u32 s62, s62, s63")
        for p in range(4):
            a.e(f"v_pk_mul_f32 {vr(g+2*p,2)}, {vr(g+2*p,2)}, {vr(t+2*p,2)}")
        for p in range(4):
            a.e(f"v_cvt_pk_bf16_f32 v{t+8+p}, v{g+2*p}, v{g+2*p+1}")
        a.e(f"buffer_store_dwordx4 {vr(t+8,4)}, v12, s[28:31], s62 offen")
    a.lab("K1_ffn_end")
    stamp(a, 3, 13)
    stamp_flush(a, 1, 13, 14, 8)
    a.e("s_endpgm")

    a.lab("K1_ssm")
    a.vm = []; a.lg = []
    stamp(a, 0, 32)
    a.e("s_cmp_ge_u32 s3, 4")
    a.e("s_cselect_b32 s32, s10, s8")
    a.e("s_cselect_b32 s33, s11, s9")
    a.e(f"s_mov_b32 s34, {P*D*2}")
    a.e("s_mov_b32 s35, 0x00020000")
    a.e("s_load_dwordx4 s[64:67], s[0:1], 8")
    a.e("s_load_dwordx2 s[68:69], s[0:1], 56")
    a.e("s_and_b32 s36, s3, 3")
    a.e("s_lshl_b32 s36, s36, 4")
    a.e("s_lshl_b32 s37, s19, 6")
    a.e("s_add_u32 s36, s36, s37")
    a.e("v_lshrrev_b32 v2, 3, v0")
    a.e("v_add_u32 v2, s36, v2")
    a.e("v_mul_u32_u24 v2, 1280, v2")
    a.e("v_and_b32 v3, 7, v0")
    a.e("v_lshrrev_b32 v9, 4, v0")
    a.e("v_xor_b32 v3, v3, v9")
    a.e("v_lshl_add_u32 v4, v3, 4, v2")
    a.e("v_xor_b32 v3, 4, v3")
    a.e("v_lshl_add_u32 v5, v3, 4, v2")
    a.e("v_add_u32 v5, 10240, v5")
    a.e("s_lshl_b32 s36, s3, 11")
    asoff(a)
    for st in range(10):
        a.e(f"s_mov_b32 s{52+st}, {st*128}")
    def dma_ssm(st, i):
        a.e(f"s_add_u32 m0, s36, {(st%9)*16384 + i*1024}")
        a.e("s_nop 0")
        a.vmem(f"buffer_load_dwordx4 v{4+i}, s[32:35], s{52+st} offen lds", ("D", st))
    for ks in range(NA):
        if ks % 4 == 0:
            dma_ssm(ks // 4, 0); dma_ssm(ks // 4, 1)
        aload(a, ks)
        if ks == 3:
            a.e("s_waitcnt lgkmcnt(0)")
            srd(a, 72, 64, 65, P * 2)
            srd(a, 76, 66, 67, P * 2)
            srd(a, 80, 68, 69, P * 2)
            a.e("v_lshlrev_b32 v2, 1, v0")
            a.e("s_lshl_b32 s37, s19, 7")
            a.vmem("buffer_load_ushort v100, v2, s[72:75], s37 offen", "P")
            a.vmem("buffer_load_ushort v101, v2, s[76:79], s37 offen", "P")
            a.vmem("buffer_load_ushort v102, v2, s[80:83], s37 offen", "P")
    dma_ssm(8, 0); dma_ssm(8, 1)
    RA = 104
    a.e("v_and_b32 v9, 31, v0")
    a.e("v_bfe_u32 v10, v0, 1, 3")
    a.e("v_lshrrev_b32 v11, 5, v0")
    a.e("v_xor_b32 v10, v10, v11")
    a.e("v_lshlrev_b32 v10, 4, v10")
    a.e("v_lshl_add_u32 v10, v9, 7, v10")
    for kk in range(4):
        a.e(f"v_xor_b32 v{RA+kk}, {32*kk}, v10")
        a.e(f"v_add_u32 v{RA+4+kk}, 0x10000, v{RA+kk}")
        a.e(f"v_add_u32 v{RA+8+kk}, 0x20000, v{RA+kk}")
    a.wait(vm=["P"])
    LRE, LIM, DT = 100, 101, 102
    a.e("v_lshlrev_b32 v100, 16, v100")
    a.e("v_lshlrev_b32 v101, 16, v101")
    a.e("v_lshlrev_b32 v102, 16, v102")
    LOG2E_HI = f2u(1.4426950408889634)
    log2e_hi = struct.unpack("<f", struct.pack("<I", LOG2E_HI))[0]
    LOG2E_LO = f2u(1.4426950408889634 - log2e_hi)
    a.e(f"s_mov_b32 s84, {hex(LOG2E_HI)}")
    a.e(f"s_mov_b32 s85, {hex(LOG2E_LO)}")
    a.e(f"s_mov_b32 s86, {hex(f2u(0.6931471805599453))}")
    def expf(d, x, t0, t1):
        a.e(f"v_mul_f32 v{t0}, s84, v{x}")
        a.e(f"v_fma_f32 v{t1}, v{x}, s84, -v{t0}")
        a.e(f"v_fma_f32 v{t1}, v{x}, s85, v{t1}")
        a.e(f"v_exp_f32 v{t0}, v{t0}")
        a.e(f"v_mul_f32 v{t1}, s86, v{t1}")
        a.e(f"v_fma_f32 v{d}, v{t0}, v{t1}, v{t0}")
    expf(102, 102, 9, 10)
    a.e("v_cvt_pk_bf16_f32 v102, v102, v102")
    a.e("v_lshlrev_b32 v102, 16, v102")
    a.e("v_mul_f32 v12, v102, v100")
    a.e("v_mul_f32 v13, v102, v101")
    expf(12, 12, 9, 10)
    INV2PI_HI = f2u(0.15915494309189535)
    i2p = struct.unpack("<f", struct.pack("<I", INV2PI_HI))[0]
    a.e(f"s_mov_b32 s84, {hex(INV2PI_HI)}")
    a.e(f"s_mov_b32 s85, {hex(f2u(0.15915494309189535 - i2p))}")
    a.e("v_mul_f32 v9, s84, v13")
    a.e("v_fma_f32 v10, v13, s84, -v9")
    a.e("v_fma_f32 v10, v13, s85, v10")
    a.e("v_rndne_f32 v11, v9")
    a.e("v_sub_f32 v9, v9, v11")
    a.e("v_add_f32 v9, v9, v10")
    a.e("v_cos_f32 v14, v9")
    a.e("v_sin_f32 v15, v9")
    a.e("s_nop 0")
    LAM, COEF, L8, L16, L256, PWA, PWB, TMP, TMP2 = 116, 118, 120, 122, 124, 126, 6, 8, 10
    a.e(f"v_mul_f32 v{LAM}, v12, v14")
    a.e(f"v_mul_f32 v{LAM+1}, v12, v15")
    a.e("v_max_f32 v12, |v100|, |v101|")
    a.e("v_rcp_f32 v13, v12")
    a.e(f"v_add_f32 v14, -1.0, v{LAM}")
    a.e("v_mul_f32 v100, v100, v13")
    a.e("v_mul_f32 v101, v101, v13")
    a.e("v_mul_f32 v15, v100, v100")
    a.e("v_fma_f32 v15, v101, v101, v15")
    a.e("v_mul_f32 v15, v15, v12")
    a.e("v_rcp_f32 v15, v15")
    a.e("v_mul_f32 v9, v14, v100")
    a.e(f"v_fma_f32 v9, v{LAM+1}, v101, v9")
    a.e(f"v_mul_f32 v10, v{LAM+1}, v100")
    a.e("v_fma_f32 v10, -v14, v101, v10")
    a.e("v_add_f32 v15, v15, v15")
    a.e(f"v_mul_f32 v{COEF}, v9, v15")
    a.e(f"v_mul_f32 v{COEF+1}, v10, v15")
    cmul(a, L8, LAM, LAM, TMP)
    cmul(a, TMP2, L8, L8, TMP)
    cmul(a, L8, TMP2, TMP2, TMP)
    cmul(a, L16, L8, L8, TMP)
    cmul(a, 12, L16, L16, TMP)
    cmul(a, 14, 12, 12, TMP)
    cmul(a, 100, 14, 14, TMP)
    cmul(a, L256, 100, 100, TMP)
    a.e(f"v_mov_b32 v{PWA}, 1.0")
    a.e(f"v_mov_b32 v{PWA+1}, 0")
    for bit, src in ((1, 12), (2, 14), (4, 100)):
        a.e(f"s_bitcmp0_b32 s3, {bit.bit_length()-1}")
        a.e(f"s_cbranch_scc1 K1_pw{bit}")
        cmul(a, TMP2, PWA, src, TMP)
        a.e(f"v_mov_b32 v{PWA}, v{TMP2}")
        a.e(f"v_mov_b32 v{PWA+1}, v{TMP2+1}")
        a.lab(f"K1_pw{bit}")
    cmul(a, PWB, PWA, L16, TMP)
    LAM1, COEF1, L81 = 12, 14, 100
    for x, x1 in ((LAM, LAM1), (COEF, COEF1), (L8, L81)):
        a.e(f"v_mov_b32 v{x1}, v{x}")
        a.e(f"v_mov_b32 v{x1+1}, v{x+1}")
    a.e("s_nop 1")
    for x, x1 in ((LAM, LAM1), (COEF, COEF1), (L8, L81), (PWA, PWB)):
        a.e(f"v_permlane32_swap_b32 v{x}, v{x1}")
        a.e(f"v_permlane32_swap_b32 v{x+1}, v{x1+1}")
    LAMs, COEFs, L8s, PWs = (LAM, LAM1), (COEF, COEF1), (L8, L81), (PWA, PWB)
    WBs = 16
    ACC = 36
    def wread_ssm(ks, j):
        st = ks >> 2
        slot = st % 9
        a.lds(f"ds_read_b128 {vr(WBs+4*j,4)}, v{RA+4*(slot>>2)+(ks&3)} offset:{(slot&3)*16384+4096*j}", ("W", ks, j))
    sync = {0: 0, 4: 1, 8: 3, 16: 5, 24: 7, 32: 9}
    refill = {4: [(9, 0), (9, 1)]}
    do_sync(0, False)
    stamp(a, 1, 32)
    for j in range(4): wread_ssm(0, j)
    for ks in range(40):
        nxt = ks + 1
        pend = []
        if nxt in sync:
            do_sync(nxt, nxt in refill)
            if nxt in refill: pend = list(refill[nxt])
        for j in range(4):
            a.wait(vm=[("A", ks)], lg=[("W", ks, j)])
            c = "0" if ks == 0 else vr(ACC + 16 * j, 16)
            a.e(f"v_mfma_f32_32x32x16_bf16 {vr(ACC+16*j,16)}, {vr(AB+4*(ks%NA),4)}, {vr(WBs+4*j,4)}, {c}")
            if nxt < 40: wread_ssm(nxt, j)
            if pend: dma_ssm(*pend.pop(0))
        if ks + NA < 40: aload(a, ks + NA)
    stamp(a, 2, 32)
    EL = 147456
    CAR = EL + 8192
    R = lambda jp: ACC + 16 * jp
    I = lambda jp: ACC + 32 + 16 * jp
    H = 128
    a.e("v_and_b32 v2, 31, v0")
    a.e("v_lshrrev_b32 v3, 5, v0")
    a.e("v_lshlrev_b32 v2, 3, v2")
    a.e("v_lshl_add_u32 v2, v3, 9, v2")
    a.e("s_lshl_b32 s37, s3, 10")
    a.e(f"s_add_u32 s37, s37, {EL}")
    a.e("v_add_u32 v2, s37, v2")
    a.e("s_nop 7")
    def scan_step(jp, hr, hi, ur, ui, dr, di, tr, ti):
        lam = LAMs[jp]
        a.e(f"v_pk_fma_f32 {vr(tr,2)}, {vr(lam,2)}, {vr(hr,2)}, {vr(ur,2)} op_sel:[0,0,0] op_sel_hi:[0,1,1]")
        a.e(f"v_pk_fma_f32 {vr(ti,2)}, {vr(lam,2)}, {vr(hi,2)}, {vr(ui,2)} op_sel:[0,0,0] op_sel_hi:[0,1,1]")
        a.e(f"v_pk_fma_f32 {vr(dr,2)}, {vr(lam,2)}, {vr(hi,2)}, {vr(tr,2)} op_sel:[1,0,0] op_sel_hi:[1,1,1] neg_lo:[1,0,0] neg_hi:[1,0,0]")
        a.e(f"v_pk_fma_f32 {vr(di,2)}, {vr(lam,2)}, {vr(hr,2)}, {vr(ti,2)} op_sel:[1,0,0] op_sel_hi:[1,1,1]")
    cur = {}
    for j in range(1, 8):
        for jp in range(2):
            b = H + 16 * jp
            hr, hi = (R(jp), I(jp)) if j == 1 else cur[jp]
            dr, di = b + 4 * (j & 1), b + 4 * (j & 1) + 2
            scan_step(jp, hr, hi, R(jp) + 2 * j, I(jp) + 2 * j, dr, di, b + 8, b + 10)
            cur[jp] = (dr, di)
    E0 = (160, 162); E1 = (164, 166); EE = (168, 170)
    for jp in range(2):
        hr, hi = cur[jp]
        a.e(f"v_mov_b32 v{E0[jp]}, v{hr}")
        a.e(f"v_mov_b32 v{E0[jp]+1}, v{hi}")
        a.e(f"v_mov_b32 v{E1[jp]}, v{hr+1}")
        a.e(f"v_mov_b32 v{E1[jp]+1}, v{hi+1}")
    for jp in range(2):
        cfma(a, EE[jp], L8s[jp], E0[jp], E1[jp], 172)
        a.lds(f"ds_write_b64 v2, {vr(EE[jp],2)} offset:{256*jp}")
    a.wait(lg_all=True)
    a.e("s_barrier")
    a.e("s_cmp_lg_u32 s3, 0")
    a.e("s_cbranch_scc1 K1_ssm_coef")
    a.e("v_lshlrev_b32 v3, 3, v0")
    a.e(f"v_add_u32 v3, {EL}, v3")
    X = 176
    for s in range(16):
        a.lds(f"ds_read_b64 {vr(X+2*s,2)}, v3 offset:{512*s}", ("E", s))
    a.e("s_lshl_b32 s37, s19, 13")
    a.e(f"s_add_u32 s37, s37, {hex(AGG_OFF)}")
    srd(a, 72, 4, 5, 8192, add="s37")
    a.e(f"s_mov_b32 s84, {hex(TAG)}")
    a.e("s_lshl_b32 s85, s18, 10")
    for s in range(1, 16):
        a.wait(lg=[("E", s)])
        cfma(a, X + 2 * s, L16, X + 2 * (s - 1), X + 2 * s, 172)
    a.e(f"v_mov_b32 v208, v{X+30}")
    a.e("v_mov_b32 v209, s84")
    a.e(f"v_mov_b32 v210, v{X+31}")
    a.e("v_mov_b32 v211, s84")
    a.e("buffer_store_dwordx4 v[208:211], v1, s[72:75], s85 offen sc0 sc1")
    a.e("v_mov_b32 v172, 0")
    a.e("v_mov_b32 v173, 0")
    a.e("ds_write_b64 v3, v[172:173]")
    for s in range(1, 16):
        a.e(f"ds_write_b64 v3, {vr(X+2*(s-1),2)} offset:{512*s}")
    for i in range(1, 8):
        a.e(f"s_cmp_ge_u32 s18, {i}")
        a.e(f"s_cselect_b32 s{52+i}, s84, 0")
        a.e(f"s_sub_u32 s37, s85, {1024*i}")
        a.e(f"s_cmp_ge_u32 s18, {i}")
        a.e(f"s_cselect_b32 s{40+i}, s37, 0x10000")
    G = 212
    a.e("s_mov_b32 s60, 0")
    a.lab("K1_poll")
    for i in range(1, 8):
        a.e(f"buffer_load_dwordx4 {vr(G+4*(i-1),4)}, v1, s[72:75], s{40+i} offen sc0 sc1")
    a.e("s_waitcnt vmcnt(0)")
    a.e("v_mov_b32 v172, 0")
    for i in range(1, 8):
        a.e(f"v_xor_b32 v173, s{52+i}, v{G+4*(i-1)+1}")
        a.e(f"v_xor_b32 v174, s{52+i}, v{G+4*(i-1)+3}")
        a.e("v_or3_b32 v172, v172, v173, v174")
    a.e("v_cmp_ne_u32 vcc, 0, v172")
    a.e("s_cbranch_vccz K1_polled")
    a.e("s_sleep 1")
    a.e("s_add_u32 s60, s60, 1")
    a.e("s_cmp_lt_u32 s60, 0x40000")
    a.e("s_cbranch_scc1 K1_poll")
    a.lab("K1_polled")
    for i in range(1, 8):
        a.e(f"v_mov_b32 v{G+4*(i-1)+1}, v{G+4*(i-1)+2}")
    for i in range(6, 0, -1):
        cfma(a, G + 4 * (i - 1), L256, G + 4 * i, G + 4 * (i - 1), 172)
    a.e(f"ds_write_b64 v3, {vr(G,2)} offset:8192")
    a.lab("K1_ssm_coef")
    for jp in range(2):
        cf = COEFs[jp]
        for j in range(8):
            ur, ui = R(jp) + 2 * j, I(jp) + 2 * j
            t = H + 4 * (j & 1)
            a.e(f"v_pk_mul_f32 {vr(t,2)}, {vr(cf,2)}, {vr(ur,2)} op_sel:[0,0] op_sel_hi:[0,1]")
            a.e(f"v_pk_mul_f32 {vr(t+2,2)}, {vr(cf,2)}, {vr(ur,2)} op_sel:[1,0] op_sel_hi:[1,1]")
            a.e(f"v_pk_fma_f32 {vr(ur,2)}, {vr(cf,2)}, {vr(ui,2)}, {vr(t,2)} op_sel:[1,0,0] op_sel_hi:[1,1,1] neg_lo:[1,0,0] neg_hi:[1,0,0]")
            a.e(f"v_pk_fma_f32 {vr(ui,2)}, {vr(cf,2)}, {vr(ui,2)}, {vr(t+2,2)} op_sel:[0,0,0] op_sel_hi:[0,1,1]")
    a.e("v_and_b32 v3, 31, v0")
    a.e("v_mul_u32_u24 v4, 80, v3")
    a.e("v_lshrrev_b32 v5, 5, v0")
    a.e("v_lshl_add_u32 v4, v5, 5, v4")
    a.e("s_mul_i32 s37, s3, 10240")
    a.e("v_add_u32 v4, s37, v4")
    a.e("v_lshlrev_b32 v3, 3, v3")
    a.e(f"v_add_u32 v3, {CAR}, v3")
    a.e("v_bfe_u32 v8, v0, 2, 2")
    a.e("v_lshl_add_u32 v8, v5, 3, v8")
    a.e("v_mul_u32_u24 v8, 80, v8")
    a.e("v_bfe_u32 v9, v0, 4, 1")
    a.e("v_lshl_add_u32 v8, v9, 5, v8")
    a.e("v_and_b32 v10, 3, v0")
    a.e("v_lshl_add_u32 v8, v10, 3, v8")
    a.e("v_add_u32 v8, s37, v8")
    a.e("v_lshlrev_b32 v9, 10, v9")
    a.e("v_lshl_add_u32 v9, v5, 8, v9")
    a.e("v_and_b32 v10, 15, v0")
    a.e("v_lshl_add_u32 v9, v10, 4, v9")
    a.e("s_lshl_b32 s61, s19, 14")
    a.e("s_waitcnt lgkmcnt(0)")
    a.e("s_barrier")
    stamp(a, 3, 32)
    a.lg = []
    PS = (176, 178); CW = (180, 182)
    for jp in range(2):
        a.lds(f"ds_read_b64 {vr(PS[jp],2)}, v2 offset:{256*jp}", ("c", jp))
        a.lds(f"ds_read_b64 {vr(CW[jp],2)}, v3 offset:{256*jp}", ("c", jp))
    for jp in range(2):
        a.wait(lg=[("c", jp)])
        c0, c1 = 184 + 8 * jp, 186 + 8 * jp
        cfma(a, c0, PWs[jp], CW[jp], PS[jp], 172)
        cfma(a, c1, L8s[jp], c0, E0[jp], 172)
        cmul(a, c0 + 4, COEFs[jp], c0, 172)
        cmul(a, c1 + 4, COEFs[jp], c1, 172)
        b = H + 16 * jp
        a.e(f"v_mov_b32 v{b}, v{c0+4}")
        a.e(f"v_mov_b32 v{b+1}, v{c1+4}")
        a.e(f"v_mov_b32 v{b+2}, v{c0+5}")
        a.e(f"v_mov_b32 v{b+3}, v{c1+5}")
    for j in range(8):
        for jp in range(2):
            b = H + 16 * jp
            hr, hi = (b, b + 2) if j == 0 else (R(jp) + 2 * (j - 1), I(jp) + 2 * (j - 1))
            ur, ui = R(jp) + 2 * j, I(jp) + 2 * j
            scan_step(jp, hr, hi, ur, ui, ur, ui, ur, ui)
    PK = 176
    for T_ in range(4):
        base = ACC + 16 * T_
        neg = "-" if T_ >= 2 else ""
        for sg in range(2):
            q = PK + 8 * (T_ & 1) + 4 * sg
            for p in range(4):
                a.e(f"v_cvt_pk_bf16_f32 v{q+p}, {neg}v{base+4*p+sg}, {neg}v{base+4*p+2+sg}")
            a.lds(f"ds_write_b128 v4, {vr(q,4)} offset:{T_*2560+16*sg}")
    a.wait(lg_all=True)
    O = 192
    for jj in range(8):
        a.lds(f"ds_read_b64_tr_b16 {vr(O+4*jj,2)}, v8 offset:{jj*1280}", ("o", jj))
        a.lds(f"ds_read_b64_tr_b16 {vr(O+4*jj+2,2)}, v8 offset:{jj*1280+320}", ("o", jj))
    for jj in range(8):
        a.wait(lg=[("o", jj)])
        if jj and jj % 2 == 0:
            a.e("s_add_u32 s61, s61, 4096")
        a.e(f"buffer_store_dwordx4 {vr(O+4*jj,4)}, v9, s[28:31], s61 offen offset:{512*(jj&1)}")
    stamp(a, 4, 32)
    stamp_flush(a, 1, 32, 33, 8)
    a.lab("K1_done")
    a.e("s_endpgm")
    return a.text() + kd("gemm1_kernel", 256, 100, 256)

K2_LDS = 5 * 20480
def gen_k2(U=8):
    a = Asm()
    head(a, "gemm2_kernel")
    a.e("s_cmp_ge_u32 s2, 256")
    a.e("s_cbranch_scc1 K2_done")
    a.e("s_load_dwordx2 s[4:5], s[0:1], 120")
    a.e("s_load_dwordx2 s[6:7], s[0:1], 0")
    a.e("s_load_dwordx2 s[8:9], s[0:1], 64")
    a.e("s_load_dwordx2 s[10:11], s[0:1], 104")
    a.e("v_lshrrev_b32 v1, 6, v0")
    a.e("v_and_b32 v0, 63, v0")
    a.e("v_readfirstlane_b32 s3, v1")
    a.e("s_and_b32 s16, s2, 7")
    a.e("s_lshr_b32 s17, s2, 3")
    a.e("s_lshr_b32 s18, s16, 1")
    a.e("s_lshl_b32 s18, s18, 3")
    a.e("s_and_b32 s19, s17, 7")
    a.e("s_add_u32 s18, s18, s19")
    a.e("s_and_b32 s19, s16, 1")
    a.e("s_lshl_b32 s19, s19, 2")
    a.e("s_lshr_b32 s17, s17, 3")
    a.e("s_add_u32 s19, s19, s17")
    a.e(f"s_mul_i32 s20, s18, {HA_SLAB}")
    a.e(f"s_add_u32 s20, s20, {hex(HA_OFF)}")
    a.e(f"s_mul_i32 s21, s19, {WB_SLAB}")
    a.e(f"s_add_u32 s21, s21, {hex(WB_OFF)}")
    a.e("s_mul_i32 s22, s3, 24")
    a.e("s_add_u32 s23, s22, 24")
    a.e("s_min_u32 s23, s23, 94")
    a.e("s_lshl_b32 s36, s23, 12")
    a.e("s_mul_i32 s37, s23, 5120")
    a.e("s_lshl_b32 s38, s22, 12")
    a.e("s_mul_i32 s39, s22, 5120")
    a.e("v_lshlrev_b32 v1, 4, v0")
    a.e("v_add_u32 v2, 4096, v1")
    a.e("s_waitcnt lgkmcnt(0)")
    srd(a, 24, 4, 5, "s36", add="s20")
    srd(a, 28, 4, 5, "s37", add="s21")
    stamp(a, 0, 20)
    ACC = 32
    def buf(u):
        if u < 4: return ("v", 112 + 36 * u)
        return ("a", 36 * (u - 4))
    def breg(u, off, n=4):
        k, b = buf(u)
        return f"{k}[{b+off}:{b+off+n-1}]"
    def loadX(u, mi):
        a.e(f"buffer_load_dwordx4 {breg(u, 4*mi)}, v1, s[24:27], s38 offen offset:{1024*mi}")
    def loadW(u, nt):
        if nt < 4:
            a.e(f"buffer_load_dwordx4 {breg(u, 16+4*nt)}, v1, s[28:31], s39 offen offset:{1024*nt}")
        else:
            a.e(f"buffer_load_dwordx4 {breg(u, 16+4*nt)}, v2, s[28:31], s39 offen")
    def adv():
        a.e("s_add_u32 s38, s38, 4096")
        a.e("s_add_u32 s39, s39, 5120")
    for u in range(U):
        for nt in range(5): loadW(u, nt)
        for mi in range(4): loadX(u, mi)
        adv()
        if u == 0:
            srd(a, 40, 6, 7, L * D * 2)
            srd(a, 44, 4, 5, L * D * 2)
            srd(a, 48, 8, 9, D * 2)
            srd(a, 52, 10, 11, L * D * 4)
            a.e("v_and_b32 v3, 15, v0")
            a.e("v_lshrrev_b32 v4, 4, v0")
            a.e("s_lshl_b32 s56, s18, 6")
            a.e("s_lshl_b32 s57, s3, 4")
            a.e("s_add_u32 s56, s56, s57")
            a.e("s_mul_i32 s57, s56, 1280")
            a.e("s_mul_i32 s58, s19, 160")
            a.e("s_add_u32 s57, s57, s58")
            a.e("v_mul_u32_u24 v5, 1280, v3")
            a.e("v_lshl_add_u32 v5, v4, 3, v5")
            a.e("v_lshlrev_b32 v6, 1, v5")
            a.e("s_lshl_b32 s59, s57, 1")
            a.e("v_bfe_u32 v7, v0, 3, 1")
            a.e("v_lshlrev_b32 v7, 4, v7")
            a.e("v_and_b32 v8, 1, v0")
            a.e("v_lshl_add_u32 v7, v8, 5, v7")
            a.e("v_bfe_u32 v8, v0, 1, 1")
            a.e("v_lshl_add_u32 v7, v8, 7, v7")
            a.e("v_bfe_u32 v8, v0, 2, 1")
            a.e("v_lshl_add_u32 v7, v8, 8, v7")
            a.e("v_lshrrev_b32 v8, 1, v4")
            a.e("v_lshl_add_u32 v7, v8, 9, v7")
            a.e("v_and_b32 v8, 1, v4")
            a.e("v_lshl_add_u32 v7, v8, 3, v7")
            a.e("s_lshr_b32 s60, s56, 5")
            a.e("s_mul_i32 s60, s60, 40960")
            a.e("s_and_b32 s61, s3, 1")
            a.e("s_lshl_b32 s61, s61, 6")
            a.e("s_add_u32 s60, s60, s61")
            a.e("s_mul_i32 s61, s19, 5120")
            a.e("s_add_u32 s60, s60, s61")
            a.e("s_add_u32 s61, s60, 4096")
            a.e("v_lshlrev_b32 v8, 3, v4")
            for nt in range(5):
                a.e(f"buffer_load_dwordx2 {ar(144+2*nt,2)}, v5, s[40:43], s57 offen offset:{32*nt}")
                if nt < 4:
                    a.e(f"buffer_load_dwordx2 {ar(154+2*nt,2)}, v7, s[44:47], s60 offen offset:{1024*nt}")
                else:
                    a.e(f"buffer_load_dwordx2 {ar(154+2*nt,2)}, v7, s[44:47], s61 offen")
                a.e(f"buffer_load_dwordx2 {ar(164+2*nt,2)}, v8, s[48:51], s58 offen offset:{32*nt}")
    for i in range(80):
        a.e(f"v_mov_b32 v{ACC+i}, 0")
    a.e("s_cmp_eq_u32 s3, 0")
    a.e("s_cselect_b32 s62, 0, 1")
    a.e("s_add_u32 s62, s62, s3")
    a.e("s_mul_i32 s62, s62, 20480")
    a.e("v_add_u32 v9, s62, v1")
    a.e("v_add_u32 v10, 20480, v1")
    a.e("s_mul_i32 s62, s3, 5120")
    a.e("v_add_u32 v11, s62, v1")
    a.e("v_add_u32 v12, 61440, v11")
    a.e("s_mov_b32 s63, 0")
    a.lab("K2_loop")
    for u in range(U):
        a.e(f"s_waitcnt vmcnt({min(63, 9*(U-1))})")
        for nt in range(5):
            for mi in range(4):
                acc = vr(ACC + 4 * (mi * 5 + nt), 4)
                a.e(f"v_mfma_f32_16x16x32_bf16 {acc}, {breg(u,16+4*nt)}, {breg(u,4*mi)}, {acc}")
            loadW(u, nt)
        for mi in range(4): loadX(u, mi)
        adv()
    a.e("s_add_u32 s63, s63, 1")
    a.e(f"s_cmp_lg_u32 s63, {16//U}")
    a.e("s_cbranch_scc1 K2_noflush")
    a.e("s_cmp_lg_u32 s3, 1")
    a.e("s_cbranch_scc1 K2_noflush")
    a.e("s_nop 7")
    for i in range(20):
        a.e(f"ds_write_b128 v10, {vr(ACC+4*i,4)} offset:{1024*i}")
    a.e("s_waitcnt lgkmcnt(0)")
    for i in range(80):
        a.e(f"v_mov_b32 v{ACC+i}, 0")
    a.e("s_nop 1")
    a.lab("K2_noflush")
    a.e(f"s_cmp_lt_u32 s63, {24//U}")
    a.e("s_cbranch_scc1 K2_loop")
    stamp(a, 1, 20)
    a.e("s_nop 7")
    a.e("s_waitcnt vmcnt(0)")
    for i in range(20):
        a.e(f"ds_write_b128 v9, {vr(ACC+4*i,4)} offset:{1024*i}")
    XF = 212; SK = 232
    a.e("s_mov_b32 s64, 0xffff0000")
    a.e(f"s_mov_b32 s60, {hex(f2u(-1.4426950408889634))}")
    for i in range(10):
        a.e(f"v_accvgpr_read_b32 v13, a{144+i}")
        a.e(f"v_accvgpr_read_b32 v14, a{154+i}")
        a.e(f"v_accvgpr_read_b32 v15, a{164+i}")
        a.e(f"v_lshlrev_b32 v{XF+2*i}, 16, v13")
        a.e(f"v_and_b32 v{XF+2*i+1}, s64, v13")
        a.e("v_lshlrev_b32 v16, 16, v14")
        a.e("v_and_b32 v17, s64, v14")
        a.e("v_lshlrev_b32 v18, 16, v15")
        a.e("v_and_b32 v19, s64, v15")
        a.e("v_pk_mul_f32 v[16:17], v[16:17], v[18:19]")
        a.e("v_cvt_pk_bf16_f32 v16, v16, v17")
        a.e(f"v_lshlrev_b32 v{SK+2*i}, 16, v16")
        a.e(f"v_and_b32 v{SK+2*i+1}, s64, v16")
    a.e("s_waitcnt lgkmcnt(0)")
    a.e("s_barrier")
    RB = 112
    a.lg = []
    for nt in range(5):
        for p in range(5):
            if p < 3: a.lds(f"ds_read_b128 {vr(RB+20*nt+4*p,4)}, v11 offset:{20480*p+1024*nt}", ("r", nt))
            else: a.lds(f"ds_read_b128 {vr(RB+20*nt+4*p,4)}, v12 offset:{20480*(p-3)+1024*nt}", ("r", nt))
    for nt in range(5):
        a.wait(lg=[("r", nt)])
        b = RB + 20 * nt
        for h in range(2):
            y, o = b + 2 * h, b + 8 + 2 * h
            a.e(f"v_pk_add_f32 {vr(o,2)}, {vr(o,2)}, {vr(o+4,2)}")
            a.e(f"v_pk_add_f32 {vr(y,2)}, {vr(y,2)}, {vr(y+4,2)}")
            a.e(f"v_pk_add_f32 {vr(o,2)}, {vr(o,2)}, {vr(o+8,2)}")
            a.e(f"v_pk_add_f32 {vr(y,2)}, {vr(y,2)}, {vr(SK+4*nt+2*h,2)}")
        for h in range(2):
            o = b + 8 + 2 * h
            a.e(f"v_pk_mul_f32 {vr(o+4,2)}, {vr(o,2)}, s[60:61] op_sel_hi:[1,0]")
        for r in range(4):
            a.e(f"v_exp_f32 v{b+12+r}, v{b+12+r}")
        for h in range(2):
            y, o = b + 2 * h, b + 8 + 2 * h
            a.e(f"v_pk_mul_f32 {vr(y,2)}, {vr(y,2)}, {vr(o,2)}")
        for h in range(2):
            a.e(f"v_pk_add_f32 {vr(b+12+2*h,2)}, {vr(b+12+2*h,2)}, 1.0 op_sel_hi:[1,0]")
        for r in range(4):
            a.e(f"v_rcp_f32 v{b+12+r}, v{b+12+r}")
        a.e("s_nop 0")
        for h in range(2):
            y = b + 2 * h
            a.e(f"v_pk_fma_f32 {vr(y,2)}, {vr(y,2)}, {vr(b+12+2*h,2)}, {vr(XF+4*nt+2*h,2)}")
        a.e(f"buffer_store_dwordx4 {vr(b,4)}, v6, s[52:55], s59 offen offset:{64*nt}")
    stamp(a, 2, 20)
    stamp_flush(a, 2, 20, 21, 4)
    a.lab("K2_done")
    a.e("s_endpgm")
    return a.text() + kd("gemm2_kernel", 256 + 176, 100, 256)

HEADER = open("recurrent_scan__ssm_conv_s5__glu_gated_swiglu__prompt.s.ref").read().split("; Override")[0]

def build(path):
    s = HEADER
    s += "; @launch kernel=prep_kernel grid=(363,1,1) block=(256,1,1) lds=0\n"
    s += f"; @launch kernel=gemm1_kernel grid=(256,1,1) block=(512,1,1) lds={K1_LDS}\n"
    s += f"; @launch kernel=gemm2_kernel grid=(256,1,1) block=(256,1,1) lds={K2_LDS}\n"
    s += '.amdgcn_target "amdgcn-amd-amdhsa--gfx950"\n.text\n'
    s += gen_k0() + gen_k1() + gen_k2()
    open(path, "w").write(s)

if __name__ == "__main__":
    out = sys.argv[1] if len(sys.argv) > 1 else "recurrent_scan__ssm_conv_s5__glu_gated_swiglu__prompt.s"
    if "--stamps" in sys.argv: STAMPS = True
    build(out)
```

```python
import sys, struct

NAME = "recurrent_scan__ssm_conv_s5__glu_gated_swiglu__prompt_kernel"
L, D, P, F = 2048, 640, 640, 1728
HA_OFF = 0x0
HA_SLAB = 95 * 4096
WB_OFF = 0xC00000
WB_SLAB = 55 * 5120
ST1_OFF = 0xF00000
CS_OFF = 0xF10000
AGG_OFF = 0xFA0000
DONE_OFF = 0xFC0000
FLAG_OFF = 0xFD0000
NONCE_OFF = 0xFF0000
STAMP_OFF = 0x1000000
sTAG = 66
LDS_BYTES = 163840
STAMPS = False
OPT = {}

def f2u(x):
    return struct.unpack("<I", struct.pack("<f", x))[0]
def u2f(u):
    return struct.unpack("<f", struct.pack("<I", u))[0]

class Asm:
    def __init__(self):
        self.l = []; self.vm = []; self.lg = []; self.nbar = 0
    def e(self, s): self.l.append("    " + s)
    def lab(self, s): self.l.append(s + ":")
    def vmem(self, s, tag=None): self.e(s); self.vm.append(tag)
    def lds(self, s, tag=None): self.e(s); self.lg.append(tag)
    def bar(self): self.e("s_barrier"); self.nbar += 1
    def reset(self): self.vm = []; self.lg = []
    @staticmethod
    def _need(q, tags):
        idx = -1
        for i, t in enumerate(q):
            if t in tags: idx = i
        return idx
    def wait(self, vm=None, lg=None, vm_all=False, lg_all=False):
        parts = []
        i = len(self.vm) - 1 if vm_all else self._need(self.vm, vm or [])
        if i >= 0:
            n = min(len(self.vm) - 1 - i, 63)
            parts.append(f"vmcnt({n})")
            self.vm = self.vm[len(self.vm) - n:] if n else []
        i = len(self.lg) - 1 if lg_all else self._need(self.lg, lg or [])
        if i >= 0:
            n = min(len(self.lg) - 1 - i, 15)
            parts.append(f"lgkmcnt({n})")
            self.lg = self.lg[len(self.lg) - n:] if n else []
        if parts: self.e("s_waitcnt " + " ".join(parts))
    def text(self): return "\n".join(self.l) + "\n"

def vr(b, n=1): return f"v{b}" if n == 1 else f"v[{b}:{b+n-1}]"
def sq(b): return f"s[{b}:{b+3}]"

def srd(a, d, lo, nbytes, add=None):
    if add is None:
        a.e(f"s_mov_b32 s{d}, s{lo}"); a.e(f"s_mov_b32 s{d+1}, s{lo+1}")
    else:
        a.e(f"s_add_u32 s{d}, s{lo}, {add}"); a.e(f"s_addc_u32 s{d+1}, s{lo+1}, 0")
    a.e(f"s_mov_b32 s{d+2}, {nbytes}")
    a.e(f"s_mov_b32 s{d+3}, 0x00020000")

pX, pLRE, pLIM, pBRE, pBIM, pCRE, pCIM, pLDT, pDSK, pBX, pW1, pW3, pW2, pOUT, pDBG, pWS = range(4, 36, 2)
rX, rW, rA, rB, rC, rD = 36, 40, 44, 48, 52, 56
sM, sGI, sG, sMT, sNG, sHW = 60, 61, 62, 63, 64, 65
sT0, sT1, sT2, sT3, sT4, sT5 = 68, 69, 70, 71, 72, 73
sXO, sWO, sLB = 74, 75, 76
SV = 255

def stamp(a, slot):
    if not STAMPS: return
    a.e("s_memrealtime s[96:97]")
    a.e("s_memtime s[98:99]")
    a.e("s_waitcnt lgkmcnt(0)")
    a.e(f"v_writelane_b32 v{SV}, s96, {slot}")
    a.e(f"v_writelane_b32 v{SV}, s98, {slot+32}")
    a.lg = []
def stamp_flush(a):
    if not STAMPS: return
    srd(a, 92, pWS, 1 << 20, add=hex(STAMP_OFF))
    a.e("s_lshl_b32 s98, s2, 3")
    a.e("s_add_u32 s98, s98, s3")
    a.e("s_lshl_b32 s98, s98, 8")
    a.e(f"v_lshlrev_b32 v{SV-1}, 2, v0")
    a.e(f"buffer_store_dword v{SV}, v{SV-1}, s[92:95], s98 offen")

def cmul(a, d, x, y, t):
    a.e(f"v_pk_mul_f32 {vr(t,2)}, {vr(x,2)}, {vr(y,2)} op_sel:[0,0] op_sel_hi:[0,1]")
    a.e(f"v_pk_fma_f32 {vr(d,2)}, {vr(x,2)}, {vr(y,2)}, {vr(t,2)} op_sel:[1,1,0] op_sel_hi:[1,0,1] neg_lo:[1,0,0]")
def cfma(a, d, x, y, z, t):
    a.e(f"v_pk_fma_f32 {vr(t,2)}, {vr(x,2)}, {vr(y,2)}, {vr(z,2)} op_sel:[0,0,0] op_sel_hi:[0,1,1]")
    a.e(f"v_pk_fma_f32 {vr(d,2)}, {vr(x,2)}, {vr(y,2)}, {vr(t,2)} op_sel:[1,1,0] op_sel_hi:[1,0,1] neg_lo:[1,0,0]")

class Map: pass
FFN = Map(); FFN.name = "ffn"; FFN.slot = 53248; FFN.woff = 32768; FFN.nfr = 10
FFN.tab_st = 159744; FFN.tab_cs = 159744 + 2048
SSM = Map(); SSM.name = "ssm"; SSM.slot = 49152; SSM.woff = 32768; SSM.nfr = 8
SSM.scr = 147456
SSM.tab_rs = 147456 + 14336 - 0
SSM.tab_rs = 161792 - 0
SSM.tab_mr = 161792 + 1024
SSM.tab_cs = 147456 + 8704
SSM.img = 73728
P2_SLOT = 46080

def prologue(a):
    a.l.append(f".globl {NAME}"); a.l.append(".p2align 8"); a.l.append(f".type {NAME},@function")
    a.lab(NAME)
    a.e("s_cmp_ge_u32 s2, 256")
    a.e("s_cbranch_scc1 L_done")
    a.e("s_load_dwordx16 s[4:19], s[0:1], 0")
    a.e("s_load_dwordx16 s[20:35], s[0:1], 64")
    a.e("v_lshrrev_b32 v1, 6, v0")
    a.e("v_and_b32 v0, 63, v0")
    a.e("v_readfirstlane_b32 s3, v1")
    a.e(f"s_and_b32 s{sT0}, s2, 7")
    a.e(f"s_lshr_b32 s{sT1}, s2, 3")
    a.e(f"s_and_b32 s{sM}, s{sT0}, 1")
    a.e(f"s_lshl_b32 s{sM}, s{sM}, 2")
    a.e(f"s_and_b32 s{sT2}, s{sT1}, 3")
    a.e(f"s_add_u32 s{sM}, s{sM}, s{sT2}")
    a.e(f"s_lshr_b32 s{sT2}, s{sT0}, 1")
    a.e(f"s_lshr_b32 s{sT3}, s{sT1}, 2")
    a.e(f"s_lshl_b32 s{sMT}, s{sT2}, 3")
    a.e(f"s_and_b32 s{sT4}, s{sT1}, 7")
    a.e(f"s_add_u32 s{sMT}, s{sMT}, s{sT4}")
    a.e(f"s_and_b32 s{sNG}, s{sT0}, 1")
    a.e(f"s_lshl_b32 s{sNG}, s{sNG}, 2")
    a.e(f"s_lshr_b32 s{sT4}, s{sT1}, 3")
    a.e(f"s_add_u32 s{sNG}, s{sNG}, s{sT4}")
    a.e(f"s_mul_i32 s{sT4}, s{sT2}, 3")
    a.e(f"s_lshl_b32 s{sT5}, s{sT2}, 1")
    a.e(f"s_add_u32 s{sT5}, s{sT5}, 2")
    a.e(f"s_cmp_lt_u32 s{sT2}, 2")
    a.e(f"s_cselect_b32 s{sT4}, s{sT4}, s{sT5}")
    a.e(f"s_cselect_b32 s{sT5}, 3, 2")
    a.e(f"s_lshl_b32 s{sT0}, s{sT2}, 3")
    a.e(f"s_sub_u32 s{sT0}, s{sT0}, s{sT4}")
    a.e(f"s_add_u32 s{sT0}, s{sT0}, s{sT3}")
    a.e(f"s_sub_u32 s{sT0}, s{sT0}, s{sT5}")
    a.e(f"s_add_u32 s{sT0}, s{sT0}, 10")
    a.e(f"s_add_u32 s{sT4}, s{sT4}, s{sT3}")
    a.e(f"s_cmp_lt_u32 s{sT3}, s{sT5}")
    a.e(f"s_cselect_b32 s{sGI}, s{sT4}, s{sT0}")
    a.e(f"s_and_b32 s{sHW}, s3, 3")
    a.e("v_lshlrev_b32 v1, 4, v0")
    a.e("s_waitcnt lgkmcnt(0)")
    stamp(a, 0)
    a.e(f"s_add_u32 s{sT0}, s{pWS}, {hex(NONCE_OFF)}")
    a.e(f"s_addc_u32 s{sT1}, s{pWS+1}, 0")
    a.e(f"s_load_dword s{sTAG}, s[{sT0}:{sT1}], 0")
    a.e("s_cmp_ge_u32 s3, 4")
    a.e("s_cbranch_scc1 L_helper")

def roles(a):
    a.e("s_cmp_ge_u32 s3, 2")
    a.e("s_cbranch_scc1 L_relay")
    srd(a, rX, pX, L * D * 2)
    a.e(f"s_lshl_b32 s{sT0}, s{sM}, 8")
    a.e(f"s_lshl_b32 s{sT1}, s{sGI}, 3")
    a.e(f"s_add_u32 s{sT0}, s{sT0}, s{sT1}")
    a.e(f"s_lshl_b32 s{sT1}, s3, 2")
    a.e(f"s_add_u32 s{sT0}, s{sT0}, s{sT1}")
    a.e(f"s_mul_i32 s{sT1}, s{sT0}, 1280")
    a.e("v_lshrrev_b32 v2, 4, v0")
    a.e("v_and_b32 v3, 15, v0")
    a.e("v_mul_u32_u24 v4, 1280, v2")
    a.e("v_lshl_add_u32 v4, v3, 4, v4")
    for n in range(5):
        a.vmem(f"buffer_load_dwordx4 {vr(8+4*n,4)}, v4, {sq(rX)}, s{sT1} offen offset:{256*n}", ("x", n))
    srd(a, rA, pWS, 65536, add=hex(ST1_OFF))
    a.e(f"s_lshl_b32 s{sT0}, s{sT0}, 5")
    a.e("v_lshlrev_b32 v5, 5, v2")
    a.e("v_lshl_add_u32 v5, v3, 3, v5")
    a.e(f"s_mov_b32 s{sT2}, 0xffff0000")
    FB = 32
    for n in range(5):
        a.wait(vm=[("x", n)])
        for i in range(4):
            s = 8 + 4 * n + i; d = FB + 2 * (4 * n + i)
            a.e(f"v_lshlrev_b32 v{d}, 16, v{s}")
            a.e(f"v_and_b32 v{d+1}, s{sT2}, v{s}")
    a.e(f"v_pk_add_f32 v[72:73], {vr(FB,2)}, {vr(FB+2,2)}")
    a.e(f"v_pk_add_f32 v[74:75], {vr(FB+4,2)}, {vr(FB+6,2)}")
    for i in range(4, 20):
        t = 72 + 2 * (i & 1)
        a.e(f"v_pk_add_f32 {vr(t,2)}, {vr(t,2)}, {vr(FB+2*i,2)}")
    a.e("v_pk_add_f32 v[72:73], v[72:73], v[74:75]")
    a.e("v_add_f32 v72, v72, v73")
    def red16(r):
        for m in ("quad_perm:[1,0,3,2]", "quad_perm:[2,3,0,1]", "row_half_mirror", "row_mirror"):
            a.e("s_nop 1")
            a.e(f"v_add_f32_dpp v{r}, v{r}, v{r} {m} row_mask:0xf bank_mask:0xf")
    red16(72)
    a.e(f"v_mul_f32 v72, {hex(f2u(1.0/640))}, v72")
    a.e("v_cvt_pk_bf16_f32 v74, v72, v72")
    a.e("v_lshlrev_b32 v74, 16, v74")
    a.e("v_sub_f32 v73, v72, v74")
    for i in range(20):
        a.e(f"v_pk_add_f32 {vr(FB+2*i,2)}, {vr(FB+2*i,2)}, v[74:75] op_sel_hi:[1,0] neg_lo:[0,1] neg_hi:[0,1]")
    a.e(f"v_pk_mul_f32 v[76:77], {vr(FB,2)}, {vr(FB,2)}")
    a.e(f"v_pk_mul_f32 v[78:79], {vr(FB+2,2)}, {vr(FB+2,2)}")
    for i in range(2, 20):
        t = 76 + 2 * (i & 1)
        a.e(f"v_pk_fma_f32 {vr(t,2)}, {vr(FB+2*i,2)}, {vr(FB+2*i,2)}, {vr(t,2)}")
    a.e("v_pk_add_f32 v[76:77], v[76:77], v[78:79]")
    a.e("v_add_f32 v76, v76, v77")
    red16(76)
    a.e(f"v_mul_f32 v76, {hex(f2u(1.0/640))}, v76")
    a.e("v_fma_f32 v76, -v73, v73, v76")
    a.e("v_max_f32 v76, 0, v76")
    a.e("v_cvt_pk_bf16_f32 v76, v76, v76")
    a.e("v_lshlrev_b32 v76, 16, v76")
    a.e(f"v_add_f32 v76, {hex(f2u(1e-5))}, v76")
    a.e("v_cvt_pk_bf16_f32 v76, v76, v76")
    a.e("v_lshlrev_b32 v76, 16, v76")
    a.e("v_sqrt_f32 v76, v76")
    a.e("s_nop 0")
    a.e("v_cvt_pk_bf16_f32 v76, v76, v76")
    a.e("v_lshlrev_b32 v75, 16, v76")
    a.e("v_cmp_gt_u32 vcc, 4, v3")
    a.e(f"s_and_saveexec_b64 s[{sT2}:{sT3}], vcc")
    a.e(f"buffer_store_dwordx2 v[74:75], v5, {sq(rA)}, s{sT0} offen sc1")
    a.e(f"s_mov_b64 exec, s[{sT2}:{sT3}]")
    a.e("s_branch L_roles_done")
    a.lab("L_relay")
    a.e("s_cmp_ge_u32 s2, 216")
    a.e("s_cbranch_scc1 L_roles_skip")
    srd(a, rX, pW2, F * D * 2)
    srd(a, rA, pWS, 8 * WB_SLAB, add=hex(WB_OFF))
    a.e(f"s_lshr_b32 s{sT0}, s2, 2")
    a.e(f"s_cmp_ge_u32 s{sT0}, 52")
    a.e(f"s_addc_u32 s{sT0}, s{sT0}, 0")
    a.e(f"s_mul_i32 s{sT1}, s{sT0}, 52")
    a.e(f"s_lshr_b32 s{sT1}, s{sT1}, 8")
    a.e(f"s_mul_i32 s{sT2}, s{sT1}, 5")
    a.e(f"s_sub_u32 s{sT2}, s{sT0}, s{sT2}")
    a.e(f"s_lshl_b32 s{sT3}, s{sT2}, 5")
    a.e(f"s_cmp_ge_u32 s{sT2}, 2")
    a.e(f"s_cselect_b32 s{sT4}, 16, 0")
    a.e(f"s_add_u32 s{sT3}, s{sT3}, s{sT4}")
    a.e(f"s_cmp_eq_u32 s{sT2}, 4")
    a.e(f"s_cselect_b32 s{sT3}, 64, s{sT3}")
    a.e(f"s_cselect_b32 s{sT4}, 80, 16")
    a.e(f"s_cmp_eq_u32 s{sT0}, 53")
    a.e(f"s_cselect_b32 s{sT3}, 80, s{sT3}")
    a.e(f"s_cmp_eq_u32 s{sT0}, 54")
    a.e(f"s_cselect_b32 s{sT4}, 48, s{sT4}")
    a.e(f"s_mul_i32 s{sT1}, s{sT1}, 160")
    a.e(f"s_add_u32 s{sT3}, s{sT3}, s{sT1}")
    a.e(f"s_and_b32 s{sT2}, s2, 3")
    a.e(f"s_lshl_b32 s{sT1}, s{sT2}, 2")
    a.e(f"s_add_u32 s{sT3}, s{sT3}, s{sT1}")
    a.e(f"s_add_u32 s{sT4}, s{sT4}, s{sT3}")
    a.e(f"s_mul_i32 s{sT3}, s{sT3}, 1280")
    a.e(f"s_mul_i32 s{sT4}, s{sT4}, 1280")
    a.e(f"s_sub_u32 s{sT1}, s3, 2")
    a.e(f"s_mul_i32 s{sT1}, s{sT1}, 40")
    a.e(f"v_add_u32 v2, s{sT1}, v0")
    a.e("v_lshlrev_b32 v3, 4, v2")
    a.e("v_cmp_gt_u32 vcc, 40, v0")
    a.e(f"s_and_saveexec_b64 s[{sXO}:{sWO}], vcc")
    for j in range(8):
        so = sT3 if j < 4 else sT4
        a.e(f"buffer_load_dwordx4 {vr(8+4*j,4)}, v3, {sq(rX)}, s{so} offen offset:{1280*(j&3)}")
    RL = 2 * FFN.slot + 8192
    a.e("v_lshlrev_b32 v4, 7, v2")
    a.e(f"v_add_u32 v4, {RL}, v4")
    a.e(f"s_mul_i32 s{sT0}, s{sT0}, 5120")
    a.e(f"s_lshl_b32 s{sT2}, s{sT2}, 8")
    a.e(f"s_add_u32 s{sT0}, s{sT0}, s{sT2}")
    a.e(f"s_mov_b32 s{sT3}, 0x05040100")
    a.e(f"s_mov_b32 s{sT2}, 0x07060302")
    a.e("s_waitcnt vmcnt(0)")
    for col in range(8):
        dw = col >> 1
        sel = sT3 if (col & 1) == 0 else sT2
        for jp in range(4):
            a.e(f"v_perm_b32 v{40+4*col+jp}, v{8+4*(2*jp+1)+dw}, v{8+4*(2*jp)+dw}, s{sel}")
        a.e(f"ds_write_b128 v4, {vr(40+4*col,4)} offset:{16*col}")
    a.e(f"s_mov_b64 exec, s[{sXO}:{sWO}]")
    a.e("v_lshrrev_b32 v5, 4, v0")
    a.e("v_and_b32 v6, 15, v0")
    a.e("v_mul_u32_u24 v4, 1280, v5")
    a.e("v_lshl_add_u32 v4, v6, 4, v4")
    a.e(f"s_lshl_b32 s{sT1}, s{sT1}, 7")
    a.e(f"s_add_u32 s{sT1}, s{sT1}, {RL}")
    a.e(f"v_add_u32 v4, s{sT1}, v4")
    for nt in range(5):
        a.e(f"ds_read_b128 {vr(8+4*nt,4)}, v4 offset:{256*nt}")
    a.e(f"v_mul_u32_u24 v5, {WB_SLAB}, v5")
    a.e("v_lshl_add_u32 v5, v6, 4, v5")
    a.e(f"s_sub_u32 s{sT1}, s3, 2")
    a.e(f"s_mul_i32 s{sT1}, s{sT1}, {4*WB_SLAB}")
    a.e(f"s_add_u32 s{sT0}, s{sT0}, s{sT1}")
    a.e(f"s_add_u32 s{sT1}, s{sT0}, 4096")
    a.e("s_waitcnt lgkmcnt(0)")
    for nt in range(5):
        if nt < 4: a.e(f"buffer_store_dwordx4 {vr(8+4*nt,4)}, v5, {sq(rA)}, s{sT0} offen offset:{1024*nt} sc1")
        else: a.e(f"buffer_store_dwordx4 {vr(8+4*nt,4)}, v5, {sq(rA)}, s{sT1} offen sc1")
    a.e("s_branch L_roles_done")
    a.lab("L_roles_skip")
    a.e("s_waitcnt vmcnt(0)")
    a.lab("L_roles_done")
    a.e("s_waitcnt lgkmcnt(0)")
    a.e(f"s_add_u32 s{sTAG}, s{sTAG}, 0x9E3779B1")
    a.reset()
    stamp(a, 6)

def p1_loop(a, M, ACC, WB, XB, xread, wread, mfma, hooks):
    nfr = M.nfr; NG = 20 * nfr; SG = 2 * nfr
    WR = 10 if M is FFN else 8
    LA = WR - 2; BP = LA - 3
    pend = []
    for ks in range(20):
        for i in range(len(xread(ks))):
            pend.append((nfr * ks - 0.5, "X", (ks, i), nfr * (ks - 1) + 1 if ks else -99, ks >> 1))
    for g in range(NG):
        for i in range(len(wread(g))):
            pend.append((g, "W", (g, i), g - LA, g // SG))
    pend.sort(key=lambda t: t[0])
    avail = 0
    def issue(g, n):
        k = 0
        while k < len(pend) and n > 0:
            need, kind, idx, early, st = pend[k]
            if need > g + WR + nfr: break
            if early <= g and st < avail:
                ins = (xread if kind == "X" else wread)(idx[0])[idx[1]]
                a.lds(ins, (kind, idx[0]))
                pend.pop(k); n -= 1
            else:
                k += 1
    stamp(a, 7)
    a.bar(); avail = 1
    stamp(a, 1)
    issue(-1, 14)
    for g in range(NG):
        ks, fr = divmod(g, nfr)
        if (g + BP) % SG == 0:
            st = (g + BP) // SG
            assert not any(p[4] < st for p in pend), (g, st)
            if st in hooks: hooks[st]("pre")
            a.wait(lg_all=True)
            a.bar(); avail = st + 1
            if st in hooks: hooks[st]("post")
        a.wait(lg=[("W", g), ("X", ks)])
        for tt in range(4):
            a.e(mfma(g, tt))
            issue(g if tt == 3 else g - 1, 1 if tt < 3 else 2)
    assert not pend

def flag_hook(a, tag):
    def h2(when):
        if when == "pre":
            a.e("s_waitcnt vmcnt(0)")
        else:
            a.e("s_cmp_lg_u32 s3, 3")
            a.e(f"s_cbranch_scc1 L_nf_{tag}")
            a.e("s_mov_b32 exec_hi, 0")
            a.e(f"buffer_store_dword v15, v254, {sq(rD)}, s{sT5} offen sc1")
            a.e("s_mov_b64 exec, -1")
            a.lab(f"L_nf_{tag}")
    srd(a, rD, pWS, 32768, add=hex(FLAG_OFF))
    a.e(f"s_lshl_b32 s{sT5}, s2, 7")
    a.e(f"v_mov_b32 v15, s{sTAG}")
    a.e("v_lshlrev_b32 v254, 2, v0")
    return {2: h2}

def compute_ffn(a):
    M = FFN
    WB, XB, ACC = 16, 56, 88
    a.e(f"s_sub_u32 s{sG}, s{sGI}, 10")
    a.e("v_and_b32 v8, 15, v0")
    a.e("v_lshrrev_b32 v9, 4, v0")
    a.e("v_bfe_u32 v10, v0, 1, 3")
    a.e("v_xor_b32 v10, v10, v9")
    a.e("v_lshlrev_b32 v10, 4, v10")
    a.e("v_lshl_add_u32 v10, v8, 7, v10")
    a.e("v_and_b32 v11, 1, v9")
    a.e("v_lshl_add_u32 v10, v11, 3, v10")
    a.e(f"s_lshl_b32 s{sT0}, s3, 13")
    a.e(f"v_add_u32 v10, s{sT0}, v10")
    a.e("v_mov_b32 v2, v10")
    a.e("v_xor_b32 v3, 8, v10")
    a.e("v_xor_b32 v4, 64, v10")
    a.e("v_xor_b32 v5, 0x48, v10")
    for i in range(4):
        a.e(f"v_add_u32 v{248+i}, {2*M.slot}, v{2+i}")
    a.e("v_bfe_u32 v12, v0, 2, 2")
    a.e("v_lshl_add_u32 v12, v9, 3, v12")
    a.e("v_lshl_add_u32 v13, v11, 2, v12")
    a.e("v_xor_b32 v11, 1, v11")
    a.e("v_lshl_add_u32 v14, v11, 2, v12")
    a.e("v_and_b32 v12, 3, v0")
    a.e("v_lshlrev_b32 v12, 3, v12")
    a.e(f"v_add_u32 v12, {M.woff}, v12")
    a.e("v_mul_u32_u24 v13, 160, v13")
    a.e("v_mul_u32_u24 v14, 160, v14")
    a.e("v_add_u32 v6, v13, v12")
    a.e("v_add_u32 v7, v14, v12")
    a.e(f"v_add_u32 v13, {M.slot}, v6")
    a.e(f"v_add_u32 v14, {M.slot}, v7")
    a.e(f"v_add_u32 v252, {2*M.slot}, v6")
    a.e(f"v_add_u32 v253, {2*M.slot}, v7")
    wbase = {0: (6, 7), 1: (13, 14), 2: (252, 253)}
    def xread(ks):
        sl = (ks >> 1) % 3; kk = ks & 1
        out = []
        for tt in range(4):
            for h in range(2):
                reg = (2 if sl < 2 else 248) + 2 * kk + h
                off = (sl * M.slot if sl < 2 else 0) + tt * 2048
                out.append(f"ds_read_b64 {vr(XB+16*kk+4*tt+2*h,2)}, v{reg} offset:{off}")
        return out
    def wread(g):
        ks, fr = divmod(g, 10); sl = (ks >> 1) % 3
        off = (fr & 1) * 10240 + (ks & 1) * 5120 + 32 * (fr >> 1)
        return [f"ds_read_b64_tr_b16 {vr(WB+4*(g%10)+2*s,2)}, v{wbase[sl][s]} offset:{off}" for s in range(2)]
    def acc(tt, fr): return ACC + 40 * tt + 4 * fr
    def mfma(g, tt):
        ks, fr = divmod(g, 10)
        c = "0" if ks == 0 else vr(acc(tt, fr), 4)
        return f"v_mfma_f32_16x16x32_bf16 {vr(acc(tt,fr),4)}, {vr(WB+4*(g%10),4)}, {vr(XB+16*(ks&1)+4*tt,4)}, {c}"
    p1_loop(a, M, ACC, WB, XB, xread, wread, mfma, flag_hook(a, "f"))
    stamp(a, 2)
    CS = 16
    ST = 56
    a.e(f"s_lshl_b32 s{sT0}, s3, 9")
    a.e(f"s_add_u32 s{sT0}, s{sT0}, {M.tab_st}")
    a.e("v_lshlrev_b32 v2, 3, v8")
    a.e(f"v_add_u32 v2, s{sT0}, v2")
    a.e("v_lshlrev_b32 v3, 4, v9")
    a.e(f"v_add_u32 v3, {M.tab_cs}, v3")
    for tt in range(4):
        a.lds(f"ds_read_b64 {vr(ST+2*tt,2)}, v2 offset:{128*tt}", "st")
    for fr in range(10):
        a.lds(f"ds_read_b128 {vr(CS+4*fr,4)}, v3 offset:{(fr&1)*512+(fr>>1)*64}", ("cs", fr))
    a.e(f"s_lshl_b32 s{sT0}, s{sM}, 2")
    a.e(f"s_add_u32 s{sT0}, s{sT0}, s3")
    a.e(f"s_mul_i32 s{sT0}, s{sT0}, {HA_SLAB}")
    srd(a, rA, pWS, HA_SLAB, add=f"s{sT0}")
    a.e(f"s_lshr_b32 s{sT1}, s{sG}, 1")
    a.e(f"s_mul_i32 s{sT1}, s{sT1}, 5")
    a.e(f"s_add_u32 s{sT1}, s{sT1}, 40")
    a.e(f"s_and_b32 s{sT2}, s{sG}, 1")
    a.e(f"s_lshl_b32 s{sT3}, s{sT2}, 1")
    a.e(f"s_add_u32 s{sT3}, s{sT3}, s{sT1}")
    a.e(f"s_lshl_b32 s{sT3}, s{sT3}, 12")
    a.e(f"s_add_u32 s{sT4}, s{sT3}, 4096")
    a.e(f"s_add_u32 s{sT1}, s{sT1}, 4")
    a.e(f"s_lshl_b32 s{sT1}, s{sT1}, 12")
    a.e(f"s_lshl_b32 s{sT2}, s{sT2}, 9")
    a.e(f"s_add_u32 s{sT1}, s{sT1}, s{sT2}")
    a.e(f"s_cmp_eq_u32 s{sG}, 21")
    a.e(f"s_cselect_b32 s{sT3}, 0x7000000, s{sT3}")
    a.e("v_lshlrev_b32 v4, 3, v0")
    C1 = 64; C2 = 72
    a.wait(lg=["st"])
    for tt in range(4):
        a.e(f"v_rcp_f32 v{C1+2*tt}, v{ST+2*tt+1}")
        a.e(f"v_mul_f32 v{C2+2*tt}, v{ST+2*tt+1}, v{ST+2*tt+1}")
    for tt in range(4):
        a.e(f"v_mul_f32 v{C1+2*tt}, {hex(f2u(-1.4426950408889634))}, v{C1+2*tt}")
    T = 80
    for tt in range(4):
        for grp in ((0, 1), (2, 3), (4,)):
            n = len(grp)
            for j in grp:
                a.wait(lg=[("cs", 2 * j), ("cs", 2 * j + 1)])
                for mat in range(2):
                    r = acc(tt, 2 * j + mat)
                    for h in range(2):
                        a.e(f"v_pk_fma_f32 {vr(r+2*h,2)}, {vr(ST+2*tt,2)}, {vr(CS+4*(2*j+mat)+2*h,2)}, {vr(r+2*h,2)} op_sel:[0,0,0] op_sel_hi:[0,1,1] neg_lo:[1,0,0] neg_hi:[1,0,0]")
            for i, j in enumerate(grp):
                for h in range(2):
                    a.e(f"v_pk_mul_f32 {vr(T+4*i+2*h,2)}, {vr(acc(tt,2*j)+2*h,2)}, {vr(C1+2*tt,2)} op_sel_hi:[1,0]")
            for p in range(4 * n):
                a.e(f"v_exp_f32 v{T+p}, v{T+p}")
            for j in grp:
                for h in range(2):
                    a.e(f"v_pk_mul_f32 {vr(acc(tt,2*j)+2*h,2)}, {vr(acc(tt,2*j)+2*h,2)}, {vr(acc(tt,2*j+1)+2*h,2)}")
            for p in range(2 * n):
                a.e(f"v_pk_fma_f32 {vr(T+2*p,2)}, {vr(T+2*p,2)}, {vr(C2+2*tt,2)}, {vr(C2+2*tt,2)} op_sel_hi:[1,0,0]")
            for p in range(4 * n):
                a.e(f"v_rcp_f32 v{T+p}, v{T+p}")
            a.e("s_nop 0")
            for i, j in enumerate(grp):
                for h in range(2):
                    a.e(f"v_pk_mul_f32 {vr(acc(tt,2*j)+2*h,2)}, {vr(acc(tt,2*j)+2*h,2)}, {vr(T+4*i+2*h,2)}")
            o = acc(tt, 2 * grp[0] + 1)
            for i, j in enumerate(grp):
                for h in range(2):
                    a.e(f"v_cvt_pk_bf16_f32 v{o+2*i+h}, v{acc(tt,2*j)+2*h}, v{acc(tt,2*j)+2*h+1}")
            if n == 2:
                so = sT3 if grp[0] == 0 else sT4
                a.e(f"buffer_store_dwordx4 {vr(o,4)}, v1, {sq(rA)}, s{so} offen offset:{1024*tt} sc1")
            else:
                a.e(f"buffer_store_dwordx2 {vr(o,2)}, v4, {sq(rA)}, s{sT1} offen offset:{1024*tt} sc1")
    stamp(a, 3)

def compute_ssm(a):
    M = SSM
    WB, XB, ACC = 16, 48, 80
    KL, KC, K8, KP = 208, 216, 224, 232
    L16, L256 = 240, 242
    a.e(f"s_mov_b32 s{sG}, s{sGI}")
    srd(a, rB, pLRE, P * 2); srd(a, rC, pLIM, P * 2); srd(a, rD, pLDT, P * 2)
    a.e("v_lshlrev_b32 v2, 1, v0")
    a.e(f"s_lshl_b32 s{sT0}, s{sG}, 7")
    a.e(f"buffer_load_ushort v100, v2, {sq(rB)}, s{sT0} offen")
    a.e(f"buffer_load_ushort v101, v2, {sq(rC)}, s{sT0} offen")
    a.e(f"buffer_load_ushort v102, v2, {sq(rD)}, s{sT0} offen")
    return WB, XB, ACC, KL, KC, K8, KP, L16, L256

def compute_ssm2(a, regs):
    M = SSM
    WB, XB, ACC, KL, KC, K8, KP, L16, L256 = regs
    a.e("v_lshlrev_b32 v100, 16, v100")
    a.e("v_lshlrev_b32 v101, 16, v101")
    a.e("v_lshlrev_b32 v102, 16, v102")
    HI = f2u(1.4426950408889634)
    a.e(f"s_mov_b32 s{sT0}, {hex(HI)}")
    a.e(f"s_mov_b32 s{sT1}, {hex(f2u(1.4426950408889634 - u2f(HI)))}")
    a.e(f"s_mov_b32 s{sT2}, {hex(f2u(0.6931471805599453))}")
    def expf(d, x, t0, t1):
        a.e(f"v_mul_f32 v{t0}, s{sT0}, v{x}")
        a.e(f"v_fma_f32 v{t1}, v{x}, s{sT0}, -v{t0}")
        a.e(f"v_fma_f32 v{t1}, v{x}, s{sT1}, v{t1}")
        a.e(f"v_exp_f32 v{t0}, v{t0}")
        a.e(f"v_mul_f32 v{t1}, s{sT2}, v{t1}")
        a.e(f"v_fma_f32 v{d}, v{t0}, v{t1}, v{t0}")
    expf(102, 102, 104, 105)
    a.e("v_cvt_pk_bf16_f32 v102, v102, v102")
    a.e("v_lshlrev_b32 v102, 16, v102")
    a.e("v_mul_f32 v106, v102, v100")
    a.e("v_mul_f32 v107, v102, v101")
    expf(106, 106, 104, 105)
    HI = f2u(0.15915494309189535)
    a.e(f"s_mov_b32 s{sT0}, {hex(HI)}")
    a.e(f"s_mov_b32 s{sT1}, {hex(f2u(0.15915494309189535 - u2f(HI)))}")
    a.e(f"v_mul_f32 v104, s{sT0}, v107")
    a.e(f"v_fma_f32 v105, v107, s{sT0}, -v104")
    a.e(f"v_fma_f32 v105, v107, s{sT1}, v105")
    a.e("v_rndne_f32 v103, v104")
    a.e("v_sub_f32 v104, v104, v103")
    a.e("v_add_f32 v104, v104, v105")
    a.e("v_cos_f32 v108, v104")
    a.e("v_sin_f32 v109, v104")
    a.e("s_nop 0")
    LAM, COEF, L8, P0, TMP, TMP2, L32, L64, L128 = 110, 112, 114, 116, 124, 126, 128, 130, 132
    a.e(f"v_mul_f32 v{LAM}, v106, v108")
    a.e(f"v_mul_f32 v{LAM+1}, v106, v109")
    a.e("v_max_f32 v106, |v100|, |v101|")
    a.e("v_rcp_f32 v107, v106")
    a.e(f"v_add_f32 v108, -1.0, v{LAM}")
    a.e("v_mul_f32 v100, v100, v107")
    a.e("v_mul_f32 v101, v101, v107")
    a.e("v_mul_f32 v109, v100, v100")
    a.e("v_fma_f32 v109, v101, v101, v109")
    a.e("v_mul_f32 v109, v109, v106")
    a.e("v_rcp_f32 v109, v109")
    a.e("v_mul_f32 v104, v108, v100")
    a.e(f"v_fma_f32 v104, v{LAM+1}, v101, v104")
    a.e(f"v_mul_f32 v105, v{LAM+1}, v100")
    a.e("v_fma_f32 v105, -v108, v101, v105")
    a.e("v_add_f32 v109, v109, v109")
    a.e(f"v_mul_f32 v{COEF}, v104, v109")
    a.e(f"v_mul_f32 v{COEF+1}, v105, v109")
    cmul(a, L8, LAM, LAM, TMP)
    cmul(a, TMP2, L8, L8, TMP)
    cmul(a, L8, TMP2, TMP2, TMP)
    cmul(a, L16, L8, L8, TMP)
    cmul(a, L32, L16, L16, TMP)
    cmul(a, L64, L32, L32, TMP)
    cmul(a, L128, L64, L64, TMP)
    cmul(a, L256, L128, L128, TMP)
    a.e(f"v_mov_b32 v{P0}, 1.0")
    a.e(f"v_mov_b32 v{P0+1}, 0")
    for bit, src in ((0, L64), (1, L128)):
        a.e(f"s_bitcmp0_b32 s3, {bit}")
        a.e(f"s_cbranch_scc1 L_pw{bit}")
        cmul(a, TMP2, P0, src, TMP)
        a.e(f"v_mov_b32 v{P0}, v{TMP2}")
        a.e(f"v_mov_b32 v{P0+1}, v{TMP2+1}")
        a.lab(f"L_pw{bit}")
    cmul(a, P0 + 2, P0, L16, TMP)
    cmul(a, P0 + 4, P0, L32, TMP)
    cmul(a, P0 + 6, P0 + 4, L16, TMP)
    a.e(f"s_mul_i32 s{sT0}, s3, 3584")
    a.e(f"s_add_u32 s{sT0}, s{sT0}, {M.scr}")
    a.e("v_lshlrev_b32 v2, 3, v0")
    a.e(f"v_add_u32 v2, s{sT0}, v2")
    for i in range(7):
        a.e(f"ds_write_b64 v2, {vr(LAM+2*i,2)} offset:{512*i}")
    a.e("v_and_b32 v8, 15, v0")
    a.e("v_lshrrev_b32 v9, 4, v0")
    a.e("v_lshlrev_b32 v2, 3, v8")
    a.e(f"v_add_u32 v2, s{sT0}, v2")
    a.e("v_lshl_add_u32 v3, v9, 9, v2")
    a.e("s_waitcnt lgkmcnt(0)")
    for ct in range(4):
        a.e(f"ds_read_b64 {vr(KL+2*ct,2)}, v2 offset:{128*ct}")
        a.e(f"ds_read_b64 {vr(KC+2*ct,2)}, v2 offset:{512+128*ct}")
        a.e(f"ds_read_b64 {vr(K8+2*ct,2)}, v2 offset:{1024+128*ct}")
        a.e(f"ds_read_b64 {vr(KP+2*ct,2)}, v3 offset:{1536+128*ct}")
    a.e("v_bfe_u32 v10, v0, 1, 3")
    a.e("v_xor_b32 v10, v10, v9")
    a.e("v_lshlrev_b32 v10, 4, v10")
    a.e("v_lshl_add_u32 v10, v8, 7, v10")
    a.e(f"s_lshl_b32 s{sT0}, s3, 13")
    a.e(f"v_add_u32 v2, s{sT0}, v10")
    a.e("v_xor_b32 v3, 64, v2")
    a.e(f"v_add_u32 v4, {2*M.slot}, v2")
    a.e(f"v_add_u32 v5, {2*M.slot}, v3")
    a.e(f"v_add_u32 v6, {M.woff}, v10")
    a.e("v_xor_b32 v7, 64, v6")
    a.e(f"v_add_u32 v12, {2*M.slot}, v6")
    a.e(f"v_add_u32 v13, {2*M.slot}, v7")
    a.e("s_waitcnt lgkmcnt(0)")
    def xread(ks):
        sl = (ks >> 1) % 3; kk = ks & 1
        reg = (2 if sl < 2 else 4) + kk
        return [f"ds_read_b128 {vr(XB+16*kk+4*tt,4)}, v{reg} offset:{(sl*M.slot if sl < 2 else 0)+tt*2048}" for tt in range(4)]
    def wread(g):
        ks, fr = divmod(g, 8); sl = (ks >> 1) % 3
        reg = (6 if sl < 2 else 12) + (ks & 1)
        return [f"ds_read_b128 {vr(WB+4*(g%8),4)}, v{reg} offset:{(sl*M.slot if sl < 2 else 0)+fr*2048}"]
    def acc(tt, fr): return ACC + 16 * fr + 4 * tt
    def mfma(g, tt):
        ks, fr = divmod(g, 8)
        c = "0" if ks == 0 else vr(acc(tt, fr), 4)
        return f"v_mfma_f32_16x16x32_bf16 {vr(acc(tt,fr),4)}, {vr(XB+16*(ks&1)+4*tt,4)}, {vr(WB+4*(g%8),4)}, {c}"
    p1_loop(a, M, ACC, WB, XB, xread, wread, mfma, flag_hook(a, "s"))
    stamp(a, 2)
    a.e("v_lshlrev_b32 v6, 3, v0")
    a.e(f"v_add_u32 v6, {M.scr}, v6")
    a.lds(f"ds_write_b64 v6, {vr(L16,2)} offset:9728")
    a.lds(f"ds_write_b64 v6, {vr(L256,2)} offset:10240")
    RS, MR, CSR, CSI = 16, 32, 48, 52
    a.e(f"s_lshl_b32 s{sT0}, s3, 8")
    a.e(f"s_add_u32 s{sT0}, s{sT0}, {M.tab_rs}")
    a.e("v_lshlrev_b32 v2, 4, v9")
    a.e(f"v_add_u32 v2, s{sT0}, v2")
    a.e("v_lshlrev_b32 v3, 2, v8")
    a.e(f"v_add_u32 v3, {M.tab_cs}, v3")
    for tt in range(4):
        a.lds(f"ds_read_b128 {vr(RS+4*tt,4)}, v2 offset:{64*tt}", "t")
        a.lds(f"ds_read_b128 {vr(MR+4*tt,4)}, v2 offset:{1024+64*tt}", "t")
    for fr in range(8):
        a.lds(f"ds_read_b32 v{CSR+fr}, v3 offset:{(fr>>2)*512+64*(fr&3)}", "t")
    EL = M.scr; CAR = EL + 8192
    a.e(f"s_lshl_b32 s{sT0}, s3, 11")
    a.e(f"s_add_u32 s{sT0}, s{sT0}, {EL}")
    a.e("v_lshlrev_b32 v4, 3, v8")
    a.e("v_lshl_add_u32 v5, v9, 9, v4")
    a.e(f"v_add_u32 v5, s{sT0}, v5")
    a.e(f"v_add_u32 v4, {CAR}, v4")
    a.wait(lg=["t"])
    R = lambda ct: ACC + 16 * ct
    I = lambda ct: ACC + 64 + 16 * ct
    H = 56
    def scan_step(ct, hr, hi, ur, ui, dr, di, tr, ti):
        lam = KL + 2 * ct
        a.e(f"v_pk_fma_f32 {vr(tr,2)}, {vr(lam,2)}, {vr(hr,2)}, {vr(ur,2)} op_sel:[0,0,0] op_sel_hi:[0,1,1]")
        a.e(f"v_pk_fma_f32 {vr(ti,2)}, {vr(lam,2)}, {vr(hi,2)}, {vr(ui,2)} op_sel:[0,0,0] op_sel_hi:[0,1,1]")
        a.e(f"v_pk_fma_f32 {vr(dr,2)}, {vr(lam,2)}, {vr(hi,2)}, {vr(tr,2)} op_sel:[1,0,0] op_sel_hi:[1,1,1] neg_lo:[1,0,0] neg_hi:[1,0,0]")
        a.e(f"v_pk_fma_f32 {vr(di,2)}, {vr(lam,2)}, {vr(hr,2)}, {vr(ti,2)} op_sel:[1,0,0] op_sel_hi:[1,1,1]")
    def lncorr(fr, j):
        u = ACC + 16 * fr + 2 * j
        cs = CSR + fr
        sel = cs & 1; csp = cs - sel
        a.e(f"v_pk_mul_f32 {vr(u,2)}, {vr(u,2)}, {vr(RS+2*j,2)}")
        a.e(f"v_pk_fma_f32 {vr(u,2)}, {vr(MR+2*j,2)}, {vr(csp,2)}, {vr(u,2)} op_sel:[0,{sel},0] op_sel_hi:[1,{sel},1] neg_lo:[1,0,0] neg_hi:[1,0,0]")
    E0 = 244
    for cp in range(2):
        cts = (2 * cp, 2 * cp + 1)
        cur = {}
        for j in range(8):
            for ct in cts:
                lncorr(ct, j); lncorr(4 + ct, j)
            if j == 0: continue
            for i, ct in enumerate(cts):
                b = H + 12 * i
                hr, hi = (R(ct), I(ct)) if j == 1 else cur[ct]
                dr, di = b + 4 * (j & 1), b + 4 * (j & 1) + 2
                scan_step(ct, hr, hi, R(ct) + 2 * j, I(ct) + 2 * j, dr, di, b + 8, b + 10)
                cur[ct] = (dr, di)
        for i, ct in enumerate(cts):
            hr, hi = cur[ct]; b = H + 12 * i
            a.e(f"v_mov_b32 v{E0+2*ct}, v{hr}")
            a.e(f"v_mov_b32 v{E0+2*ct+1}, v{hi}")
            a.e(f"v_mov_b32 v{b}, v{hr+1}")
            a.e(f"v_mov_b32 v{b+1}, v{hi+1}")
            cfma(a, b + 2, K8 + 2 * ct, E0 + 2 * ct, b, b + 8)
            a.lds(f"ds_write_b64 v5, {vr(b+2,2)} offset:{128*ct}")
    a.wait(lg_all=True)
    a.bar()
    stamp(a, 3)
    for ct in range(4):
        cf = KC + 2 * ct
        for j in range(8):
            ur, ui = R(ct) + 2 * j, I(ct) + 2 * j
            t = H + 4 * (j & 1)
            a.e(f"v_pk_mul_f32 {vr(t,2)}, {vr(cf,2)}, {vr(ur,2)} op_sel:[0,0] op_sel_hi:[0,1]")
            a.e(f"v_pk_mul_f32 {vr(t+2,2)}, {vr(cf,2)}, {vr(ur,2)} op_sel:[1,0] op_sel_hi:[1,1]")
            a.e(f"v_pk_fma_f32 {vr(ur,2)}, {vr(cf,2)}, {vr(ui,2)}, {vr(t,2)} op_sel:[1,0,0] op_sel_hi:[1,1,1] neg_lo:[1,0,0] neg_hi:[1,0,0]")
            a.e(f"v_pk_fma_f32 {vr(ui,2)}, {vr(cf,2)}, {vr(ui,2)}, {vr(t+2,2)} op_sel:[0,0,0] op_sel_hi:[0,1,1]")
    a.e(f"s_mul_i32 s{sT0}, s3, 18432")
    a.e(f"s_add_u32 s{sT0}, s{sT0}, {M.img}")
    a.e("v_mul_u32_u24 v6, 144, v8")
    a.e("v_lshl_add_u32 v6, v9, 5, v6")
    a.e(f"v_add_u32 v6, s{sT0}, v6")
    a.e("v_bfe_u32 v7, v0, 2, 2")
    a.e("v_lshl_add_u32 v7, v9, 3, v7")
    a.e("v_mul_u32_u24 v7, 144, v7")
    a.e("v_and_b32 v10, 3, v0")
    a.e("v_lshl_add_u32 v7, v10, 3, v7")
    a.e(f"v_add_u32 v7, s{sT0}, v7")
    a.e(f"s_lshl_b32 s{sT0}, s{sM}, 2")
    a.e(f"s_add_u32 s{sT0}, s{sT0}, s3")
    a.e(f"s_mul_i32 s{sT0}, s{sT0}, {HA_SLAB}")
    srd(a, rA, pWS, HA_SLAB, add=f"s{sT0}")
    a.e(f"s_lshl_b32 s{sT1}, s{sG}, 14")
    a.bar()
    stamp(a, 4)
    PS, CW = 16, 24
    for ct in range(4):
        a.lds(f"ds_read_b64 {vr(PS+2*ct,2)}, v5 offset:{128*ct}", ("c", ct))
        a.lds(f"ds_read_b64 {vr(CW+2*ct,2)}, v4 offset:{128*ct}", ("c", ct))
    INI = 32
    for ct in range(4):
        a.wait(lg=[("c", ct)])
        c0, c1 = H, H + 2
        cfma(a, c0, KP + 2 * ct, CW + 2 * ct, PS + 2 * ct, H + 8)
        cfma(a, c1, K8 + 2 * ct, c0, E0 + 2 * ct, H + 8)
        cmul(a, H + 4, KC + 2 * ct, c0, H + 8)
        cmul(a, H + 6, KC + 2 * ct, c1, H + 10)
        b = INI + 4 * ct
        a.e(f"v_mov_b32 v{b}, v{H+4}")
        a.e(f"v_mov_b32 v{b+1}, v{H+6}")
        a.e(f"v_mov_b32 v{b+2}, v{H+5}")
        a.e(f"v_mov_b32 v{b+3}, v{H+7}")
    PK = 56
    def scan2(cp):
        for j in range(8):
            for ct in (2 * cp, 2 * cp + 1):
                b = INI + 4 * ct
                hr, hi = (b, b + 2) if j == 0 else (R(ct) + 2 * (j - 1), I(ct) + 2 * (j - 1))
                ur, ui = R(ct) + 2 * j, I(ct) + 2 * j
                scan_step(ct, hr, hi, ur, ui, ur, ui, ur, ui)
    def pack(cp):
        k = 0
        for ct in (2 * cp, 2 * cp + 1):
            for comp in range(2):
                base = ACC + 64 * comp + 16 * ct
                neg = "-" if comp else ""
                for sg in range(2):
                    q = PK + 4 * (k % 6); k += 1
                    for tt in range(4):
                        a.e(f"v_cvt_pk_bf16_f32 v{q+tt}, {neg}v{base+4*tt+sg}, {neg}v{base+4*tt+2+sg}")
                    a.lds(f"ds_write_b128 v6, {vr(q,4)} offset:{(64*comp+16*ct)*144+16*sg}", ("w", cp, k))
                    if k >= 5: a.wait(lg=[("w", cp, k - 4)])
    def tread(cp):
        O = ACC + 32 * cp
        for kk, ksl in enumerate((cp, 2 + cp)):
            for mi in range(4):
                o = O + 16 * kk + 4 * mi
                for sub in range(2):
                    a.lds(f"ds_read_b64_tr_b16 {vr(o+2*sub,2)}, v7 offset:{(32*ksl+4*sub)*144+32*mi}", ("o", cp, kk, mi))
    def tstore(cp):
        O = ACC + 32 * cp
        for kk, ksl in enumerate((cp, 2 + cp)):
            a.e(f"s_add_u32 s{sT2}, s{sT1}, {4096*ksl}")
            for mi in range(4):
                o = O + 16 * kk + 4 * mi
                a.wait(lg=[("o", cp, kk, mi)])
                a.e(f"buffer_store_dwordx4 {vr(o,4)}, v1, {sq(rA)}, s{sT2} offen offset:{1024*mi} sc1")
    scan2(0); pack(0); scan2(1)
    a.wait(lg_all=True)
    tread(0); pack(1); tstore(0)
    a.wait(lg_all=True)
    tread(1); tstore(1)
    stamp(a, 5)

def compute_p2(a):
    a.lab("L_p2")
    a.reset()
    srd(a, rX, pX, L * D * 2)
    srd(a, rB, pWS, 65536, add=hex(ST1_OFF))
    srd(a, rC, pDSK, D * 2)
    srd(a, rD, pOUT, L * D * 4)
    a.e("v_and_b32 v8, 15, v0")
    a.e("v_lshrrev_b32 v9, 4, v0")
    a.e(f"s_lshl_b32 s{sT0}, s{sMT}, 6")
    a.e(f"s_lshl_b32 s{sT1}, s3, 4")
    a.e(f"s_add_u32 s{sT0}, s{sT0}, s{sT1}")
    a.e(f"s_mul_i32 s{sT1}, s{sT0}, 1280")
    a.e(f"s_mul_i32 s{sT2}, s{sNG}, 160")
    a.e(f"s_add_u32 s{sT1}, s{sT1}, s{sT2}")
    a.e(f"s_lshl_b32 s{sLB}, s{sT1}, 1")
    a.e(f"s_lshl_b32 s{sT0}, s{sT0}, 5")
    a.e("v_mul_u32_u24 v2, 1280, v8")
    a.e("v_lshl_add_u32 v2, v9, 3, v2")
    a.e("v_lshlrev_b32 v14, 1, v2")
    a.e("v_lshlrev_b32 v3, 3, v9")
    a.e("v_lshlrev_b32 v4, 5, v8")
    a.e("s_waitcnt vmcnt(0)")
    a.bar()
    stamp(a, 8)
    XR, DR, STt = 16, 26, 36
    for nt in range(5):
        a.e(f"buffer_load_dwordx2 {vr(XR+2*nt,2)}, v2, {sq(rX)}, s{sT1} offen offset:{32*nt}")
        a.e(f"buffer_load_dwordx2 {vr(DR+2*nt,2)}, v3, {sq(rC)}, s{sT2} offen offset:{32*nt}")
    a.e(f"buffer_load_dwordx2 {vr(STt,2)}, v4, {sq(rB)}, s{sT0} offen sc1")
    a.e(f"s_mul_i32 s{sT0}, s{sMT}, {HA_SLAB}")
    srd(a, rA, pWS, HA_SLAB, add=f"s{sT0}")
    a.e(f"s_lshl_b32 s{sT3}, s3, 10")
    a.e(f"v_add_u32 v10, s{sT3}, v1")
    a.e("v_lshlrev_b32 v11, 3, v0")
    a.e(f"v_add_u32 v11, s{sT3}, v11")
    a.e("v_bfe_u32 v2, v0, 1, 3")
    a.e("v_xor_b32 v2, v2, v9")
    a.e("v_lshlrev_b32 v2, 4, v2")
    a.e("v_lshl_add_u32 v2, v8, 7, v2")
    a.e("v_xor_b32 v3, 64, v2")
    a.e(f"v_add_u32 v4, {2*P2_SLOT}, v2")
    a.e(f"v_add_u32 v5, {2*P2_SLOT}, v3")
    a.e("v_add_u32 v6, 20480, v1")
    a.e(f"v_add_u32 v7, {P2_SLOT+20480}, v1")
    a.e(f"v_add_u32 v12, {2*P2_SLOT+20480}, v1")
    XF, AY, AO, WR = 40, 60, 80, 100
    XB = 140
    NXB = 3
    a.e("s_waitcnt vmcnt(0)")
    a.e(f"s_mov_b32 s{sT2}, 0xffff0000")
    a.e(f"v_rcp_f32 v{STt+1}, v{STt+1}")
    for i in range(10):
        a.e(f"v_lshlrev_b32 v{XF+2*i}, 16, v{XR+i}")
        a.e(f"v_and_b32 v{XF+2*i+1}, s{sT2}, v{XR+i}")
        t = AY + 2 * i
        a.e(f"v_pk_add_f32 {vr(t,2)}, {vr(XF+2*i,2)}, {vr(STt,2)} op_sel_hi:[1,0] neg_lo:[0,1] neg_hi:[0,1]")
        a.e(f"v_cvt_pk_bf16_f32 v{t+1}, v{t}, v{t+1}")
        a.e(f"v_lshlrev_b32 v{t}, 16, v{t+1}")
        a.e(f"v_and_b32 v{t+1}, s{sT2}, v{t+1}")
        a.e(f"v_pk_mul_f32 {vr(t,2)}, {vr(t,2)}, {vr(STt,2)} op_sel:[0,1] op_sel_hi:[1,1]")
        a.e(f"v_cvt_pk_bf16_f32 v{t+1}, v{t}, v{t+1}")
        a.e(f"v_lshlrev_b32 v{t}, 16, v{t+1}")
        a.e(f"v_and_b32 v{t+1}, s{sT2}, v{t+1}")
        a.e(f"v_lshlrev_b32 v38, 16, v{DR+i}")
        a.e(f"v_and_b32 v39, s{sT2}, v{DR+i}")
        a.e(f"v_pk_mul_f32 {vr(t,2)}, {vr(t,2)}, v[38:39]")
        a.e(f"v_cvt_pk_bf16_f32 v{t+1}, v{t}, v{t+1}")
        a.e(f"v_lshlrev_b32 v{t}, 16, v{t+1}")
        a.e(f"v_and_b32 v{t+1}, s{sT2}, v{t+1}")
    a.bar()
    stamp(a, 9)
    def steps(s):
        out = []
        if s < 10: out += [("y", k) for k in range(4)]
        out += [("o", k) for k in range(5) if not (s == 10 and k == 2)]
        return out
    def xreg(s, kind, k): return XB + 36 * (s % NXB) + (4 * k if kind == "y" else 16 + 4 * k)
    def xload(s, kind, k):
        r = xreg(s, kind, k)
        slot = 4 * s + k if kind == "y" else 40 + 5 * s + k
        a.e(f"s_mov_b32 s{sT0}, {slot*4096}")
        if kind == "o" and k == 4:
            a.vmem(f"buffer_load_dwordx2 {vr(r,2)}, v11, {sq(rA)}, s{sT0} offen sc1", ("X", s, kind, k))
            a.vmem(f"buffer_load_dwordx2 {vr(r+2,2)}, v11, {sq(rA)}, s{sT0} offen offset:512 sc1", ("X", s, kind, k))
        else:
            a.vmem(f"buffer_load_dwordx4 {vr(r,4)}, v10, {sq(rA)}, s{sT0} offen sc1", ("X", s, kind, k))
    for s in range(NXB):
        for kind, k in steps(s): xload(s, kind, k)
    n = 0
    for s in range(11):
        sl = s % 3
        seq = [(kind, k, nt) for kind, k in steps(s) for nt in range(5)]
        def wr(i):
            kind, k, nt = seq[i]
            d = vr(WR + 4 * ((n + i) % 10), 4)
            if kind == "y":
                reg = (2 if sl < 2 else 4) + (k & 1)
                off = (sl * P2_SLOT if sl < 2 else 0) + (k >> 1) * 10240 + nt * 2048
            else:
                reg = (6, 7, 12)[sl]; off = k * 5120 + nt * 1024
            a.lds(f"ds_read_b128 {d}, v{reg} offset:{off}", ("W", s, i))
        a.bar()
        for i in range(min(9, len(seq))): wr(i)
        for i, (kind, k, nt) in enumerate(seq):
            a.wait(vm=[("X", s, kind, k)], lg=[("W", s, i)])
            acc = vr((AY if kind == "y" else AO) + 4 * nt, 4)
            c = "0" if (kind == "o" and s == 0 and k == 0) else acc
            a.e(f"v_mfma_f32_16x16x32_bf16 {acc}, {vr(WR+4*((n+i)%10),4)}, {vr(xreg(s,kind,k),4)}, {c}")
            if i + 9 < len(seq): wr(i + 9)
            if nt == 4 and s + NXB < 11 and (kind, k) in steps(s + NXB): xload(s + NXB, kind, k)
        n += len(seq)
    stamp(a, 10)
    a.e(f"s_mov_b32 s{sT0}, {hex(f2u(-1.4426950408889634))}")
    a.e("s_nop 7")
    T = 100
    for i in range(10):
        a.e(f"v_pk_mul_f32 {vr(T+2*i,2)}, {vr(AO+2*i,2)}, s[{sT0}:{sT1}] op_sel_hi:[1,0]")
    for i in range(20):
        a.e(f"v_exp_f32 v{T+i}, v{T+i}")
    for i in range(10):
        a.e(f"v_pk_mul_f32 {vr(AY+2*i,2)}, {vr(AY+2*i,2)}, {vr(AO+2*i,2)}")
    for i in range(10):
        a.e(f"v_pk_add_f32 {vr(T+2*i,2)}, {vr(T+2*i,2)}, 1.0 op_sel_hi:[1,0]")
    for nt in range(5):
        for r in range(4):
            a.e(f"v_rcp_f32 v{T+4*nt+r}, v{T+4*nt+r}")
        a.e("s_nop 0")
        for h in range(2):
            i = 2 * nt + h
            a.e(f"v_pk_fma_f32 {vr(AY+2*i,2)}, {vr(AY+2*i,2)}, {vr(T+2*i,2)}, {vr(XF+2*i,2)}")
        a.e(f"buffer_store_dwordx4 {vr(AY+4*nt,4)}, v14, {sq(rD)}, s{sLB} offen offset:{64*nt}")
    stamp(a, 11)
    stamp_flush(a)
    a.e("s_endpgm")

def helper(a, M):
    ffn = M is FFN
    nm = M.name
    XV, WV = 16, 24
    srd(a, rX, pX, L * D * 2)
    a.e("v_lshrrev_b32 v2, 3, v0")
    a.e("v_and_b32 v3, 7, v0")
    a.e("v_lshrrev_b32 v4, 4, v0")
    a.e("v_xor_b32 v3, v3, v4")
    a.e("v_lshlrev_b32 v3, 4, v3")
    a.e("v_xor_b32 v4, 64, v3")
    if ffn:
        a.e("v_mov_b32 v5, v2")
    else:
        a.e("v_lshrrev_b32 v5, 2, v2")
        a.e("v_lshlrev_b32 v5, 4, v5")
        a.e("v_and_b32 v6, 1, v2")
        a.e("v_lshl_add_u32 v5, v6, 3, v5")
        a.e("v_bfe_u32 v6, v2, 1, 1")
        a.e("v_add_u32 v5, v5, v6")
    a.e(f"s_lshl_b32 s{sT0}, s{sM}, 8")
    a.e(f"s_lshl_b32 s{sT1}, s{sHW}, 6")
    a.e(f"s_add_u32 s{sT0}, s{sT0}, s{sT1}")
    a.e(f"v_add_u32 v5, s{sT0}, v5")
    a.e("v_mul_u32_u24 v5, 1280, v5")
    a.e("v_add_u32 v6, v5, v3")
    a.e("v_add_u32 v7, v5, v4")
    for i in range(8):
        rows = 8 * i if ffn else 32 * (i & 1) + 2 * (i >> 1)
        a.e(f"v_add_u32 v{XV+i}, {rows*1280}, v{6+(i&1)}")
    a.e(f"s_cmp_ge_u32 s{sHW}, 2")
    if ffn:
        a.e(f"s_cselect_b32 s{rW}, s{pW3}, s{pW1}")
        a.e(f"s_cselect_b32 s{rW+1}, s{pW3+1}, s{pW1+1}")
        a.e(f"s_mov_b32 s{rW+2}, {D*F*2}")
        a.e(f"s_mov_b32 s{rW+3}, 0x00020000")
        a.e(f"s_sub_u32 s{sG}, s{sGI}, 10")
        a.e(f"s_mul_i32 s{sT0}, s{sG}, 160")
        a.e(f"s_min_u32 s{sT0}, s{sT0}, 3296")
        a.e(f"s_and_b32 s{sT1}, s{sHW}, 1")
        a.e(f"s_mul_i32 s{sT1}, s{sT1}, {32*3456}")
        a.e(f"s_add_u32 s{sT0}, s{sT0}, s{sT1}")
        for n in range(5):
            a.e(f"v_add_u32 v8, {64*n}, v0")
            a.e("v_mul_u32_u24 v9, 6554, v8")
            a.e("v_lshrrev_b32 v9, 16, v9")
            a.e("v_mul_u32_u24 v10, 10, v9")
            a.e("v_sub_u32 v10, v8, v10")
            a.e("v_mul_u32_u24 v9, 3456, v9")
            a.e("v_lshl_add_u32 v9, v10, 4, v9")
            a.e(f"v_add_u32 v{WV+n}, s{sT0}, v9")
        a.e(f"s_mul_i32 s{sLB}, s{sHW}, 5120")
        NW = 5; WSTEP = 64 * 3456
    else:
        a.e(f"s_cselect_b32 s{rW}, s{pBIM}, s{pBRE}")
        a.e(f"s_cselect_b32 s{rW+1}, s{pBIM+1}, s{pBRE+1}")
        a.e(f"s_mov_b32 s{rW+2}, {P*D*2}")
        a.e(f"s_mov_b32 s{rW+3}, 0x00020000")
        a.e(f"s_mov_b32 s{sG}, s{sGI}")
        a.e(f"s_lshl_b32 s{sT0}, s{sG}, 6")
        a.e(f"s_and_b32 s{sT1}, s{sHW}, 1")
        a.e(f"s_lshl_b32 s{sT1}, s{sT1}, 5")
        a.e(f"s_add_u32 s{sT0}, s{sT0}, s{sT1}")
        a.e(f"v_add_u32 v5, s{sT0}, v2")
        a.e("v_mul_u32_u24 v5, 1280, v5")
        a.e("v_add_u32 v6, v5, v3")
        a.e("v_add_u32 v7, v5, v4")
        for n in range(4):
            a.e(f"v_add_u32 v{WV+n}, {8*n*1280}, v{6+(n&1)}")
        a.e(f"s_lshl_b32 s{sLB}, s{sHW}, 12")
        NW = 4; WSTEP = 128
    a.e(f"s_lshl_b32 s77, s{sHW}, 13")
    def issue_w(ls, i, so=None, tag=None):
        base = (ls % 3) * M.slot
        a.e(f"s_add_u32 m0, s{sLB}, {base+M.woff+1024*i}")
        if so is None:
            a.e(f"s_mov_b32 s{sWO}, {WSTEP*ls}"); so = sWO
        else:
            a.e("s_nop 0")
        a.vmem(f"buffer_load_dwordx4 v{WV+i}, {sq(rW)}, s{so} offen lds", tag or ("S", ls))
    def issue_x(ls, i):
        base = (ls % 3) * M.slot
        a.e(f"s_add_u32 m0, s77, {base+1024*i}")
        a.e(f"s_movk_i32 s{sXO}, {128*ls}")
        a.vmem(f"buffer_load_dwordx4 v{XV+i}, {sq(rX)}, s{sXO} offen lds", ("S", ls))
    def issue_stage(ls, w=True, x=True):
        for i in range(8):
            if i < NW and w: issue_w(ls, i)
            if x: issue_x(ls, i)
    stamp(a, 4)
    a.e(f"s_add_u32 s{sT0}, s{sM}, 2")
    a.e(f"s_mul_i32 s{sT0}, s{sT0}, {WSTEP}")
    if not OPT.get("slab_late"):
        for i in range(NW): issue_w(2, i, so=sT0, tag=("S", 0))
    issue_stage(0)
    if OPT.get("slab_late"):
        for i in range(NW): issue_w(2, i, so=sT0, tag=("S", 0))
    stamp(a, 5)
    srd(a, rA, pWS, 32768, add=hex(DONE_OFF))
    a.e(f"s_lshl_b32 s78, s{sM}, 12")
    a.e(f"s_lshl_b32 s{sT0}, s{sGI}, 7")
    a.e(f"s_add_u32 s78, s78, s{sT0}")
    if not ffn:
        a.e(f"s_lshl_b32 s{sT0}, s{sG}, 13")
        a.e(f"s_add_u32 s{sT0}, s{sT0}, {hex(AGG_OFF)}")
        srd(a, rB, pWS, 8192, add=f"s{sT0}")
        a.e(f"s_lshl_b32 s79, s{sM}, 10")
    a.e("s_waitcnt lgkmcnt(0)")
    a.e(f"s_add_u32 s{sTAG}, s{sTAG}, 0x9E3779B1")
    issue_stage(1)
    stamp(a, 6)
    NT = M.nfr // 2
    CF, CA, ONE = 40, 64, 36
    for i in range(4): a.e(f"v_mov_b32 v{ONE+i}, 0x3f803f80")
    a.e(f"s_lshr_b32 s{sT0}, s{sHW}, 1")
    a.e(f"s_and_b32 s{sT1}, s{sHW}, 1")
    a.e("v_lshrrev_b32 v9, 4, v0")
    if ffn:
        a.e("v_bfe_u32 v8, v0, 2, 2")
        a.e("v_lshl_add_u32 v8, v9, 2, v8")
        a.e("v_mul_u32_u24 v8, 160, v8")
        a.e("v_and_b32 v10, 3, v0")
        a.e("v_lshl_add_u32 v8, v10, 3, v8")
        a.e(f"s_mul_i32 s{sT0}, s{sT0}, 5120")
        a.e(f"s_mul_i32 s{sT1}, s{sT1}, 10240")
    else:
        a.e("v_and_b32 v10, 15, v0")
        a.e("v_lshlrev_b32 v8, 7, v10")
        a.e("v_bfe_u32 v10, v0, 1, 3")
        a.e("v_xor_b32 v10, v10, v9")
        a.e("v_lshl_add_u32 v8, v10, 4, v8")
        a.e(f"s_lshl_b32 s{sT0}, s{sT0}, 6")
        a.e(f"v_xor_b32 v8, s{sT0}, v8")
        a.e(f"s_mov_b32 s{sT0}, 0")
        a.e(f"s_lshl_b32 s{sT1}, s{sT1}, 13")
    a.e(f"s_add_u32 s{sT0}, s{sT0}, s{sT1}")
    a.e(f"s_add_u32 s{sT0}, s{sT0}, {M.woff}")
    a.e(f"v_add_u32 v8, s{sT0}, v8")
    a.e(f"v_add_u32 v11, {2*M.slot}, v8")
    def colsum(st):
        reg, off = (8, st * M.slot) if st < 2 else (11, 0)
        for t in range(NT):
            if ffn:
                a.lds(f"ds_read_b64_tr_b16 {vr(CF+4*t,2)}, v{reg} offset:{off+32*t}", ("c", t))
                a.lds(f"ds_read_b64_tr_b16 {vr(CF+4*t+2,2)}, v{reg} offset:{off+32*t+2560}", ("c", t))
            else:
                a.lds(f"ds_read_b128 {vr(CF+4*t,4)}, v{reg} offset:{off+2048*t}", ("c", t))
        for t in range(NT):
            a.wait(lg=[("c", t)])
            c = "0" if st == 2 else vr(CA + 4 * t, 4)
            a.e(f"v_mfma_f32_16x16x32_bf16 {vr(CA+4*t,4)}, {vr(ONE,4)}, {vr(CF+4*t,4)}, {c}")
    srd(a, rC, pWS, 32 * 16384, add=hex(CS_OFF))
    srd(a, rD, pWS, 32768, add=hex(FLAG_OFF))
    a.e(f"s_lshl_b32 s{sT2}, s{sGI}, 14")
    a.e(f"s_lshl_b32 s{sT1}, s{sM}, 11")
    a.e(f"s_add_u32 s{sT2}, s{sT2}, s{sT1}")
    a.e(f"s_lshr_b32 s{sT1}, s{sHW}, 1")
    a.e(f"s_lshl_b32 s{sT1}, s{sT1}, 10")
    a.e(f"s_add_u32 s{sT2}, s{sT2}, s{sT1}")
    a.e(f"s_and_b32 s{sT1}, s{sHW}, 1")
    a.e(f"s_lshl_b32 s{sT1}, s{sT1}, 9")
    a.e(f"s_add_u32 s{sT2}, s{sT2}, s{sT1}")
    a.e("v_lshlrev_b32 v9, 2, v0")
    a.e("v_lshlrev_b32 v12, 7, v0")
    a.e(f"s_lshl_b32 s88, s{sHW}, 13")
    a.wait(vm=[("S", 0)])
    stamp(a, 12)
    a.bar()
    stamp(a, 1)
    issue_stage(2, w=False)
    colsum(2)
    a.e(f"s_cmp_lg_u32 s{sM}, 0")
    a.e(f"s_cbranch_scc1 L_h{nm}_cs0")
    colsum(0)
    a.lab(f"L_h{nm}_cs0")
    a.wait(vm=[("S", 1)])
    stamp(a, 13)
    a.bar()
    stamp(a, 22)
    issue_stage(2, x=False)
    a.e(f"s_cmp_lg_u32 s{sM}, 0")
    a.e(f"s_cbranch_scc1 L_h{nm}_cs1")
    colsum(1)
    a.e("s_nop 7")
    a.lab(f"L_h{nm}_cs1")
    for t in range(1, 4):
        m = 0xffff << (16 * t)
        a.e(f"s_mov_b32 exec_lo, {hex(m & 0xffffffff)}")
        a.e(f"s_mov_b32 exec_hi, {hex(m >> 32)}")
        a.e(f"v_mov_b32 v{CA}, v{CA+4*t}")
    a.e("s_mov_b64 exec, -1")
    a.vmem(f"buffer_store_dword v{CA}, v9, {sq(rC)}, s{sT2} offen sc1", "cs")
    if ffn:
        a.e("s_mov_b32 exec_hi, 0")
        a.vmem(f"buffer_store_dword v{CA+16}, v9, {sq(rC)}, s{sT2} offen offset:256 sc1", "cs")
        a.e("s_mov_b64 exec, -1")
    issue_stage(3)
    a.wait(vm=[("S", 2), "cs"])
    stamp(a, 14)
    a.bar()
    stamp(a, 23)
    issue_stage(4)
    a.wait(vm=[("S", 3)])
    stamp(a, 15)
    a.bar()
    stamp(a, 24)
    for b in range(3, 8):
        issue_stage(b + 2)
        if b == 6:
            a.vmem(f"buffer_load_dword v32, v12, {sq(rD)}, s88 offen sc1", "fl")
        if b == 7:
            a.wait(vm=["fl"])
            a.e(f"s_mov_b32 s{sT0}, 0")
            a.lab(f"L_h{nm}_fl")
            a.e(f"v_cmp_ne_u32 vcc, s{sTAG}, v32")
            a.e(f"s_cbranch_vccz L_h{nm}_flok")
            a.e("s_sleep 2")
            a.e(f"buffer_load_dword v32, v12, {sq(rD)}, s88 offen sc1")
            a.e("s_waitcnt vmcnt(0)")
            a.e(f"s_add_u32 s{sT0}, s{sT0}, 1")
            a.e(f"s_cmp_lt_u32 s{sT0}, 0x40000")
            a.e(f"s_cbranch_scc1 L_h{nm}_fl")
            a.lab(f"L_h{nm}_flok")
        a.wait(vm=[("S", b + 1)])
        stamp(a, 13 + b)
        a.bar()
        stamp(a, 22 + b)
    stamp(a, 2)
    srd(a, rD, pWS, 65536, add=hex(ST1_OFF))
    if ffn:
        a.e("v_lshlrev_b32 v10, 5, v0")
    else:
        a.e("v_bfe_u32 v10, v0, 2, 2")
        a.e("v_lshlrev_b32 v10, 4, v10")
        a.e("v_and_b32 v11, 1, v0")
        a.e("v_lshl_add_u32 v10, v11, 3, v10")
        a.e("v_lshrrev_b32 v11, 4, v0")
        a.e("v_lshl_add_u32 v10, v11, 1, v10")
        a.e("v_bfe_u32 v11, v0, 1, 1")
        a.e("v_add_u32 v10, v10, v11")
        a.e("v_lshlrev_b32 v10, 5, v10")
    a.e(f"s_lshl_b32 s{sT0}, s{sM}, 13")
    a.e(f"s_lshl_b32 s{sT1}, s{sHW}, 11")
    a.e(f"s_add_u32 s{sT0}, s{sT0}, s{sT1}")
    a.vmem(f"buffer_load_dwordx2 v[32:33], v10, {sq(rD)}, s{sT0} offen sc1", "st")
    a.e(f"s_lshl_b32 s{sT0}, s{sGI}, 14")
    a.e(f"s_lshl_b32 s{sT1}, s{sHW}, 8")
    a.e(f"s_add_u32 s{sT0}, s{sT0}, s{sT1}")
    for p in range(16):
        if p and p % 4 == 0: a.e(f"s_add_u32 s{sT0}, s{sT0}, 4096")
        a.vmem(f"buffer_load_dword v{40+p}, v9, {sq(rC)}, s{sT0} offen offset:{1024*(p&3)} sc1", "cp")
    p2_helper_setup(a)
    p2_touch(a)
    a.e(f"s_or_b32 s{sT4}, s2, s{sHW}")
    a.e(f"s_cmp_lg_u32 s{sT4}, 0")
    a.e(f"s_cbranch_scc1 L_h{nm}_nonce")
    srd(a, rD, pWS, 128, add=hex(NONCE_OFF))
    a.e(f"v_mov_b32 v37, s{sTAG}")
    a.e(f"buffer_store_dword v37, v9, {sq(rD)}, 0 offen sc1")
    a.lab(f"L_h{nm}_nonce")
    a.wait(vm=[("S", 9)])
    stamp(a, 21)
    a.bar()
    stamp(a, 30)
    a.wait(vm=["st"])
    if ffn:
        a.e(f"s_lshl_b32 s{sT0}, s{sHW}, 9")
        a.e(f"s_add_u32 s{sT0}, s{sT0}, {M.tab_st}")
        a.e("v_lshlrev_b32 v10, 3, v0")
        a.e(f"v_add_u32 v10, s{sT0}, v10")
        a.e("ds_write_b64 v10, v[32:33]")
    else:
        a.e("v_rcp_f32 v33, v33")
        a.e(f"s_add_u32 s{sT0}, s{sT1}, {M.tab_rs}")
        a.e(f"v_add_u32 v10, s{sT0}, v9")
        a.e("v_mul_f32 v32, v32, v33")
        a.e("ds_write_b32 v10, v33")
        a.e("ds_write_b32 v10, v32 offset:1024")
    a.wait(vm=["cp"])
    for p in range(1, 16):
        a.e(f"v_add_f32 v40, v40, v{40+p}")
    a.e(f"s_add_u32 s{sT0}, s{sT1}, {M.tab_cs}")
    a.e(f"v_add_u32 v10, s{sT0}, v9")
    a.e("ds_write_b32 v10, v40")
    a.e("s_waitcnt lgkmcnt(0)")
    stamp(a, 31)
    a.bar()
    stamp(a, 3)
    p2_issue(a, 0)
    if ffn:
        p2_issue(a, 1); p2_issue(a, 2)
    else:
        ssm_exchange(a)
    a.bar()
    a.e(f"s_cmp_lg_u32 s{sHW}, 1")
    a.e(f"s_cbranch_scc1 L_h{nm}_nodone")
    a.e(f"v_mov_b32 v32, s{sTAG}")
    a.e("s_mov_b32 exec_hi, 0")
    a.e(f"buffer_store_dword v32, v9, {sq(rA)}, s78 offen sc1")
    a.e("s_mov_b64 exec, -1")
    a.lab(f"L_h{nm}_nodone")
    if not ffn:
        p2_issue(a, 1); p2_issue(a, 2)
    a.e("s_branch L_h_p2")

def ssm_exchange(a):
    M = SSM
    EL = M.scr
    a.bar()
    a.e(f"s_cmp_lg_u32 s{sHW}, 0")
    a.e("s_cbranch_scc1 L_x_skip")
    X = 64; L16 = 60; L256 = 62
    a.e("v_lshlrev_b32 v3, 3, v0")
    a.e(f"v_add_u32 v3, {EL}, v3")
    sv = list(a.lg); a.lg = []
    a.lds(f"ds_read_b64 {vr(L16,2)}, v3 offset:9728", "k")
    a.lds(f"ds_read_b64 {vr(L256,2)}, v3 offset:10240", "k")
    for s in range(16):
        a.lds(f"ds_read_b64 {vr(X+2*s,2)}, v3 offset:{512*s}", ("E", s))
    a.e(f"s_mov_b32 s{sT0}, s{sTAG}")
    for s in range(1, 16):
        a.wait(lg=[("E", s)])
        cfma(a, X + 2 * s, L16, X + 2 * (s - 1), X + 2 * s, 58)
    a.e(f"v_mov_b32 v96, v{X+30}")
    a.e(f"v_mov_b32 v97, s{sT0}")
    a.e(f"v_mov_b32 v98, v{X+31}")
    a.e(f"v_mov_b32 v99, s{sT0}")
    a.e(f"buffer_store_dwordx4 v[96:99], v1, {sq(rB)}, s79 offen sc1")
    a.e("v_mov_b32 v58, 0")
    a.e("v_mov_b32 v59, 0")
    a.e("ds_write_b64 v3, v[58:59]")
    for s in range(1, 16):
        a.e(f"ds_write_b64 v3, {vr(X+2*(s-1),2)} offset:{512*s}")
    for i in range(1, 8):
        a.e(f"s_sub_u32 s{sT1}, s79, {1024*i}")
        a.e(f"s_cmp_ge_u32 s{sM}, {i}")
        a.e(f"s_cselect_b32 s{79+i}, s{sT0}, 0")
        a.e(f"s_cselect_b32 s{3+i}, s{sT1}, 0x10000")
    G = 100
    a.e(f"s_mov_b32 s{sT1}, 0")
    a.lab("L_x_poll")
    for i in range(1, 8):
        a.e(f"buffer_load_dwordx4 {vr(G+4*(i-1),4)}, v1, {sq(rB)}, s{3+i} offen sc1")
    a.e("s_waitcnt vmcnt(0)")
    a.e("v_mov_b32 v58, 0")
    for i in range(1, 8):
        a.e(f"v_xor_b32 v59, s{79+i}, v{G+4*(i-1)+1}")
        a.e(f"v_xor_b32 v57, s{79+i}, v{G+4*(i-1)+3}")
        a.e("v_or3_b32 v58, v58, v59, v57")
    a.e("v_cmp_ne_u32 vcc, 0, v58")
    a.e("s_cbranch_vccz L_x_ok")
    a.e("s_sleep 1")
    a.e(f"s_add_u32 s{sT1}, s{sT1}, 1")
    a.e(f"s_cmp_lt_u32 s{sT1}, 0x40000")
    a.e("s_cbranch_scc1 L_x_poll")
    a.lab("L_x_ok")
    for i in range(1, 8):
        a.e(f"v_mov_b32 v{G+4*(i-1)+1}, v{G+4*(i-1)+2}")
    for i in range(6, 0, -1):
        cfma(a, G + 4 * (i - 1), L256, G + 4 * i, G + 4 * (i - 1), 58)
    a.e(f"ds_write_b64 v3, {vr(G,2)} offset:8192")
    a.e("s_waitcnt lgkmcnt(0)")
    a.lab("L_x_skip")
    a.lg = []
    a.bar()

def p2_helper_setup(a):
    a.e(f"s_cmp_ge_u32 s{sHW}, 2")
    a.e(f"s_cselect_b32 s{rX}, s{pCIM}, s{pCRE}")
    a.e(f"s_cselect_b32 s{rX+1}, s{pCIM+1}, s{pCRE+1}")
    a.e(f"s_mov_b32 s{rX+2}, {D*P*2}")
    a.e(f"s_mov_b32 s{rX+3}, 0x00020000")
    a.e(f"s_mul_i32 s{sT4}, s{sNG}, {WB_SLAB}")
    a.e(f"s_add_u32 s{sT4}, s{sT4}, {hex(WB_OFF)}")
    srd(a, rW, pWS, WB_SLAB, add=f"s{sT4}")
    a.e(f"s_and_b32 s{sT4}, s{sHW}, 1")
    a.e(f"s_mul_i32 s{sT5}, s{sT4}, 40")
    a.e(f"s_mul_i32 s{sXO}, s{sNG}, 80")
    a.e(f"s_add_u32 s{sT5}, s{sT5}, s{sXO}")
    a.e(f"v_add_u32 v5, s{sT5}, v2")
    a.e("v_mul_u32_u24 v5, 1280, v5")
    a.e(f"s_lshl_b32 s{sT4}, s{sT4}, 6")
    a.e(f"v_xor_b32 v6, s{sT4}, v3")
    a.e("v_xor_b32 v7, 64, v6")
    a.e("v_add_u32 v6, v5, v6")
    a.e("v_add_u32 v7, v5, v7")
    for i in range(5):
        a.e(f"v_add_u32 v{16+i}, {8*i*1280}, v{6+(i&1)}")
    a.e(f"s_mul_i32 s{sLB}, s{sHW}, 5120")
    a.e(f"s_lshl_b32 s77, s{sHW}, 10")
    a.e(f"s_lshl_b32 s67, s{sHW}, 8")
    a.e(f"v_add_u32 v21, s77, v1")
    a.e(f"v_add_u32 v22, s67, v1")

def p2_touch(a):
    if OPT.get("notouch"): return
    a.e(f"s_and_b32 s{sT4}, s{sMT}, 7")
    a.e(f"s_mul_i32 s{sT5}, s{sT4}, 10")
    a.e(f"s_add_u32 s{sT5}, s{sT5}, s{sXO}")
    a.e(f"s_and_b32 s{sWO}, s{sHW}, 1")
    a.e(f"s_mul_i32 s{sWO}, s{sWO}, 5")
    a.e(f"s_add_u32 s{sT5}, s{sT5}, s{sWO}")
    a.e(f"s_mul_i32 s{sT5}, s{sT5}, 1280")
    a.e("v_min_u32 v11, 49, v0")
    a.e("v_lshlrev_b32 v11, 7, v11")
    a.vmem(f"buffer_load_dword v34, v11, {sq(rX)}, s{sT5} offen", "tch")
    a.e(f"s_lshl_b32 s{sT4}, s{sT4}, 2")
    a.e(f"s_add_u32 s{sT4}, s{sT4}, s{sHW}")
    a.e(f"s_mul_i32 s{sT4}, s{sT4}, {69*128}")
    a.e("v_lshlrev_b32 v11, 7, v0")
    a.vmem(f"buffer_load_dword v35, v11, {sq(rW)}, s{sT4} offen sc1", "tch")
    a.e("v_min_u32 v11, 4, v0")
    a.e("v_lshlrev_b32 v11, 7, v11")
    a.e(f"s_add_u32 s{sT4}, s{sT4}, 8192")
    a.vmem(f"buffer_load_dword v36, v11, {sq(rW)}, s{sT4} offen sc1", "tch")

def p2_issue(a, s):
    base = (s % 3) * P2_SLOT
    a.e(f"s_mov_b32 s{sT4}, {128*s}")
    for i in range(7):
        if i < 5 and s < 10:
            a.e(f"s_add_u32 m0, s{sLB}, {base+1024*i}")
            a.e("s_nop 0")
            a.vmem(f"buffer_load_dwordx4 v{16+i}, {sq(rX)}, s{sT4} offen lds", ("Q", s))
        if i < 6:
            a.e(f"s_add_u32 m0, s77, {base+20480+4096*i}")
            a.e(f"s_mov_b32 s{sT5}, {25600*s+4096*i}")
            a.vmem(f"buffer_load_dwordx4 v21, {sq(rW)}, s{sT5} offen sc1 lds", ("Q", s))
        else:
            a.e(f"s_add_u32 m0, s67, {base+20480+24576}")
            a.e(f"s_mov_b32 s{sT5}, {25600*s+24576}")
            a.e("s_mov_b64 exec, 0xffff")
            a.vmem(f"buffer_load_dwordx4 v22, {sq(rW)}, s{sT5} offen sc1 lds", ("Q", s))
            a.e("s_mov_b64 exec, -1")

def helper_p2(a):
    a.lab("L_h_p2")
    a.vm = [("Q", 0)] * 12 + [("Q", 1)] * 12 + [("Q", 2)] * 12
    a.lg = []
    a.e(f"s_cmp_lg_u32 s{sHW}, 0")
    a.e("s_cbranch_scc1 L_h_polled")
    a.e(f"s_lshr_b32 s{sT0}, s{sMT}, 2")
    a.e(f"s_lshl_b32 s{sT0}, s{sT0}, 12")
    a.e("v_and_b32 v10, 31, v0")
    a.e("v_lshlrev_b32 v10, 7, v10")
    a.e(f"s_mov_b32 s{sT1}, s{sTAG}")
    a.e(f"s_mov_b32 s{sT2}, 0")
    a.lab("L_h_poll")
    a.e(f"buffer_load_dword v32, v10, {sq(rA)}, s{sT0} offen sc1")
    a.e("s_waitcnt vmcnt(0)")
    a.e(f"v_cmp_ne_u32 vcc, s{sT1}, v32")
    a.e("s_cbranch_vccz L_h_polled")
    a.e("s_sleep 1")
    a.e(f"s_add_u32 s{sT2}, s{sT2}, 1")
    a.e(f"s_cmp_lt_u32 s{sT2}, 0x40000")
    a.e("s_cbranch_scc1 L_h_poll")
    a.lab("L_h_polled")
    a.bar()
    stamp(a, 9)
    for s in range(11):
        a.wait(vm=[("Q", s)])
        a.bar()
        if s >= 1 and s + 2 < 11: p2_issue(a, s + 2)
    stamp(a, 10)
    stamp_flush(a)
    a.lab("L_done")
    a.e("s_endpgm")

KD = f""".section .rodata,"a"
.p2align 6
.amdhsa_kernel {NAME}
  .amdhsa_next_free_vgpr 256
  .amdhsa_next_free_sgpr 100
  .amdhsa_accum_offset 256
  .amdhsa_group_segment_fixed_size 0
  .amdhsa_kernarg_size 128
  .amdhsa_user_sgpr_count 2
  .amdhsa_user_sgpr_kernarg_segment_ptr 1
  .amdhsa_system_sgpr_workgroup_id_x 1
  .amdhsa_float_denorm_mode_32 3
.end_amdhsa_kernel
"""
HEADER = open("recurrent_scan__ssm_conv_s5__glu_gated_swiglu__prompt.s.ref").read().split("; Override")[0]

def build(path):
    a = Asm()
    prologue(a)
    a.e(f"s_cmp_ge_u32 s{sGI}, 10")
    a.e("s_cbranch_scc1 L_c_nossm")
    regs = compute_ssm(a)
    a.lab("L_c_nossm")
    roles(a)
    a.e(f"s_cmp_lt_u32 s{sGI}, 10")
    a.e("s_cbranch_scc1 L_c_ssm")
    b0 = a.nbar; compute_ffn(a); nf = a.nbar - b0
    b0 = a.nbar; compute_p2(a); n2 = a.nbar - b0
    a.lab("L_c_ssm"); a.reset()
    b0 = a.nbar; compute_ssm2(a, regs); ns = a.nbar - b0
    a.e("s_branch L_p2")
    a.lab("L_helper"); a.reset()
    a.e(f"s_cmp_lt_u32 s{sGI}, 10")
    a.e("s_cbranch_scc1 L_h_ssm")
    b0 = a.nbar; helper(a, FFN); hf = a.nbar - b0
    a.lab("L_h_ssm"); a.reset()
    b0 = a.nbar; helper(a, SSM); hs = a.nbar - b0
    b0 = a.nbar; helper_p2(a); h2 = a.nbar - b0
    assert nf + n2 == hf + h2 and ns + n2 == hs + h2, (nf, ns, n2, hf, hs, h2)
    s = HEADER + f"; @launch grid=(256,1,1) block=(512,1,1) lds={LDS_BYTES}\n"
    s += '.amdgcn_target "amdgcn-amd-amdhsa--gfx950"\n.text\n' + a.text() + KD
    open(path, "w").write(s)

if __name__ == "__main__":
    out = sys.argv[1] if len(sys.argv) > 1 and not sys.argv[1].startswith("--") else "recurrent_scan__ssm_conv_s5__glu_gated_swiglu__prompt.s"
    if "--stamps" in sys.argv: STAMPS = True
    for x in sys.argv[1:]:
        if x.startswith("--opt="):
            for kv in x[6:].split(","):
                k, _, v = kv.partition("=")
                OPT[k] = int(v) if v else 1
    build(out)
```

```python
import sys, struct

NAME = "recurrent_scan__ssm_conv_s5__glu_gated_swiglu__prompt_kernel"
L, D, P, F = 2048, 640, 640, 1728
HA_OFF = 0x0
HA_SLAB = 95 * 4096
WB_OFF = 0xC00000
WB_SLAB = 55 * 5120
ST1_OFF = 0xF00000
CS_OFF = 0xF10000
AGG_OFF = 0xFA0000
DONE_OFF = 0xFC0000
FLAG_OFF = 0xFE0000
NONCE_OFF = 0xFF0000
STAMP_OFF = 0x1000000
sTAG = 66
LDS_BYTES = 163840
STAMPS = False
OPT = {}

def f2u(x):
    return struct.unpack("<I", struct.pack("<f", x))[0]
def u2f(u):
    return struct.unpack("<f", struct.pack("<I", u))[0]

class Asm:
    def __init__(self):
        self.l = []; self.vm = []; self.lg = []; self.nbar = 0
    def e(self, s): self.l.append("    " + s)
    def lab(self, s): self.l.append(s + ":")
    def vmem(self, s, tag=None): self.e(s); self.vm.append(tag)
    def lds(self, s, tag=None): self.e(s); self.lg.append(tag)
    def bar(self): self.e("s_barrier"); self.nbar += 1
    def reset(self): self.vm = []; self.lg = []
    @staticmethod
    def _need(q, tags):
        idx = -1
        for i, t in enumerate(q):
            if t in tags: idx = i
        return idx
    def wait(self, vm=None, lg=None, vm_all=False, lg_all=False):
        parts = []
        i = len(self.vm) - 1 if vm_all else self._need(self.vm, vm or [])
        if i >= 0:
            n = min(len(self.vm) - 1 - i, 63)
            parts.append(f"vmcnt({n})")
            self.vm = self.vm[len(self.vm) - n:] if n else []
        i = len(self.lg) - 1 if lg_all else self._need(self.lg, lg or [])
        if i >= 0:
            n = min(len(self.lg) - 1 - i, 15)
            parts.append(f"lgkmcnt({n})")
            self.lg = self.lg[len(self.lg) - n:] if n else []
        if parts: self.e("s_waitcnt " + " ".join(parts))
    def text(self): return "\n".join(self.l) + "\n"

def vr(b, n=1): return f"v{b}" if n == 1 else f"v[{b}:{b+n-1}]"
def sq(b): return f"s[{b}:{b+3}]"

def srd(a, d, lo, nbytes, add=None):
    if add is None:
        a.e(f"s_mov_b32 s{d}, s{lo}"); a.e(f"s_mov_b32 s{d+1}, s{lo+1}")
    else:
        a.e(f"s_add_u32 s{d}, s{lo}, {add}"); a.e(f"s_addc_u32 s{d+1}, s{lo+1}, 0")
    a.e(f"s_mov_b32 s{d+2}, {nbytes}")
    a.e(f"s_mov_b32 s{d+3}, 0x00020000")

pX, pLRE, pLIM, pBRE, pBIM, pCRE, pCIM, pLDT, pDSK, pBX, pW1, pW3, pW2, pOUT, pDBG, pWS = range(4, 36, 2)
rX, rW, rA, rB, rC, rD = 36, 40, 44, 48, 52, 56
sM, sGI, sG, sMT, sNG, sHW = 60, 61, 62, 63, 64, 65
sT0, sT1, sT2, sT3, sT4, sT5 = 68, 69, 70, 71, 72, 73
sXO, sWO, sLB = 74, 75, 76
SV = 255

def stamp(a, slot):
    if not STAMPS: return
    a.e("s_memrealtime s[96:97]")
    a.e("s_memtime s[98:99]")
    a.e("s_waitcnt lgkmcnt(0)")
    a.e(f"v_writelane_b32 v{SV}, s96, {slot}")
    a.e(f"v_writelane_b32 v{SV}, s98, {slot+32}")
    a.lg = []
def stamp_flush(a):
    if not STAMPS: return
    srd(a, 92, pWS, 1 << 20, add=hex(STAMP_OFF))
    a.e("s_lshl_b32 s98, s2, 3")
    a.e("s_add_u32 s98, s98, s3")
    a.e("s_lshl_b32 s98, s98, 8")
    a.e(f"v_lshlrev_b32 v{SV-1}, 2, v0")
    a.e(f"buffer_store_dword v{SV}, v{SV-1}, s[92:95], s98 offen")

def cmul(a, d, x, y, t):
    a.e(f"v_pk_mul_f32 {vr(t,2)}, {vr(x,2)}, {vr(y,2)} op_sel:[0,0] op_sel_hi:[0,1]")
    a.e(f"v_pk_fma_f32 {vr(d,2)}, {vr(x,2)}, {vr(y,2)}, {vr(t,2)} op_sel:[1,1,0] op_sel_hi:[1,0,1] neg_lo:[1,0,0]")
def cfma(a, d, x, y, z, t):
    a.e(f"v_pk_fma_f32 {vr(t,2)}, {vr(x,2)}, {vr(y,2)}, {vr(z,2)} op_sel:[0,0,0] op_sel_hi:[0,1,1]")
    a.e(f"v_pk_fma_f32 {vr(d,2)}, {vr(x,2)}, {vr(y,2)}, {vr(t,2)} op_sel:[1,1,0] op_sel_hi:[1,0,1] neg_lo:[1,0,0]")

class Map: pass
FFN = Map(); FFN.name = "ffn"; FFN.slot = 53248; FFN.woff = 32768; FFN.nfr = 10
FFN.tab_st = 159744; FFN.tab_cs = 159744 + 2048
SSM = Map(); SSM.name = "ssm"; SSM.slot = 49152; SSM.woff = 32768; SSM.nfr = 8
SSM.scr = 147456
SSM.tab_rs = 147456 + 14336 - 0
SSM.tab_rs = 161792 - 0
SSM.tab_mr = 161792 + 1024
SSM.tab_cs = 147456 + 8704
SSM.img = 0
sPIT = 90
def p2slot(st): return (st + 1) % 3

def prologue(a):
    a.l.append(f".globl {NAME}"); a.l.append(".p2align 8"); a.l.append(f".type {NAME},@function")
    a.lab(NAME)
    a.e("s_cmp_ge_u32 s2, 256")
    a.e("s_cbranch_scc1 L_done")
    a.e("s_load_dwordx16 s[4:19], s[0:1], 0")
    a.e("s_load_dwordx16 s[20:35], s[0:1], 64")
    a.e("v_lshrrev_b32 v1, 6, v0")
    a.e("v_and_b32 v0, 63, v0")
    a.e("v_readfirstlane_b32 s3, v1")
    if OPT.get("scramble"):
        a.e(f"s_lshr_b32 s{sT0}, s2, 5")
        a.e(f"s_and_b32 s{sT1}, s2, 31")
    else:
        a.e(f"s_and_b32 s{sT0}, s2, 7")
        a.e(f"s_lshr_b32 s{sT1}, s2, 3")
    a.e(f"s_and_b32 s{sM}, s{sT0}, 1")
    a.e(f"s_lshl_b32 s{sM}, s{sM}, 2")
    a.e(f"s_and_b32 s{sT2}, s{sT1}, 3")
    a.e(f"s_add_u32 s{sM}, s{sM}, s{sT2}")
    a.e(f"s_lshr_b32 s{sT2}, s{sT0}, 1")
    a.e(f"s_lshr_b32 s{sT3}, s{sT1}, 2")
    a.e(f"s_lshl_b32 s{sMT}, s{sT2}, 3")
    a.e(f"s_and_b32 s{sT4}, s{sT1}, 7")
    a.e(f"s_add_u32 s{sMT}, s{sMT}, s{sT4}")
    a.e(f"s_and_b32 s{sNG}, s{sT0}, 1")
    a.e(f"s_lshl_b32 s{sNG}, s{sNG}, 2")
    a.e(f"s_lshr_b32 s{sT4}, s{sT1}, 3")
    a.e(f"s_add_u32 s{sNG}, s{sNG}, s{sT4}")
    a.e(f"s_mul_i32 s{sT4}, s{sT2}, 3")
    a.e(f"s_lshl_b32 s{sT5}, s{sT2}, 1")
    a.e(f"s_add_u32 s{sT5}, s{sT5}, 2")
    a.e(f"s_cmp_lt_u32 s{sT2}, 2")
    a.e(f"s_cselect_b32 s{sT4}, s{sT4}, s{sT5}")
    a.e(f"s_cselect_b32 s{sT5}, 3, 2")
    a.e(f"s_lshl_b32 s{sT0}, s{sT2}, 3")
    a.e(f"s_sub_u32 s{sT0}, s{sT0}, s{sT4}")
    a.e(f"s_add_u32 s{sT0}, s{sT0}, s{sT3}")
    a.e(f"s_sub_u32 s{sT0}, s{sT0}, s{sT5}")
    a.e(f"s_add_u32 s{sT0}, s{sT0}, 10")
    a.e(f"s_add_u32 s{sT4}, s{sT4}, s{sT3}")
    a.e(f"s_cmp_lt_u32 s{sT3}, s{sT5}")
    a.e(f"s_cselect_b32 s{sGI}, s{sT4}, s{sT0}")
    a.e(f"s_cselect_b32 s{sPIT}, {SSM.slot >> 12}, {FFN.slot >> 12}")
    a.e(f"s_lshl_b32 s{sPIT}, s{sPIT}, 12")
    a.e(f"s_and_b32 s{sHW}, s3, 3")
    a.e("v_lshlrev_b32 v1, 4, v0")
    a.e("s_waitcnt lgkmcnt(0)")
    stamp(a, 0)
    a.e(f"s_add_u32 s{sT0}, s{pWS}, {hex(NONCE_OFF)}")
    a.e(f"s_addc_u32 s{sT1}, s{pWS+1}, 0")
    a.e(f"s_load_dword s{sTAG}, s[{sT0}:{sT1}], 0")
    a.e("s_cmp_ge_u32 s3, 4")
    a.e("s_cbranch_scc1 L_helper")

def roles(a):
    a.e("s_cmp_ge_u32 s3, 2")
    a.e("s_cbranch_scc1 L_relay")
    srd(a, rX, pX, L * D * 2)
    a.e(f"s_lshl_b32 s{sT0}, s{sM}, 8")
    a.e(f"s_lshl_b32 s{sT1}, s{sGI}, 3")
    a.e(f"s_add_u32 s{sT0}, s{sT0}, s{sT1}")
    a.e(f"s_lshl_b32 s{sT1}, s3, 2")
    a.e(f"s_add_u32 s{sT0}, s{sT0}, s{sT1}")
    a.e(f"s_mul_i32 s{sT1}, s{sT0}, 1280")
    a.e("v_lshrrev_b32 v2, 4, v0")
    a.e("v_and_b32 v3, 15, v0")
    a.e("v_mul_u32_u24 v4, 1280, v2")
    a.e("v_lshl_add_u32 v4, v3, 4, v4")
    for n in range(5):
        a.vmem(f"buffer_load_dwordx4 {vr(8+4*n,4)}, v4, {sq(rX)}, s{sT1} offen offset:{256*n}", ("x", n))
    srd(a, rA, pWS, 65536, add=hex(ST1_OFF))
    a.e(f"s_lshl_b32 s{sT0}, s{sT0}, 5")
    a.e("v_lshlrev_b32 v5, 5, v2")
    a.e("v_lshl_add_u32 v5, v3, 3, v5")
    a.e(f"s_mov_b32 s{sT2}, 0xffff0000")
    FB = 32
    for n in range(5):
        a.wait(vm=[("x", n)])
        for i in range(4):
            s = 8 + 4 * n + i; d = FB + 2 * (4 * n + i)
            a.e(f"v_lshlrev_b32 v{d}, 16, v{s}")
            a.e(f"v_and_b32 v{d+1}, s{sT2}, v{s}")
    a.e(f"v_pk_add_f32 v[72:73], {vr(FB,2)}, {vr(FB+2,2)}")
    a.e(f"v_pk_add_f32 v[74:75], {vr(FB+4,2)}, {vr(FB+6,2)}")
    for i in range(4, 20):
        t = 72 + 2 * (i & 1)
        a.e(f"v_pk_add_f32 {vr(t,2)}, {vr(t,2)}, {vr(FB+2*i,2)}")
    a.e("v_pk_add_f32 v[72:73], v[72:73], v[74:75]")
    a.e("v_add_f32 v72, v72, v73")
    def red16(r):
        for m in ("quad_perm:[1,0,3,2]", "quad_perm:[2,3,0,1]", "row_half_mirror", "row_mirror"):
            a.e("s_nop 1")
            a.e(f"v_add_f32_dpp v{r}, v{r}, v{r} {m} row_mask:0xf bank_mask:0xf")
    red16(72)
    a.e(f"v_mul_f32 v72, {hex(f2u(1.0/640))}, v72")
    a.e("v_cvt_pk_bf16_f32 v74, v72, v72")
    a.e("v_lshlrev_b32 v74, 16, v74")
    a.e("v_sub_f32 v73, v72, v74")
    for i in range(20):
        a.e(f"v_pk_add_f32 {vr(FB+2*i,2)}, {vr(FB+2*i,2)}, v[74:75] op_sel_hi:[1,0] neg_lo:[0,1] neg_hi:[0,1]")
    a.e(f"v_pk_mul_f32 v[76:77], {vr(FB,2)}, {vr(FB,2)}")
    a.e(f"v_pk_mul_f32 v[78:79], {vr(FB+2,2)}, {vr(FB+2,2)}")
    for i in range(2, 20):
        t = 76 + 2 * (i & 1)
        a.e(f"v_pk_fma_f32 {vr(t,2)}, {vr(FB+2*i,2)}, {vr(FB+2*i,2)}, {vr(t,2)}")
    a.e("v_pk_add_f32 v[76:77], v[76:77], v[78:79]")
    a.e("v_add_f32 v76, v76, v77")
    red16(76)
    a.e(f"v_mul_f32 v76, {hex(f2u(1.0/640))}, v76")
    a.e("v_fma_f32 v76, -v73, v73, v76")
    a.e("v_max_f32 v76, 0, v76")
    a.e("v_cvt_pk_bf16_f32 v76, v76, v76")
    a.e("v_lshlrev_b32 v76, 16, v76")
    a.e(f"v_add_f32 v76, {hex(f2u(1e-5))}, v76")
    a.e("v_cvt_pk_bf16_f32 v76, v76, v76")
    a.e("v_lshlrev_b32 v76, 16, v76")
    a.e("v_sqrt_f32 v76, v76")
    a.e("s_nop 0")
    a.e("v_cvt_pk_bf16_f32 v76, v76, v76")
    a.e("v_lshlrev_b32 v75, 16, v76")
    a.e("v_cmp_gt_u32 vcc, 4, v3")
    a.e(f"s_and_saveexec_b64 s[{sT2}:{sT3}], vcc")
    a.e(f"buffer_store_dwordx2 v[74:75], v5, {sq(rA)}, s{sT0} offen sc1")
    a.e(f"s_mov_b64 exec, s[{sT2}:{sT3}]")
    a.e("s_branch L_roles_done")
    a.lab("L_relay")
    a.e(f"s_cmp_lt_u32 s{sGI}, 10")
    a.e("s_cbranch_scc1 L_tssm")
    a.e("s_cmp_eq_u32 s3, 2")
    a.e(f"s_cselect_b32 s{rX}, s{pW1}, s{pW3}")
    a.e(f"s_cselect_b32 s{rX+1}, s{pW1+1}, s{pW3+1}")
    a.e(f"s_mov_b32 s{rX+2}, {D*F*2}")
    a.e(f"s_mov_b32 s{rX+3}, 0x00020000")
    a.e(f"s_sub_u32 s{sT0}, s{sGI}, 10")
    a.e(f"s_mul_i32 s{sT0}, s{sT0}, 160")
    a.e(f"s_min_u32 s{sT0}, s{sT0}, 3296")
    a.e(f"s_mul_i32 s{sT1}, s{sM}, {16*3456}")
    a.e(f"s_add_u32 s{sT0}, s{sT0}, s{sT1}")
    a.e("v_bfe_u32 v2, v0, 1, 4")
    a.e("v_mul_u32_u24 v2, 3456, v2")
    a.e("v_and_b32 v3, 1, v0")
    a.e("v_mul_u32_u24 v3, 156, v3")
    a.e("v_add_u32 v2, v2, v3")
    a.e("s_branch L_tgo")
    a.lab("L_tssm")
    a.e("s_cmp_eq_u32 s3, 2")
    a.e(f"s_cselect_b32 s{rX}, s{pBRE}, s{pBIM}")
    a.e(f"s_cselect_b32 s{rX+1}, s{pBRE+1}, s{pBIM+1}")
    a.e(f"s_mov_b32 s{rX+2}, {P*D*2}")
    a.e(f"s_mov_b32 s{rX+3}, 0x00020000")
    a.e(f"s_lshl_b32 s{sT0}, s{sGI}, 3")
    a.e(f"s_add_u32 s{sT0}, s{sT0}, s{sM}")
    a.e(f"s_mul_i32 s{sT0}, s{sT0}, {8*1280}")
    a.e("v_bfe_u32 v2, v0, 1, 3")
    a.e("v_mul_u32_u24 v2, 1280, v2")
    a.e("v_and_b32 v3, 1, v0")
    a.e("v_lshl_add_u32 v2, v3, 7, v2")
    a.lab("L_tgo")
    a.e("s_mov_b32 exec_hi, 0")
    a.e(f"buffer_load_dword v4, v2, {sq(rX)}, s{sT0} offen")
    a.e("s_mov_b64 exec, -1")
    if not OPT.get("nocode"):
        a.e("s_cmp_lg_u32 s3, 3")
        a.e("s_cbranch_scc1 L_roles_skip")
        a.e(f"s_getpc_b64 s[{rA}:{rA+1}]")
        a.lab("L_pc")
        a.e(f"s_mov_b32 s{rA+2}, L_end-L_pc")
        a.e(f"s_mov_b32 s{rA+3}, 0x00020000")
        a.e(f"s_lshr_b32 s{sT0}, s2, 3")
        a.e(f"s_lshl_b32 s{sT0}, s{sT0}, 11")
        a.e("v_and_b32 v2, 15, v0")
        a.e("v_lshlrev_b32 v2, 7, v2")
        a.e("s_mov_b64 exec, 0xffff")
        a.e(f"buffer_load_dword v5, v2, {sq(rA)}, s{sT0} offen")
        a.e("s_mov_b64 exec, -1")
    a.lab("L_roles_skip")
    a.e("s_waitcnt vmcnt(0)")
    a.lab("L_roles_done")
    a.e("s_waitcnt lgkmcnt(0)")
    a.e(f"s_add_u32 s{sTAG}, s{sTAG}, 0x9E3779B1")
    a.reset()
    stamp(a, 6)

def p1_loop(a, M, ACC, WB, XB, xread, wread, mfma, hooks):
    nfr = M.nfr; NG = 20 * nfr; SG = 2 * nfr
    WR = 10 if M is FFN else 8
    LA = WR - 2; BP = LA - 3
    pend = []
    for ks in range(20):
        for i in range(len(xread(ks))):
            pend.append((nfr * ks - 0.5, "X", (ks, i), nfr * (ks - 1) + 1 if ks else -99, ks >> 1))
    for g in range(NG):
        for i in range(len(wread(g))):
            pend.append((g, "W", (g, i), g - LA, g // SG))
    pend.sort(key=lambda t: t[0])
    avail = 0
    def issue(g, n):
        k = 0
        while k < len(pend) and n > 0:
            need, kind, idx, early, st = pend[k]
            if need > g + WR + nfr: break
            if early <= g and st < avail:
                ins = (xread if kind == "X" else wread)(idx[0])[idx[1]]
                a.lds(ins, (kind, idx[0]))
                pend.pop(k); n -= 1
            else:
                k += 1
    stamp(a, 7)
    a.bar(); avail = 1
    stamp(a, 1)
    issue(-1, 14)
    for g in range(NG):
        ks, fr = divmod(g, nfr)
        if (g + BP) % SG == 0:
            st = (g + BP) // SG
            assert not any(p[4] < st for p in pend), (g, st)
            if st in hooks: hooks[st]("pre")
            a.wait(lg_all=True)
            a.bar(); avail = st + 1
            if st in hooks: hooks[st]("post")
        a.wait(lg=[("W", g), ("X", ks)])
        for tt in range(4):
            a.e(mfma(g, tt))
            issue(g if tt == 3 else g - 1, 1 if tt < 3 else 2)
    assert not pend

def flag_hook(a, tag):
    def h2(when):
        if when == "pre":
            a.e("s_waitcnt vmcnt(0)")
        else:
            a.e("s_cmp_lg_u32 s3, 3")
            a.e(f"s_cbranch_scc1 L_nf_{tag}")
            a.e("s_mov_b32 exec_hi, 0")
            a.e(f"buffer_store_dword v15, v254, {sq(rD)}, s{sT5} offen sc1")
            a.e("s_mov_b64 exec, -1")
            a.lab(f"L_nf_{tag}")
    srd(a, rD, pWS, 32768, add=hex(FLAG_OFF))
    a.e(f"s_lshl_b32 s{sT5}, s2, 7")
    a.e(f"v_mov_b32 v15, s{sTAG}")
    a.e("v_lshlrev_b32 v254, 2, v0")
    return {3: h2}

def compute_ffn(a):
    M = FFN
    WB, XB, ACC = 16, 56, 88
    a.e(f"s_sub_u32 s{sG}, s{sGI}, 10")
    a.e("v_and_b32 v8, 15, v0")
    a.e("v_lshrrev_b32 v9, 4, v0")
    a.e("v_bfe_u32 v10, v0, 1, 3")
    a.e("v_xor_b32 v10, v10, v9")
    a.e("v_lshlrev_b32 v10, 4, v10")
    a.e("v_lshl_add_u32 v10, v8, 7, v10")
    a.e("v_and_b32 v11, 1, v9")
    a.e("v_lshl_add_u32 v10, v11, 3, v10")
    a.e(f"s_lshl_b32 s{sT0}, s3, 13")
    a.e(f"v_add_u32 v10, s{sT0}, v10")
    a.e("v_mov_b32 v2, v10")
    a.e("v_xor_b32 v3, 8, v10")
    a.e("v_xor_b32 v4, 64, v10")
    a.e("v_xor_b32 v5, 0x48, v10")
    for i in range(4):
        a.e(f"v_add_u32 v{248+i}, {2*M.slot}, v{2+i}")
    a.e("v_bfe_u32 v12, v0, 2, 2")
    a.e("v_lshl_add_u32 v12, v9, 3, v12")
    a.e("v_lshl_add_u32 v13, v11, 2, v12")
    a.e("v_xor_b32 v11, 1, v11")
    a.e("v_lshl_add_u32 v14, v11, 2, v12")
    a.e("v_and_b32 v12, 3, v0")
    a.e("v_lshlrev_b32 v12, 3, v12")
    a.e(f"v_add_u32 v12, {M.woff}, v12")
    a.e("v_mul_u32_u24 v13, 160, v13")
    a.e("v_mul_u32_u24 v14, 160, v14")
    a.e("v_add_u32 v6, v13, v12")
    a.e("v_add_u32 v7, v14, v12")
    a.e(f"v_add_u32 v13, {M.slot}, v6")
    a.e(f"v_add_u32 v14, {M.slot}, v7")
    a.e(f"v_add_u32 v252, {2*M.slot}, v6")
    a.e(f"v_add_u32 v253, {2*M.slot}, v7")
    wbase = {0: (6, 7), 1: (13, 14), 2: (252, 253)}
    def xread(ks):
        sl = (ks >> 1) % 3; kk = ks & 1
        out = []
        for tt in range(4):
            for h in range(2):
                reg = (2 if sl < 2 else 248) + 2 * kk + h
                off = (sl * M.slot if sl < 2 else 0) + tt * 2048
                out.append(f"ds_read_b64 {vr(XB+16*kk+4*tt+2*h,2)}, v{reg} offset:{off}")
        return out
    def wread(g):
        ks, fr = divmod(g, 10); sl = (ks >> 1) % 3
        off = (fr & 1) * 10240 + (ks & 1) * 5120 + 32 * (fr >> 1)
        return [f"ds_read_b64_tr_b16 {vr(WB+4*(g%10)+2*s,2)}, v{wbase[sl][s]} offset:{off}" for s in range(2)]
    def acc(tt, fr): return ACC + 40 * tt + 4 * fr
    def mfma(g, tt):
        ks, fr = divmod(g, 10)
        c = "0" if ks == 0 else vr(acc(tt, fr), 4)
        return f"v_mfma_f32_16x16x32_bf16 {vr(acc(tt,fr),4)}, {vr(WB+4*(g%10),4)}, {vr(XB+16*(ks&1)+4*tt,4)}, {c}"
    p1_loop(a, M, ACC, WB, XB, xread, wread, mfma, flag_hook(a, "f"))
    stamp(a, 2)
    CS = 16
    ST = 56
    a.e(f"s_lshl_b32 s{sT0}, s3, 9")
    a.e(f"s_add_u32 s{sT0}, s{sT0}, {M.tab_st}")
    a.e("v_lshlrev_b32 v2, 3, v8")
    a.e(f"v_add_u32 v2, s{sT0}, v2")
    a.e("v_lshlrev_b32 v3, 4, v9")
    a.e(f"v_add_u32 v3, {M.tab_cs}, v3")
    for tt in range(4):
        a.lds(f"ds_read_b64 {vr(ST+2*tt,2)}, v2 offset:{128*tt}", "st")
    for fr in range(10):
        a.lds(f"ds_read_b128 {vr(CS+4*fr,4)}, v3 offset:{(fr&1)*512+(fr>>1)*64}", ("cs", fr))
    a.e(f"s_lshl_b32 s{sT0}, s{sM}, 2")
    a.e(f"s_add_u32 s{sT0}, s{sT0}, s3")
    a.e(f"s_mul_i32 s{sT0}, s{sT0}, {HA_SLAB}")
    srd(a, rA, pWS, HA_SLAB, add=f"s{sT0}")
    a.e(f"s_lshr_b32 s{sT1}, s{sG}, 1")
    a.e(f"s_mul_i32 s{sT1}, s{sT1}, 5")
    a.e(f"s_add_u32 s{sT1}, s{sT1}, 40")
    a.e(f"s_and_b32 s{sT2}, s{sG}, 1")
    a.e(f"s_lshl_b32 s{sT3}, s{sT2}, 1")
    a.e(f"s_add_u32 s{sT3}, s{sT3}, s{sT1}")
    a.e(f"s_lshl_b32 s{sT3}, s{sT3}, 12")
    a.e(f"s_add_u32 s{sT4}, s{sT3}, 4096")
    a.e(f"s_add_u32 s{sT1}, s{sT1}, 4")
    a.e(f"s_lshl_b32 s{sT1}, s{sT1}, 12")
    a.e(f"s_lshl_b32 s{sT2}, s{sT2}, 9")
    a.e(f"s_add_u32 s{sT1}, s{sT1}, s{sT2}")
    a.e(f"s_cmp_eq_u32 s{sG}, 21")
    a.e(f"s_cselect_b32 s{sT3}, 0x7000000, s{sT3}")
    a.e("v_lshlrev_b32 v4, 3, v0")
    C1 = 64; C2 = 72
    a.wait(lg=["st"])
    for tt in range(4):
        a.e(f"v_rcp_f32 v{C1+2*tt}, v{ST+2*tt+1}")
        a.e(f"v_mul_f32 v{C2+2*tt}, v{ST+2*tt+1}, v{ST+2*tt+1}")
    for tt in range(4):
        a.e(f"v_mul_f32 v{C1+2*tt}, {hex(f2u(-1.4426950408889634))}, v{C1+2*tt}")
    T = 80
    for tt in range(4):
        for grp in ((0, 1), (2, 3), (4,)):
            n = len(grp)
            for j in grp:
                a.wait(lg=[("cs", 2 * j), ("cs", 2 * j + 1)])
                for mat in range(2):
                    r = acc(tt, 2 * j + mat)
                    for h in range(2):
                        a.e(f"v_pk_fma_f32 {vr(r+2*h,2)}, {vr(ST+2*tt,2)}, {vr(CS+4*(2*j+mat)+2*h,2)}, {vr(r+2*h,2)} op_sel:[0,0,0] op_sel_hi:[0,1,1] neg_lo:[1,0,0] neg_hi:[1,0,0]")
            for i, j in enumerate(grp):
                for h in range(2):
                    a.e(f"v_pk_mul_f32 {vr(T+4*i+2*h,2)}, {vr(acc(tt,2*j)+2*h,2)}, {vr(C1+2*tt,2)} op_sel_hi:[1,0]")
            for p in range(4 * n):
                a.e(f"v_exp_f32 v{T+p}, v{T+p}")
            for j in grp:
                for h in range(2):
                    a.e(f"v_pk_mul_f32 {vr(acc(tt,2*j)+2*h,2)}, {vr(acc(tt,2*j)+2*h,2)}, {vr(acc(tt,2*j+1)+2*h,2)}")
            for p in range(2 * n):
                a.e(f"v_pk_fma_f32 {vr(T+2*p,2)}, {vr(T+2*p,2)}, {vr(C2+2*tt,2)}, {vr(C2+2*tt,2)} op_sel_hi:[1,0,0]")
            for p in range(4 * n):
                a.e(f"v_rcp_f32 v{T+p}, v{T+p}")
            a.e("s_nop 0")
            for i, j in enumerate(grp):
                for h in range(2):
                    a.e(f"v_pk_mul_f32 {vr(acc(tt,2*j)+2*h,2)}, {vr(acc(tt,2*j)+2*h,2)}, {vr(T+4*i+2*h,2)}")
            o = acc(tt, 2 * grp[0] + 1)
            for i, j in enumerate(grp):
                for h in range(2):
                    a.e(f"v_cvt_pk_bf16_f32 v{o+2*i+h}, v{acc(tt,2*j)+2*h}, v{acc(tt,2*j)+2*h+1}")
            if n == 2:
                so = sT3 if grp[0] == 0 else sT4
                a.e(f"buffer_store_dwordx4 {vr(o,4)}, v1, {sq(rA)}, s{so} offen offset:{1024*tt} sc1")
            else:
                a.e(f"buffer_store_dwordx2 {vr(o,2)}, v4, {sq(rA)}, s{sT1} offen offset:{1024*tt} sc1")
    stamp(a, 3)

def compute_ssm(a):
    M = SSM
    WB, XB, ACC = 16, 48, 80
    KL, KC, K8, KP = 208, 216, 224, 232
    L16, L256 = 240, 242
    a.e(f"s_mov_b32 s{sG}, s{sGI}")
    srd(a, rB, pLRE, P * 2); srd(a, rC, pLIM, P * 2); srd(a, rD, pLDT, P * 2)
    a.e("v_lshlrev_b32 v2, 1, v0")
    a.e(f"s_lshl_b32 s{sT0}, s{sG}, 7")
    a.e(f"buffer_load_ushort v100, v2, {sq(rB)}, s{sT0} offen")
    a.e(f"buffer_load_ushort v101, v2, {sq(rC)}, s{sT0} offen")
    a.e(f"buffer_load_ushort v102, v2, {sq(rD)}, s{sT0} offen")
    return WB, XB, ACC, KL, KC, K8, KP, L16, L256

def compute_ssm2(a, regs):
    M = SSM
    WB, XB, ACC, KL, KC, K8, KP, L16, L256 = regs
    a.e("v_lshlrev_b32 v100, 16, v100")
    a.e("v_lshlrev_b32 v101, 16, v101")
    a.e("v_lshlrev_b32 v102, 16, v102")
    HI = f2u(1.4426950408889634)
    a.e(f"s_mov_b32 s{sT0}, {hex(HI)}")
    a.e(f"s_mov_b32 s{sT1}, {hex(f2u(1.4426950408889634 - u2f(HI)))}")
    a.e(f"s_mov_b32 s{sT2}, {hex(f2u(0.6931471805599453))}")
    def expf(d, x, t0, t1):
        a.e(f"v_mul_f32 v{t0}, s{sT0}, v{x}")
        a.e(f"v_fma_f32 v{t1}, v{x}, s{sT0}, -v{t0}")
        a.e(f"v_fma_f32 v{t1}, v{x}, s{sT1}, v{t1}")
        a.e(f"v_exp_f32 v{t0}, v{t0}")
        a.e(f"v_mul_f32 v{t1}, s{sT2}, v{t1}")
        a.e(f"v_fma_f32 v{d}, v{t0}, v{t1}, v{t0}")
    expf(102, 102, 104, 105)
    a.e("v_cvt_pk_bf16_f32 v102, v102, v102")
    a.e("v_lshlrev_b32 v102, 16, v102")
    a.e("v_mul_f32 v106, v102, v100")
    a.e("v_mul_f32 v107, v102, v101")
    expf(106, 106, 104, 105)
    HI = f2u(0.15915494309189535)
    a.e(f"s_mov_b32 s{sT0}, {hex(HI)}")
    a.e(f"s_mov_b32 s{sT1}, {hex(f2u(0.15915494309189535 - u2f(HI)))}")
    a.e(f"v_mul_f32 v104, s{sT0}, v107")
    a.e(f"v_fma_f32 v105, v107, s{sT0}, -v104")
    a.e(f"v_fma_f32 v105, v107, s{sT1}, v105")
    a.e("v_rndne_f32 v103, v104")
    a.e("v_sub_f32 v104, v104, v103")
    a.e("v_add_f32 v104, v104, v105")
    a.e("v_cos_f32 v108, v104")
    a.e("v_sin_f32 v109, v104")
    a.e("s_nop 0")
    LAM, COEF, L8, P0, TMP, TMP2, L32, L64, L128 = 110, 112, 114, 116, 124, 126, 128, 130, 132
    a.e(f"v_mul_f32 v{LAM}, v106, v108")
    a.e(f"v_mul_f32 v{LAM+1}, v106, v109")
    a.e("v_max_f32 v106, |v100|, |v101|")
    a.e("v_rcp_f32 v107, v106")
    a.e(f"v_add_f32 v108, -1.0, v{LAM}")
    a.e("v_mul_f32 v100, v100, v107")
    a.e("v_mul_f32 v101, v101, v107")
    a.e("v_mul_f32 v109, v100, v100")
    a.e("v_fma_f32 v109, v101, v101, v109")
    a.e("v_mul_f32 v109, v109, v106")
    a.e("v_rcp_f32 v109, v109")
    a.e("v_mul_f32 v104, v108, v100")
    a.e(f"v_fma_f32 v104, v{LAM+1}, v101, v104")
    a.e(f"v_mul_f32 v105, v{LAM+1}, v100")
    a.e("v_fma_f32 v105, -v108, v101, v105")
    a.e("v_add_f32 v109, v109, v109")
    a.e(f"v_mul_f32 v{COEF}, v104, v109")
    a.e(f"v_mul_f32 v{COEF+1}, v105, v109")
    cmul(a, L8, LAM, LAM, TMP)
    cmul(a, TMP2, L8, L8, TMP)
    cmul(a, L8, TMP2, TMP2, TMP)
    cmul(a, L16, L8, L8, TMP)
    cmul(a, L32, L16, L16, TMP)
    cmul(a, L64, L32, L32, TMP)
    cmul(a, L128, L64, L64, TMP)
    cmul(a, L256, L128, L128, TMP)
    a.e(f"v_mov_b32 v{P0}, 1.0")
    a.e(f"v_mov_b32 v{P0+1}, 0")
    for bit, src in ((0, L64), (1, L128)):
        a.e(f"s_bitcmp0_b32 s3, {bit}")
        a.e(f"s_cbranch_scc1 L_pw{bit}")
        cmul(a, TMP2, P0, src, TMP)
        a.e(f"v_mov_b32 v{P0}, v{TMP2}")
        a.e(f"v_mov_b32 v{P0+1}, v{TMP2+1}")
        a.lab(f"L_pw{bit}")
    cmul(a, P0 + 2, P0, L16, TMP)
    cmul(a, P0 + 4, P0, L32, TMP)
    cmul(a, P0 + 6, P0 + 4, L16, TMP)
    a.e(f"s_mul_i32 s{sT0}, s3, 3584")
    a.e(f"s_add_u32 s{sT0}, s{sT0}, {M.scr}")
    a.e("v_lshlrev_b32 v2, 3, v0")
    a.e(f"v_add_u32 v2, s{sT0}, v2")
    for i in range(7):
        a.e(f"ds_write_b64 v2, {vr(LAM+2*i,2)} offset:{512*i}")
    a.e("v_and_b32 v8, 15, v0")
    a.e("v_lshrrev_b32 v9, 4, v0")
    a.e("v_lshlrev_b32 v2, 3, v8")
    a.e(f"v_add_u32 v2, s{sT0}, v2")
    a.e("v_lshl_add_u32 v3, v9, 9, v2")
    a.e("s_waitcnt lgkmcnt(0)")
    for ct in range(4):
        a.e(f"ds_read_b64 {vr(KL+2*ct,2)}, v2 offset:{128*ct}")
        a.e(f"ds_read_b64 {vr(KC+2*ct,2)}, v2 offset:{512+128*ct}")
        a.e(f"ds_read_b64 {vr(K8+2*ct,2)}, v2 offset:{1024+128*ct}")
        a.e(f"ds_read_b64 {vr(KP+2*ct,2)}, v3 offset:{1536+128*ct}")
    a.e("v_bfe_u32 v10, v0, 1, 3")
    a.e("v_xor_b32 v10, v10, v9")
    a.e("v_lshlrev_b32 v10, 4, v10")
    a.e("v_lshl_add_u32 v10, v8, 7, v10")
    a.e(f"s_lshl_b32 s{sT0}, s3, 13")
    a.e(f"v_add_u32 v2, s{sT0}, v10")
    a.e("v_xor_b32 v3, 64, v2")
    a.e(f"v_add_u32 v4, {2*M.slot}, v2")
    a.e(f"v_add_u32 v5, {2*M.slot}, v3")
    a.e(f"v_add_u32 v6, {M.woff}, v10")
    a.e("v_xor_b32 v7, 64, v6")
    a.e(f"v_add_u32 v12, {2*M.slot}, v6")
    a.e(f"v_add_u32 v13, {2*M.slot}, v7")
    a.e("s_waitcnt lgkmcnt(0)")
    def xread(ks):
        sl = (ks >> 1) % 3; kk = ks & 1
        reg = (2 if sl < 2 else 4) + kk
        return [f"ds_read_b128 {vr(XB+16*kk+4*tt,4)}, v{reg} offset:{(sl*M.slot if sl < 2 else 0)+tt*2048}" for tt in range(4)]
    def wread(g):
        ks, fr = divmod(g, 8); sl = (ks >> 1) % 3
        reg = (6 if sl < 2 else 12) + (ks & 1)
        return [f"ds_read_b128 {vr(WB+4*(g%8),4)}, v{reg} offset:{(sl*M.slot if sl < 2 else 0)+fr*2048}"]
    def acc(tt, fr): return ACC + 16 * fr + 4 * tt
    def mfma(g, tt):
        ks, fr = divmod(g, 8)
        c = "0" if ks == 0 else vr(acc(tt, fr), 4)
        return f"v_mfma_f32_16x16x32_bf16 {vr(acc(tt,fr),4)}, {vr(XB+16*(ks&1)+4*tt,4)}, {vr(WB+4*(g%8),4)}, {c}"
    p1_loop(a, M, ACC, WB, XB, xread, wread, mfma, flag_hook(a, "s"))
    stamp(a, 2)
    a.e("v_lshlrev_b32 v6, 3, v0")
    a.e(f"v_add_u32 v6, {M.scr}, v6")
    a.lds(f"ds_write_b64 v6, {vr(L16,2)} offset:9728")
    a.lds(f"ds_write_b64 v6, {vr(L256,2)} offset:10240")
    RS, MR, CSR, CSI = 16, 32, 48, 52
    a.e(f"s_lshl_b32 s{sT0}, s3, 8")
    a.e(f"s_add_u32 s{sT0}, s{sT0}, {M.tab_rs}")
    a.e("v_lshlrev_b32 v2, 4, v9")
    a.e(f"v_add_u32 v2, s{sT0}, v2")
    a.e("v_lshlrev_b32 v3, 2, v8")
    a.e(f"v_add_u32 v3, {M.tab_cs}, v3")
    for tt in range(4):
        a.lds(f"ds_read_b128 {vr(RS+4*tt,4)}, v2 offset:{64*tt}", "t")
        a.lds(f"ds_read_b128 {vr(MR+4*tt,4)}, v2 offset:{1024+64*tt}", "t")
    for fr in range(8):
        a.lds(f"ds_read_b32 v{CSR+fr}, v3 offset:{(fr>>2)*512+64*(fr&3)}", "t")
    EL = M.scr; CAR = EL + 8192
    a.e(f"s_lshl_b32 s{sT0}, s3, 11")
    a.e(f"s_add_u32 s{sT0}, s{sT0}, {EL}")
    a.e("v_lshlrev_b32 v4, 3, v8")
    a.e("v_lshl_add_u32 v5, v9, 9, v4")
    a.e(f"v_add_u32 v5, s{sT0}, v5")
    a.e(f"v_add_u32 v4, {CAR}, v4")
    a.wait(lg=["t"])
    R = lambda ct: ACC + 16 * ct
    I = lambda ct: ACC + 64 + 16 * ct
    H = 56
    def scan_step(ct, hr, hi, ur, ui, dr, di, tr, ti):
        lam = KL + 2 * ct
        a.e(f"v_pk_fma_f32 {vr(tr,2)}, {vr(lam,2)}, {vr(hr,2)}, {vr(ur,2)} op_sel:[0,0,0] op_sel_hi:[0,1,1]")
        a.e(f"v_pk_fma_f32 {vr(ti,2)}, {vr(lam,2)}, {vr(hi,2)}, {vr(ui,2)} op_sel:[0,0,0] op_sel_hi:[0,1,1]")
        a.e(f"v_pk_fma_f32 {vr(dr,2)}, {vr(lam,2)}, {vr(hi,2)}, {vr(tr,2)} op_sel:[1,0,0] op_sel_hi:[1,1,1] neg_lo:[1,0,0] neg_hi:[1,0,0]")
        a.e(f"v_pk_fma_f32 {vr(di,2)}, {vr(lam,2)}, {vr(hr,2)}, {vr(ti,2)} op_sel:[1,0,0] op_sel_hi:[1,1,1]")
    def lncorr(fr, j):
        u = ACC + 16 * fr + 2 * j
        cs = CSR + fr
        sel = cs & 1; csp = cs - sel
        a.e(f"v_pk_mul_f32 {vr(u,2)}, {vr(u,2)}, {vr(RS+2*j,2)}")
        a.e(f"v_pk_fma_f32 {vr(u,2)}, {vr(MR+2*j,2)}, {vr(csp,2)}, {vr(u,2)} op_sel:[0,{sel},0] op_sel_hi:[1,{sel},1] neg_lo:[1,0,0] neg_hi:[1,0,0]")
    E0 = 244
    for cp in range(2):
        cts = (2 * cp, 2 * cp + 1)
        cur = {}
        for j in range(8):
            for ct in cts:
                lncorr(ct, j); lncorr(4 + ct, j)
            if j == 0: continue
            for i, ct in enumerate(cts):
                b = H + 12 * i
                hr, hi = (R(ct), I(ct)) if j == 1 else cur[ct]
                dr, di = b + 4 * (j & 1), b + 4 * (j & 1) + 2
                scan_step(ct, hr, hi, R(ct) + 2 * j, I(ct) + 2 * j, dr, di, b + 8, b + 10)
                cur[ct] = (dr, di)
        for i, ct in enumerate(cts):
            hr, hi = cur[ct]; b = H + 12 * i
            a.e(f"v_mov_b32 v{E0+2*ct}, v{hr}")
            a.e(f"v_mov_b32 v{E0+2*ct+1}, v{hi}")
            a.e(f"v_mov_b32 v{b}, v{hr+1}")
            a.e(f"v_mov_b32 v{b+1}, v{hi+1}")
            cfma(a, b + 2, K8 + 2 * ct, E0 + 2 * ct, b, b + 8)
            a.lds(f"ds_write_b64 v5, {vr(b+2,2)} offset:{128*ct}")
    a.wait(lg_all=True)
    a.bar()
    stamp(a, 3)
    for ct in range(4):
        cf = KC + 2 * ct
        for j in range(8):
            ur, ui = R(ct) + 2 * j, I(ct) + 2 * j
            t = H + 4 * (j & 1)
            a.e(f"v_pk_mul_f32 {vr(t,2)}, {vr(cf,2)}, {vr(ur,2)} op_sel:[0,0] op_sel_hi:[0,1]")
            a.e(f"v_pk_mul_f32 {vr(t+2,2)}, {vr(cf,2)}, {vr(ur,2)} op_sel:[1,0] op_sel_hi:[1,1]")
            a.e(f"v_pk_fma_f32 {vr(ur,2)}, {vr(cf,2)}, {vr(ui,2)}, {vr(t,2)} op_sel:[1,0,0] op_sel_hi:[1,1,1] neg_lo:[1,0,0] neg_hi:[1,0,0]")
            a.e(f"v_pk_fma_f32 {vr(ui,2)}, {vr(cf,2)}, {vr(ui,2)}, {vr(t+2,2)} op_sel:[0,0,0] op_sel_hi:[0,1,1]")
    a.e(f"s_mul_i32 s{sT0}, s3, 9216")
    a.e(f"s_add_u32 s{sT0}, s{sT0}, {M.img}")
    a.e("v_mul_u32_u24 v6, 144, v8")
    a.e("v_lshl_add_u32 v6, v9, 5, v6")
    a.e(f"v_add_u32 v6, s{sT0}, v6")
    a.e("v_bfe_u32 v7, v0, 2, 2")
    a.e("v_lshl_add_u32 v7, v9, 3, v7")
    a.e("v_mul_u32_u24 v7, 144, v7")
    a.e("v_and_b32 v10, 3, v0")
    a.e("v_lshl_add_u32 v7, v10, 3, v7")
    a.e(f"v_add_u32 v7, s{sT0}, v7")
    a.e(f"s_lshl_b32 s{sT0}, s{sM}, 2")
    a.e(f"s_add_u32 s{sT0}, s{sT0}, s3")
    a.e(f"s_mul_i32 s{sT0}, s{sT0}, {HA_SLAB}")
    srd(a, rA, pWS, HA_SLAB, add=f"s{sT0}")
    a.e(f"s_lshl_b32 s{sT1}, s{sG}, 14")
    a.bar()
    stamp(a, 4)
    PS, CW = 16, 24
    for ct in range(4):
        a.lds(f"ds_read_b64 {vr(PS+2*ct,2)}, v5 offset:{128*ct}", ("c", ct))
        a.lds(f"ds_read_b64 {vr(CW+2*ct,2)}, v4 offset:{128*ct}", ("c", ct))
    INI = 32
    for ct in range(4):
        a.wait(lg=[("c", ct)])
        c0, c1 = H, H + 2
        cfma(a, c0, KP + 2 * ct, CW + 2 * ct, PS + 2 * ct, H + 8)
        cfma(a, c1, K8 + 2 * ct, c0, E0 + 2 * ct, H + 8)
        cmul(a, H + 4, KC + 2 * ct, c0, H + 8)
        cmul(a, H + 6, KC + 2 * ct, c1, H + 10)
        b = INI + 4 * ct
        a.e(f"v_mov_b32 v{b}, v{H+4}")
        a.e(f"v_mov_b32 v{b+1}, v{H+6}")
        a.e(f"v_mov_b32 v{b+2}, v{H+5}")
        a.e(f"v_mov_b32 v{b+3}, v{H+7}")
    PK = 56
    def scan2(cp):
        for j in range(8):
            for ct in (2 * cp, 2 * cp + 1):
                b = INI + 4 * ct
                hr, hi = (b, b + 2) if j == 0 else (R(ct) + 2 * (j - 1), I(ct) + 2 * (j - 1))
                ur, ui = R(ct) + 2 * j, I(ct) + 2 * j
                scan_step(ct, hr, hi, ur, ui, ur, ui, ur, ui)
    def pack(cp):
        k = 0
        for ct in (2 * cp, 2 * cp + 1):
            for comp in range(2):
                base = ACC + 64 * comp + 16 * ct
                neg = "-" if comp else ""
                for sg in range(2):
                    q = PK + 4 * (k % 6); k += 1
                    for tt in range(4):
                        a.e(f"v_cvt_pk_bf16_f32 v{q+tt}, {neg}v{base+4*tt+sg}, {neg}v{base+4*tt+2+sg}")
                    a.lds(f"ds_write_b128 v6, {vr(q,4)} offset:{(32*comp+16*(ct&1))*144+16*sg}", ("w", cp, k))
                    if k >= 5: a.wait(lg=[("w", cp, k - 4)])
    def tread(cp):
        O = ACC + 32 * cp
        for kk, ksl in enumerate((cp, 2 + cp)):
            for mi in range(4):
                o = O + 16 * kk + 4 * mi
                for sub in range(2):
                    a.lds(f"ds_read_b64_tr_b16 {vr(o+2*sub,2)}, v7 offset:{(32*kk+4*sub)*144+32*mi}", ("o", cp, kk, mi))
    def tstore(cp):
        O = ACC + 32 * cp
        for kk, ksl in enumerate((cp, 2 + cp)):
            a.e(f"s_add_u32 s{sT2}, s{sT1}, {4096*ksl}")
            for mi in range(4):
                o = O + 16 * kk + 4 * mi
                a.wait(lg=[("o", cp, kk, mi)])
                a.e(f"buffer_store_dwordx4 {vr(o,4)}, v1, {sq(rA)}, s{sT2} offen offset:{1024*mi} sc1")
    scan2(0); pack(0); scan2(1)
    a.wait(lg_all=True)
    tread(0); pack(1); tstore(0)
    a.wait(lg_all=True)
    tread(1); tstore(1)
    stamp(a, 5)

def compute_p2(a):
    a.lab("L_p2")
    a.reset()
    srd(a, rX, pX, L * D * 2)
    srd(a, rB, pWS, 65536, add=hex(ST1_OFF))
    srd(a, rC, pDSK, D * 2)
    srd(a, rD, pOUT, L * D * 4)
    a.e("v_and_b32 v8, 15, v0")
    a.e("v_lshrrev_b32 v9, 4, v0")
    a.e(f"s_lshl_b32 s{sT0}, s{sMT}, 6")
    a.e(f"s_lshl_b32 s{sT1}, s3, 4")
    a.e(f"s_add_u32 s{sT0}, s{sT0}, s{sT1}")
    a.e(f"s_mul_i32 s{sT1}, s{sT0}, 1280")
    a.e(f"s_mul_i32 s{sT2}, s{sNG}, 160")
    a.e(f"s_add_u32 s{sT1}, s{sT1}, s{sT2}")
    a.e(f"s_lshl_b32 s{sLB}, s{sT1}, 1")
    a.e(f"s_lshl_b32 s{sT0}, s{sT0}, 5")
    a.e("v_mul_u32_u24 v2, 1280, v8")
    a.e("v_lshl_add_u32 v2, v9, 3, v2")
    a.e("v_lshlrev_b32 v14, 1, v2")
    a.e("v_lshlrev_b32 v3, 3, v9")
    a.e("v_lshlrev_b32 v4, 5, v8")
    srd(a, rW, pWS, 131072, add=hex(DONE_OFF))
    a.e(f"s_lshl_b32 s{sT3}, s{sM}, 2")
    a.e(f"s_add_u32 s{sT3}, s{sT3}, s3")
    a.e(f"s_lshl_b32 s{sT3}, s{sT3}, 5")
    a.e(f"s_add_u32 s{sT3}, s{sT3}, s{sGI}")
    a.e(f"s_lshl_b32 s{sT3}, s{sT3}, 7")
    a.e("s_waitcnt vmcnt(0)")
    a.e("s_mov_b32 exec_hi, 0")
    a.e(f"buffer_store_dword v15, v254, {sq(rW)}, s{sT3} offen sc1")
    a.e("s_mov_b64 exec, -1")
    stamp(a, 8)
    XR, DR, STt = 16, 26, 36
    for nt in range(5):
        a.e(f"buffer_load_dwordx2 {vr(XR+2*nt,2)}, v2, {sq(rX)}, s{sT1} offen offset:{32*nt}")
        a.e(f"buffer_load_dwordx2 {vr(DR+2*nt,2)}, v3, {sq(rC)}, s{sT2} offen offset:{32*nt}")
    a.e(f"buffer_load_dwordx2 {vr(STt,2)}, v4, {sq(rB)}, s{sT0} offen sc1")
    a.e(f"s_mul_i32 s{sT0}, s{sMT}, {HA_SLAB}")
    srd(a, rA, pWS, HA_SLAB, add=f"s{sT0}")
    a.e(f"s_lshl_b32 s{sT3}, s3, 10")
    a.e(f"v_add_u32 v10, s{sT3}, v1")
    a.e("v_lshlrev_b32 v11, 3, v0")
    a.e(f"v_add_u32 v11, s{sT3}, v11")
    a.e("v_bfe_u32 v2, v0, 1, 3")
    a.e("v_xor_b32 v2, v2, v9")
    a.e("v_lshlrev_b32 v2, 4, v2")
    a.e("v_lshl_add_u32 v2, v8, 7, v2")
    a.e("v_xor_b32 v3, 64, v2")
    a.e(f"v_add_u32 v4, s{sPIT}, v2")
    a.e(f"v_add_u32 v5, s{sPIT}, v3")
    a.e(f"v_add_u32 v6, s{sPIT}, v4")
    a.e(f"v_add_u32 v7, s{sPIT}, v5")
    a.e("v_add_u32 v248, 20480, v1")
    a.e(f"v_add_u32 v249, s{sPIT}, v248")
    a.e(f"v_add_u32 v250, s{sPIT}, v249")
    XF, AY, AO, WR = 40, 60, 80, 100
    XB = 140
    NXB = 3
    a.e("s_waitcnt vmcnt(0)")
    a.e(f"s_mov_b32 s{sT2}, 0xffff0000")
    a.e(f"v_rcp_f32 v{STt+1}, v{STt+1}")
    for i in range(10):
        a.e(f"v_lshlrev_b32 v{XF+2*i}, 16, v{XR+i}")
        a.e(f"v_and_b32 v{XF+2*i+1}, s{sT2}, v{XR+i}")
        t = AY + 2 * i
        a.e(f"v_pk_add_f32 {vr(t,2)}, {vr(XF+2*i,2)}, {vr(STt,2)} op_sel_hi:[1,0] neg_lo:[0,1] neg_hi:[0,1]")
        a.e(f"v_cvt_pk_bf16_f32 v{t+1}, v{t}, v{t+1}")
        a.e(f"v_lshlrev_b32 v{t}, 16, v{t+1}")
        a.e(f"v_and_b32 v{t+1}, s{sT2}, v{t+1}")
        a.e(f"v_pk_mul_f32 {vr(t,2)}, {vr(t,2)}, {vr(STt,2)} op_sel:[0,1] op_sel_hi:[1,1]")
        a.e(f"v_cvt_pk_bf16_f32 v{t+1}, v{t}, v{t+1}")
        a.e(f"v_lshlrev_b32 v{t}, 16, v{t+1}")
        a.e(f"v_and_b32 v{t+1}, s{sT2}, v{t+1}")
        a.e(f"v_lshlrev_b32 v38, 16, v{DR+i}")
        a.e(f"v_and_b32 v39, s{sT2}, v{DR+i}")
        a.e(f"v_pk_mul_f32 {vr(t,2)}, {vr(t,2)}, v[38:39]")
        a.e(f"v_cvt_pk_bf16_f32 v{t+1}, v{t}, v{t+1}")
        a.e(f"v_lshlrev_b32 v{t}, 16, v{t+1}")
        a.e(f"v_and_b32 v{t+1}, s{sT2}, v{t+1}")
    a.bar()
    stamp(a, 9)
    def steps(s):
        out = []
        if s < 10: out += [("y", k) for k in range(4)]
        out += [("o", k) for k in range(5) if not (s == 10 and k == 2)]
        return out
    def xreg(s, kind, k): return XB + 36 * (s % NXB) + (4 * k if kind == "y" else 16 + 4 * k)
    def xload(s, kind, k):
        r = xreg(s, kind, k)
        slot = 4 * s + k if kind == "y" else 40 + 5 * s + k
        a.e(f"s_mov_b32 s{sT0}, {slot*4096}")
        if kind == "o" and k == 4:
            a.vmem(f"buffer_load_dwordx2 {vr(r,2)}, v11, {sq(rA)}, s{sT0} offen sc1", ("X", s, kind, k))
            a.vmem(f"buffer_load_dwordx2 {vr(r+2,2)}, v11, {sq(rA)}, s{sT0} offen offset:512 sc1", ("X", s, kind, k))
        else:
            a.vmem(f"buffer_load_dwordx4 {vr(r,4)}, v10, {sq(rA)}, s{sT0} offen sc1", ("X", s, kind, k))
    for s in range(NXB):
        for kind, k in steps(s): xload(s, kind, k)
    n = 0
    for s in range(11):
        sl = p2slot(s)
        seq = [(kind, k, nt) for kind, k in steps(s) for nt in range(5)]
        def wr(i):
            kind, k, nt = seq[i]
            d = vr(WR + 4 * ((n + i) % 10), 4)
            if kind == "y":
                reg = 2 + 2 * sl + (k & 1)
                off = (k >> 1) * 10240 + nt * 2048
            else:
                reg = 248 + sl; off = k * 5120 + nt * 1024
            a.lds(f"ds_read_b128 {d}, v{reg} offset:{off}", ("W", s, i))
        a.bar()
        for i in range(min(9, len(seq))): wr(i)
        for i, (kind, k, nt) in enumerate(seq):
            a.wait(vm=[("X", s, kind, k)], lg=[("W", s, i)])
            acc = vr((AY if kind == "y" else AO) + 4 * nt, 4)
            c = "0" if (kind == "o" and s == 0 and k == 0) else acc
            a.e(f"v_mfma_f32_16x16x32_bf16 {acc}, {vr(WR+4*((n+i)%10),4)}, {vr(xreg(s,kind,k),4)}, {c}")
            if i + 9 < len(seq): wr(i + 9)
            if nt == 4 and s + NXB < 11 and (kind, k) in steps(s + NXB): xload(s + NXB, kind, k)
        n += len(seq)
    stamp(a, 10)
    a.e(f"s_mov_b32 s{sT0}, {hex(f2u(-1.4426950408889634))}")
    a.e("s_nop 7")
    T = 100
    for i in range(10):
        a.e(f"v_pk_mul_f32 {vr(T+2*i,2)}, {vr(AO+2*i,2)}, s[{sT0}:{sT1}] op_sel_hi:[1,0]")
    for i in range(20):
        a.e(f"v_exp_f32 v{T+i}, v{T+i}")
    for i in range(10):
        a.e(f"v_pk_mul_f32 {vr(AY+2*i,2)}, {vr(AY+2*i,2)}, {vr(AO+2*i,2)}")
    for i in range(10):
        a.e(f"v_pk_add_f32 {vr(T+2*i,2)}, {vr(T+2*i,2)}, 1.0 op_sel_hi:[1,0]")
    for nt in range(5):
        for r in range(4):
            a.e(f"v_rcp_f32 v{T+4*nt+r}, v{T+4*nt+r}")
        a.e("s_nop 0")
        for h in range(2):
            i = 2 * nt + h
            a.e(f"v_pk_fma_f32 {vr(AY+2*i,2)}, {vr(AY+2*i,2)}, {vr(T+2*i,2)}, {vr(XF+2*i,2)}")
        a.e(f"buffer_store_dwordx4 {vr(AY+4*nt,4)}, v14, {sq(rD)}, s{sLB} offen offset:{64*nt}")
    stamp(a, 11)
    stamp_flush(a)
    a.e("s_endpgm")

def helper(a, M):
    ffn = M is FFN
    nm = M.name
    XV, WV = 16, 24
    srd(a, rX, pX, L * D * 2)
    a.e("v_lshrrev_b32 v2, 3, v0")
    a.e("v_and_b32 v3, 7, v0")
    a.e("v_lshrrev_b32 v4, 4, v0")
    a.e("v_xor_b32 v3, v3, v4")
    a.e("v_lshlrev_b32 v3, 4, v3")
    a.e("v_xor_b32 v4, 64, v3")
    if ffn:
        a.e("v_mov_b32 v5, v2")
    else:
        a.e("v_lshrrev_b32 v5, 2, v2")
        a.e("v_lshlrev_b32 v5, 4, v5")
        a.e("v_and_b32 v6, 1, v2")
        a.e("v_lshl_add_u32 v5, v6, 3, v5")
        a.e("v_bfe_u32 v6, v2, 1, 1")
        a.e("v_add_u32 v5, v5, v6")
    a.e(f"s_lshl_b32 s{sT0}, s{sM}, 8")
    a.e(f"s_lshl_b32 s{sT1}, s{sHW}, 6")
    a.e(f"s_add_u32 s{sT0}, s{sT0}, s{sT1}")
    a.e(f"v_add_u32 v5, s{sT0}, v5")
    a.e("v_mul_u32_u24 v5, 1280, v5")
    a.e("v_add_u32 v6, v5, v3")
    a.e("v_add_u32 v7, v5, v4")
    for i in range(8):
        rows = 8 * i if ffn else 32 * (i & 1) + 2 * (i >> 1)
        a.e(f"v_add_u32 v{XV+i}, {rows*1280}, v{6+(i&1)}")
    a.e(f"s_cmp_ge_u32 s{sHW}, 2")
    if ffn:
        a.e(f"s_cselect_b32 s{rW}, s{pW3}, s{pW1}")
        a.e(f"s_cselect_b32 s{rW+1}, s{pW3+1}, s{pW1+1}")
        a.e(f"s_mov_b32 s{rW+2}, {D*F*2}")
        a.e(f"s_mov_b32 s{rW+3}, 0x00020000")
        a.e(f"s_sub_u32 s{sG}, s{sGI}, 10")
        a.e(f"s_mul_i32 s{sT0}, s{sG}, 160")
        a.e(f"s_min_u32 s{sT0}, s{sT0}, 3296")
        a.e(f"s_and_b32 s{sT1}, s{sHW}, 1")
        a.e(f"s_mul_i32 s{sT1}, s{sT1}, {32*3456}")
        a.e(f"s_add_u32 s{sT0}, s{sT0}, s{sT1}")
        for n in range(5):
            a.e(f"v_add_u32 v8, {64*n}, v0")
            a.e("v_mul_u32_u24 v9, 6554, v8")
            a.e("v_lshrrev_b32 v9, 16, v9")
            a.e("v_mul_u32_u24 v10, 10, v9")
            a.e("v_sub_u32 v10, v8, v10")
            a.e("v_mul_u32_u24 v9, 3456, v9")
            a.e("v_lshl_add_u32 v9, v10, 4, v9")
            a.e(f"v_add_u32 v{WV+n}, s{sT0}, v9")
        a.e(f"s_mul_i32 s{sLB}, s{sHW}, 5120")
        NW = 5; WSTEP = 64 * 3456
    else:
        a.e(f"s_cselect_b32 s{rW}, s{pBIM}, s{pBRE}")
        a.e(f"s_cselect_b32 s{rW+1}, s{pBIM+1}, s{pBRE+1}")
        a.e(f"s_mov_b32 s{rW+2}, {P*D*2}")
        a.e(f"s_mov_b32 s{rW+3}, 0x00020000")
        a.e(f"s_mov_b32 s{sG}, s{sGI}")
        a.e(f"s_lshl_b32 s{sT0}, s{sG}, 6")
        a.e(f"s_and_b32 s{sT1}, s{sHW}, 1")
        a.e(f"s_lshl_b32 s{sT1}, s{sT1}, 5")
        a.e(f"s_add_u32 s{sT0}, s{sT0}, s{sT1}")
        a.e(f"v_add_u32 v5, s{sT0}, v2")
        a.e("v_mul_u32_u24 v5, 1280, v5")
        a.e("v_add_u32 v6, v5, v3")
        a.e("v_add_u32 v7, v5, v4")
        for n in range(4):
            a.e(f"v_add_u32 v{WV+n}, {8*n*1280}, v{6+(n&1)}")
        a.e(f"s_lshl_b32 s{sLB}, s{sHW}, 12")
        NW = 4; WSTEP = 128
    a.e(f"s_lshl_b32 s77, s{sHW}, 13")
    def issue_w(ls, i, so=None, tag=None):
        base = (ls % 3) * M.slot
        a.e(f"s_add_u32 m0, s{sLB}, {base+M.woff+1024*i}")
        if so is None:
            a.e(f"s_mov_b32 s{sWO}, {WSTEP*ls}"); so = sWO
        else:
            a.e("s_nop 0")
        a.vmem(f"buffer_load_dwordx4 v{WV+i}, {sq(rW)}, s{so} offen lds", tag or ("S", ls))
    def issue_x(ls, i):
        base = (ls % 3) * M.slot
        a.e(f"s_add_u32 m0, s77, {base+1024*i}")
        a.e(f"s_movk_i32 s{sXO}, {128*ls}")
        a.vmem(f"buffer_load_dwordx4 v{XV+i}, {sq(rX)}, s{sXO} offen lds", ("S", ls))
    def issue_stage(ls, w=True, x=True, part=None):
        ops = []
        for i in range(8):
            if i < NW and w: ops.append((issue_w, i))
            if x: ops.append((issue_x, i))
        h = OPT.get("half", 6)
        if part == 0: ops = ops[:h]
        if part == 1: ops = ops[h:]
        for f, i in ops: f(ls, i)
    stamp(a, 4)
    issue_stage(0)
    stamp(a, 5)
    srd(a, rA, pWS, 131072, add=hex(DONE_OFF))
    if not ffn:
        a.e(f"s_lshl_b32 s{sT0}, s{sG}, 13")
        a.e(f"s_add_u32 s{sT0}, s{sT0}, {hex(AGG_OFF)}")
        srd(a, rB, pWS, 8192, add=f"s{sT0}")
        a.e(f"s_lshl_b32 s79, s{sM}, 10")
    a.e("s_waitcnt lgkmcnt(0)")
    a.e(f"s_add_u32 s{sTAG}, s{sTAG}, 0x9E3779B1")
    issue_stage(1, part=0)
    stamp(a, 6)
    CF, CA, ONE = 40, 64, 36
    for i in range(4): a.e(f"v_mov_b32 v{ONE+i}, 0x3f803f80")
    a.e("v_lshrrev_b32 v9, 4, v0")
    if ffn:
        a.e("v_bfe_u32 v8, v0, 2, 2")
        a.e("v_lshl_add_u32 v8, v9, 2, v8")
        a.e("v_mul_u32_u24 v8, 160, v8")
        a.e("v_and_b32 v10, 3, v0")
        a.e("v_lshl_add_u32 v8, v10, 3, v8")
    else:
        a.e("v_and_b32 v10, 15, v0")
        a.e("v_lshlrev_b32 v8, 7, v10")
        a.e("v_bfe_u32 v10, v0, 1, 3")
        a.e("v_xor_b32 v10, v10, v9")
        a.e("v_lshl_add_u32 v8, v10, 4, v8")
    a.e(f"s_add_u32 s{sT0}, s{sLB}, {M.woff}")
    a.e(f"v_add_u32 v8, s{sT0}, v8")
    a.e(f"v_add_u32 v11, {2*M.slot}, v8")
    if not ffn:
        a.e("v_xor_b32 v13, 64, v8")
        a.e("v_xor_b32 v14, 64, v11")
    for i in range(20): a.e(f"v_mov_b32 v{CA+i}, 0")
    def colsum(st):
        reg, off = (8, st * M.slot) if st < 2 else (11, 0)
        n = 5 if ffn else 4
        for t in range(n):
            if ffn:
                a.lds(f"ds_read_b64_tr_b16 {vr(CF+4*t,2)}, v{reg} offset:{off+32*t}", ("c", t))
                a.lds(f"ds_read_b64_tr_b16 {vr(CF+4*t+2,2)}, v{reg} offset:{off+32*t+2560}", ("c", t))
            else:
                r2 = reg if t < 2 else {8: 13, 11: 14}[reg]
                a.lds(f"ds_read_b128 {vr(CF+4*t,4)}, v{r2} offset:{off+2048*(t&1)}", ("c", t))
        for t in range(n):
            a.wait(lg=[("c", t)])
            c = vr(CA + 4 * (t if ffn else t & 1), 4)
            a.e(f"v_mfma_f32_16x16x32_bf16 {c}, {vr(ONE,4)}, {vr(CF+4*t,4)}, {c}")
    srd(a, rC, pWS, 32 * 16384, add=hex(CS_OFF))
    srd(a, rD, pWS, 32768, add=hex(FLAG_OFF))
    a.e(f"s_lshl_b32 s{sT2}, s{sGI}, 14")
    a.e(f"s_lshl_b32 s{sT1}, s{sM}, {11 if ffn else 10}")
    a.e(f"s_add_u32 s{sT2}, s{sT2}, s{sT1}")
    a.e(f"s_lshr_b32 s{sT1}, s{sHW}, 1")
    a.e(f"s_lshl_b32 s{sT1}, s{sT1}, 9")
    a.e(f"s_add_u32 s{sT2}, s{sT2}, s{sT1}")
    a.e(f"s_and_b32 s{sT1}, s{sHW}, 1")
    a.e(f"s_lshl_b32 s{sT1}, s{sT1}, {10 if ffn else 7}")
    a.e(f"s_add_u32 s78, s{sT2}, s{sT1}")
    a.e("v_lshlrev_b32 v9, 2, v0")
    a.e("v_lshlrev_b32 v12, 7, v0")
    a.e(f"s_lshl_b32 s88, s{sHW}, 13")
    a.e(f"s_add_u32 s{sT3}, s{sM}, 2")
    a.e(f"s_mul_i32 s{sT3}, s{sT3}, {WSTEP}")
    a.wait(vm=[("S", 0)])
    stamp(a, 12)
    a.bar()
    stamp(a, 1)
    issue_stage(1, part=1)
    for i in range(NW): issue_w(2, i, so=sT3, tag="slab")
    a.e(f"s_cmp_lg_u32 s{sM}, 0")
    a.e(f"s_cbranch_scc1 L_h{nm}_cs0")
    colsum(0)
    a.lab(f"L_h{nm}_cs0")
    a.wait(vm=[("S", 1)])
    stamp(a, 13)
    a.bar()
    stamp(a, 22)
    relay_loads(a)
    issue_stage(2, w=False)
    a.e(f"s_cmp_lg_u32 s{sM}, 0")
    a.e(f"s_cbranch_scc1 L_h{nm}_cs1")
    colsum(1)
    a.lab(f"L_h{nm}_cs1")
    a.wait(vm=["slab"])
    colsum(2)
    issue_stage(2, x=False)
    for t in range(1, 4 if ffn else 2):
        m = 0xffff << (16 * t)
        a.e(f"s_mov_b32 exec_lo, {hex(m & 0xffffffff)}")
        a.e(f"s_mov_b32 exec_hi, {hex(m >> 32)}")
        a.e(f"v_mov_b32 v{CA}, v{CA+4*t}")
    a.e("s_mov_b64 exec, -1")
    if ffn:
        a.vmem(f"buffer_store_dword v{CA}, v9, {sq(rC)}, s78 offen sc1", "cs")
    a.e("s_mov_b32 exec_hi, 0")
    if ffn:
        a.vmem(f"buffer_store_dword v{CA+16}, v9, {sq(rC)}, s78 offen offset:256 sc1", "cs")
    else:
        a.vmem(f"buffer_store_dword v{CA}, v9, {sq(rC)}, s78 offen sc1", "cs")
    a.e("s_mov_b64 exec, -1")
    relay_stores(a)
    issue_stage(3, part=0)
    a.wait(vm=[("S", 2)])
    stamp(a, 14)
    a.bar()
    stamp(a, 23)
    issue_stage(3, part=1)
    issue_stage(4, part=0)
    a.wait(vm=[("S", 3), "cs", "rs"])
    stamp(a, 15)
    a.bar()
    stamp(a, 24)
    issue_stage(4, part=1)
    for b in range(3, 8):
        issue_stage(b + 2)
        if b == OPT.get("ctouch", 5): p2_touch(a, 0)
        if b == 6:
            a.vmem(f"buffer_load_dword v32, v12, {sq(rD)}, s88 offen sc1", "fl")
        if b == 7:
            a.wait(vm=["fl"])
            a.e(f"s_mov_b32 s{sT0}, 0")
            a.lab(f"L_h{nm}_fl")
            a.e(f"v_cmp_ne_u32 vcc, s{sTAG}, v32")
            a.e(f"s_cbranch_vccz L_h{nm}_flok")
            a.e("s_sleep 2")
            a.e(f"buffer_load_dword v32, v12, {sq(rD)}, s88 offen sc1")
            a.e("s_waitcnt vmcnt(0)")
            a.e(f"s_add_u32 s{sT0}, s{sT0}, 1")
            a.e(f"s_cmp_lt_u32 s{sT0}, 0x40000")
            a.e(f"s_cbranch_scc1 L_h{nm}_fl")
            a.lab(f"L_h{nm}_flok")
        a.wait(vm=[("S", b + 1)])
        stamp(a, 13 + b)
        a.bar()
        stamp(a, 22 + b)
    stamp(a, 2)
    srd(a, rD, pWS, 65536, add=hex(ST1_OFF))
    if ffn:
        a.e("v_lshlrev_b32 v10, 5, v0")
    else:
        a.e("v_bfe_u32 v10, v0, 2, 2")
        a.e("v_lshlrev_b32 v10, 4, v10")
        a.e("v_and_b32 v11, 1, v0")
        a.e("v_lshl_add_u32 v10, v11, 3, v10")
        a.e("v_lshrrev_b32 v11, 4, v0")
        a.e("v_lshl_add_u32 v10, v11, 1, v10")
        a.e("v_bfe_u32 v11, v0, 1, 1")
        a.e("v_add_u32 v10, v10, v11")
        a.e("v_lshlrev_b32 v10, 5, v10")
    a.e(f"s_lshl_b32 s{sT0}, s{sM}, 13")
    a.e(f"s_lshl_b32 s{sT1}, s{sHW}, 11")
    a.e(f"s_add_u32 s{sT0}, s{sT0}, s{sT1}")
    a.vmem(f"buffer_load_dwordx2 v[32:33], v10, {sq(rD)}, s{sT0} offen sc1", "st")
    a.e(f"s_lshl_b32 s{sT0}, s{sGI}, 14")
    a.e(f"s_lshl_b32 s{sT1}, s{sHW}, 8")
    if ffn:
        a.e(f"s_add_u32 s{sT0}, s{sT0}, s{sT1}")
        a.e(f"s_bitcmp1_b32 s{sHW}, 0")
        a.e(f"s_cselect_b32 s{sT2}, 0x7c, -1")
        a.e(f"v_and_b32 v13, s{sT2}, v9")
    else:
        a.e(f"s_and_b32 s{sT2}, s{sT1}, 0x200")
        a.e(f"s_add_u32 s{sT0}, s{sT0}, s{sT2}")
        a.e("v_mov_b32 v13, v9")
    NP = 16 if ffn else 8
    for p in range(NP):
        if p and p % 4 == 0: a.e(f"s_add_u32 s{sT0}, s{sT0}, 4096")
        a.vmem(f"buffer_load_dword v{40+p}, v13, {sq(rC)}, s{sT0} offen offset:{1024*(p&3)} sc1", "cp")
    p2_helper_setup(a)
    a.e(f"s_or_b32 s{sT4}, s2, s{sHW}")
    a.e(f"s_cmp_lg_u32 s{sT4}, 0")
    a.e(f"s_cbranch_scc1 L_h{nm}_nonce")
    srd(a, rD, pWS, 128, add=hex(NONCE_OFF))
    a.e(f"v_mov_b32 v37, s{sTAG}")
    a.e(f"buffer_store_dword v37, v9, {sq(rD)}, 0 offen sc1")
    a.lab(f"L_h{nm}_nonce")
    p2_touch(a, 1)
    p2_issue(a, 0, part=0)
    a.wait(vm=[("S", 9)])
    stamp(a, 21)
    a.bar()
    stamp(a, 30)
    a.wait(vm=["st"])
    if ffn:
        a.e(f"s_lshl_b32 s{sT0}, s{sHW}, 9")
        a.e(f"s_add_u32 s{sT0}, s{sT0}, {M.tab_st}")
        a.e("v_lshlrev_b32 v10, 3, v0")
        a.e(f"v_add_u32 v10, s{sT0}, v10")
        a.e("ds_write_b64 v10, v[32:33]")
    else:
        a.e("v_rcp_f32 v33, v33")
        a.e(f"s_add_u32 s{sT0}, s{sT1}, {M.tab_rs}")
        a.e(f"v_add_u32 v10, s{sT0}, v9")
        a.e("v_mul_f32 v32, v32, v33")
        a.e("ds_write_b32 v10, v33")
        a.e("ds_write_b32 v10, v32 offset:1024")
    a.wait(vm=["cp"])
    for p in range(1, NP):
        a.e(f"v_add_f32 v40, v40, v{40+p}")
    a.e(f"s_add_u32 s{sT0}, s{sT1}, {M.tab_cs}")
    a.e(f"v_add_u32 v10, s{sT0}, v9")
    a.e("ds_write_b32 v10, v40")
    p2_issue(a, 0, part=1)
    p2_issue(a, 1, part=0)
    a.e("s_waitcnt lgkmcnt(0)")
    stamp(a, 31)
    a.bar()
    stamp(a, 3)
    p2_issue(a, 1, part=1)
    if ffn:
        p2_issue(a, 2)
    else:
        ssm_exchange(a)
    a.e("s_branch L_h_p2")

RLV = 96
def relay_loads(a):
    srd(a, 80, pW2, F * D * 2)
    a.e(f"s_lshr_b32 s{sT0}, s2, 2")
    a.e(f"s_cmp_ge_u32 s{sT0}, 52")
    a.e(f"s_addc_u32 s{sT0}, s{sT0}, 0")
    a.e(f"s_mul_i32 s{sT1}, s{sT0}, 52")
    a.e(f"s_lshr_b32 s{sT1}, s{sT1}, 8")
    a.e(f"s_mul_i32 s{sT2}, s{sT1}, 5")
    a.e(f"s_sub_u32 s{sT2}, s{sT0}, s{sT2}")
    a.e(f"s_lshl_b32 s{sT3}, s{sT2}, 5")
    a.e(f"s_cmp_ge_u32 s{sT2}, 2")
    a.e(f"s_cselect_b32 s{sT4}, 16, 0")
    a.e(f"s_add_u32 s{sT3}, s{sT3}, s{sT4}")
    a.e(f"s_cmp_eq_u32 s{sT2}, 4")
    a.e(f"s_cselect_b32 s{sT3}, 64, s{sT3}")
    a.e(f"s_cselect_b32 s{sT4}, 80, 16")
    a.e(f"s_cmp_eq_u32 s{sT0}, 53")
    a.e(f"s_cselect_b32 s{sT3}, 80, s{sT3}")
    a.e(f"s_cmp_eq_u32 s{sT0}, 54")
    a.e(f"s_cselect_b32 s{sT4}, 48, s{sT4}")
    a.e(f"s_mul_i32 s{sT1}, s{sT1}, 160")
    a.e(f"s_add_u32 s{sT3}, s{sT3}, s{sT1}")
    a.e(f"s_and_b32 s{sT2}, s2, 3")
    a.e(f"s_lshl_b32 s{sT1}, s{sT2}, 2")
    a.e(f"s_add_u32 s{sT3}, s{sT3}, s{sT1}")
    a.e(f"s_add_u32 s{sT4}, s{sT4}, s{sT3}")
    a.e(f"s_mul_i32 s{sT3}, s{sT3}, 1280")
    a.e(f"s_mul_i32 s{sT4}, s{sT4}, 1280")
    a.e(f"s_mul_i32 s89, s{sT0}, 5120")
    a.e(f"s_lshl_b32 s{sT2}, s{sT2}, 8")
    a.e(f"s_add_u32 s89, s89, s{sT2}")
    a.e("s_cmp_ge_u32 s2, 216")
    a.e(f"s_cselect_b32 s89, 0x7000000, s89")
    a.e(f"s_cselect_b32 s{sT3}, 0x7000000, s{sT3}")
    a.e(f"s_cselect_b32 s{sT4}, 0x7000000, s{sT4}")
    a.e(f"s_lshl_b32 s{sT1}, s{sHW}, 6")
    for u in range(3):
        c, o = RLV + 24 + u, RLV + 28 + u
        a.e(f"v_add_u32 v{c}, s{sT1}, v0")
        if u: a.e(f"v_add_u32 v{c}, {256*u}, v{c}")
        a.e(f"v_lshrrev_b32 v92, 4, v{c}")
        a.e("v_mul_u32_u24 v93, 52, v92")
        a.e("v_lshrrev_b32 v93, 8, v93")
        a.e("v_mul_u32_u24 v94, 5, v93")
        a.e("v_sub_u32 v94, v92, v94")
        a.e(f"v_mul_u32_u24 v93, {WB_SLAB}, v93")
        a.e("v_lshl_add_u32 v93, v94, 10, v93")
        a.e("v_and_b32 v94, 15, v0")
        a.e(f"v_lshl_add_u32 v{o}, v94, 4, v93")
        a.e(f"v_lshlrev_b32 v{c}, 1, v{c}")
        if u == 2:
            a.e(f"v_cmp_lt_u32 vcc, 1279, v{c}")
            a.e("v_mov_b32 v92, 0x7000000")
            a.e("s_nop 0")
            a.e(f"v_cndmask_b32 v{c}, v{c}, v92, vcc")
        for j in range(8):
            so = sT3 if j < 4 else sT4
            a.vmem(f"buffer_load_ushort v{RLV+8*u+j}, v{c}, {sq(80)}, s{so} offen offset:{1280*(j&3)}", ("rl", u))
def relay_stores(a):
    srd(a, 84, pWS, 8 * WB_SLAB, add=hex(WB_OFF))
    for u in range(3):
        a.wait(vm=[("rl", u)])
        for jp in range(4):
            a.e(f"v_lshl_or_b32 v{RLV+32+4*u+jp}, v{RLV+8*u+2*jp+1}, 16, v{RLV+8*u+2*jp}")
        a.vmem(f"buffer_store_dwordx4 {vr(RLV+32+4*u,4)}, v{RLV+28+u}, {sq(84)}, s89 offen sc1", "rs")

def ssm_exchange(a):
    M = SSM
    EL = M.scr
    a.bar()
    a.e(f"s_cmp_lg_u32 s{sHW}, 0")
    a.e("s_cbranch_scc1 L_x_skip")
    X = 64; L16 = 60; L256 = 62
    a.e("v_lshlrev_b32 v3, 3, v0")
    a.e(f"v_add_u32 v3, {EL}, v3")
    sv = list(a.lg); a.lg = []
    a.lds(f"ds_read_b64 {vr(L16,2)}, v3 offset:9728", "k")
    a.lds(f"ds_read_b64 {vr(L256,2)}, v3 offset:10240", "k")
    for s in range(16):
        a.lds(f"ds_read_b64 {vr(X+2*s,2)}, v3 offset:{512*s}", ("E", s))
    a.e(f"s_mov_b32 s{sT0}, s{sTAG}")
    for s in range(1, 16):
        a.wait(lg=[("E", s)])
        cfma(a, X + 2 * s, L16, X + 2 * (s - 1), X + 2 * s, 58)
    a.e(f"v_mov_b32 v96, v{X+30}")
    a.e(f"v_mov_b32 v97, s{sT0}")
    a.e(f"v_mov_b32 v98, v{X+31}")
    a.e(f"v_mov_b32 v99, s{sT0}")
    a.e(f"buffer_store_dwordx4 v[96:99], v1, {sq(rB)}, s79 offen sc1")
    a.e("v_mov_b32 v58, 0")
    a.e("v_mov_b32 v59, 0")
    a.e("ds_write_b64 v3, v[58:59]")
    for s in range(1, 16):
        a.e(f"ds_write_b64 v3, {vr(X+2*(s-1),2)} offset:{512*s}")
    for i in range(1, 8):
        a.e(f"s_sub_u32 s{sT1}, s79, {1024*i}")
        a.e(f"s_cmp_ge_u32 s{sM}, {i}")
        a.e(f"s_cselect_b32 s{79+i}, s{sT0}, 0")
        a.e(f"s_cselect_b32 s{17+i}, s{sT1}, 0x10000")
    G = 100
    a.e(f"s_mov_b32 s{sT1}, 0")
    a.lab("L_x_poll")
    for i in range(1, 8):
        a.e(f"buffer_load_dwordx4 {vr(G+4*(i-1),4)}, v1, {sq(rB)}, s{17+i} offen sc1")
    a.e("s_waitcnt vmcnt(0)")
    a.e("v_mov_b32 v58, 0")
    for i in range(1, 8):
        a.e(f"v_xor_b32 v59, s{79+i}, v{G+4*(i-1)+1}")
        a.e(f"v_xor_b32 v57, s{79+i}, v{G+4*(i-1)+3}")
        a.e("v_or3_b32 v58, v58, v59, v57")
    a.e("v_cmp_ne_u32 vcc, 0, v58")
    a.e("s_cbranch_vccz L_x_ok")
    a.e("s_sleep 1")
    a.e(f"s_add_u32 s{sT1}, s{sT1}, 1")
    a.e(f"s_cmp_lt_u32 s{sT1}, 0x40000")
    a.e("s_cbranch_scc1 L_x_poll")
    a.lab("L_x_ok")
    for i in range(1, 8):
        a.e(f"v_mov_b32 v{G+4*(i-1)+1}, v{G+4*(i-1)+2}")
    for i in range(6, 0, -1):
        cfma(a, G + 4 * (i - 1), L256, G + 4 * i, G + 4 * (i - 1), 58)
    a.e(f"ds_write_b64 v3, {vr(G,2)} offset:8192")
    a.e("s_waitcnt lgkmcnt(0)")
    a.lab("L_x_skip")
    a.lg = []
    a.bar()

def p2_helper_setup(a):
    a.e(f"s_cmp_ge_u32 s{sHW}, 2")
    a.e(f"s_cselect_b32 s{rX}, s{pCIM}, s{pCRE}")
    a.e(f"s_cselect_b32 s{rX+1}, s{pCIM+1}, s{pCRE+1}")
    a.e(f"s_mov_b32 s{rX+2}, {D*P*2}")
    a.e(f"s_mov_b32 s{rX+3}, 0x00020000")
    a.e(f"s_mul_i32 s{sT4}, s{sNG}, {WB_SLAB}")
    a.e(f"s_add_u32 s{sT4}, s{sT4}, {hex(WB_OFF)}")
    srd(a, rW, pWS, WB_SLAB, add=f"s{sT4}")
    a.e(f"s_and_b32 s{sT4}, s{sHW}, 1")
    a.e(f"s_mul_i32 s{sT5}, s{sT4}, 40")
    a.e(f"s_mul_i32 s{sXO}, s{sNG}, 80")
    a.e(f"s_add_u32 s{sT5}, s{sT5}, s{sXO}")
    a.e(f"v_add_u32 v5, s{sT5}, v2")
    a.e("v_mul_u32_u24 v5, 1280, v5")
    a.e(f"s_lshl_b32 s{sT4}, s{sT4}, 6")
    a.e(f"v_xor_b32 v6, s{sT4}, v3")
    a.e("v_xor_b32 v7, 64, v6")
    a.e("v_add_u32 v6, v5, v6")
    a.e("v_add_u32 v7, v5, v7")
    for i in range(5):
        a.e(f"v_add_u32 v{16+i}, {8*i*1280}, v{6+(i&1)}")
    a.e(f"s_mul_i32 s4, s{sHW}, 5120")
    a.e(f"s_lshl_b32 s7, s{sHW}, 10")
    a.e(f"s_lshl_b32 s10, s{sHW}, 8")
    a.e("v_add_u32 v21, s7, v1")
    a.e("v_add_u32 v22, s10, v1")
    for b in (4, 7, 10):
        a.e(f"s_add_u32 s{b+1}, s{b}, s{sPIT}")
        a.e(f"s_add_u32 s{b+2}, s{b+1}, s{sPIT}")

def p2_touch(a, part):
    if OPT.get("notouch"): return
    if part == 1:
        return p2_touch_wb(a)
    a.e(f"s_cmp_ge_u32 s{sHW}, 2")
    a.e(f"s_cselect_b32 s80, s{pCIM}, s{pCRE}")
    a.e(f"s_cselect_b32 s81, s{pCIM+1}, s{pCRE+1}")
    a.e(f"s_mov_b32 s82, {D*P*2}")
    a.e(f"s_mov_b32 s83, 0x00020000")
    a.e(f"s_and_b32 s{sT4}, s{sMT}, 7")
    a.e(f"s_mul_i32 s{sT5}, s{sT4}, 10")
    a.e(f"s_mul_i32 s{sT4}, s{sNG}, 80")
    a.e(f"s_add_u32 s{sT5}, s{sT5}, s{sT4}")
    a.e(f"s_and_b32 s{sT4}, s{sHW}, 1")
    a.e(f"s_mul_i32 s{sT4}, s{sT4}, 5")
    a.e(f"s_add_u32 s{sT5}, s{sT5}, s{sT4}")
    a.e(f"s_mul_i32 s{sT5}, s{sT5}, 1280")
    a.e("v_min_u32 v11, 49, v0")
    a.e("v_lshlrev_b32 v11, 7, v11")
    a.vmem(f"buffer_load_dword v34, v11, {sq(80)}, s{sT5} offen", "tch")
def p2_touch_wb(a):
    a.e(f"s_and_b32 s{sT4}, s{sMT}, 7")
    a.e(f"s_lshl_b32 s{sT4}, s{sT4}, 2")
    a.e(f"s_add_u32 s{sT4}, s{sT4}, s{sHW}")
    a.e(f"s_mul_i32 s{sT4}, s{sT4}, {69*128}")
    a.e("v_lshlrev_b32 v11, 7, v0")
    a.vmem(f"buffer_load_dword v35, v11, {sq(rW)}, s{sT4} offen sc1", "tch")
    a.e("v_min_u32 v11, 4, v0")
    a.e("v_lshlrev_b32 v11, 7, v11")
    a.e(f"s_add_u32 s{sT4}, s{sT4}, 8192")
    a.vmem(f"buffer_load_dword v36, v11, {sq(rW)}, s{sT4} offen sc1", "tch")

def p2_issue(a, s, part=None):
    sl = p2slot(s)
    ops = []
    for i in range(7):
        if i < 5 and s < 10: ops.append(("y", i))
        ops.append(("o", i))
    if part == 0: ops = ops[:6]
    if part == 1: ops = ops[6:]
    for kind, i in ops:
        if kind == "y":
            a.e(f"s_add_u32 m0, s{4+sl}, {1024*i}")
            a.e(f"s_movk_i32 s{sT4}, {128*s}")
            a.vmem(f"buffer_load_dwordx4 v{16+i}, {sq(rX)}, s{sT4} offen lds", ("Q", s))
        elif i < 6:
            a.e(f"s_add_u32 m0, s{7+sl}, {20480+4096*i}")
            a.e(f"s_mov_b32 s{sT5}, {25600*s+4096*i}")
            a.vmem(f"buffer_load_dwordx4 v21, {sq(rW)}, s{sT5} offen sc1 lds", ("Q", s))
        else:
            a.e(f"s_add_u32 m0, s{10+sl}, {20480+24576}")
            a.e(f"s_mov_b32 s{sT5}, {25600*s+24576}")
            a.e("s_mov_b64 exec, 0xffff")
            a.vmem(f"buffer_load_dwordx4 v22, {sq(rW)}, s{sT5} offen sc1 lds", ("Q", s))
            a.e("s_mov_b64 exec, -1")

def helper_p2(a):
    a.lab("L_h_p2")
    a.vm = []
    a.lg = []
    a.e(f"s_cmp_lg_u32 s{sHW}, 0")
    a.e("s_cbranch_scc1 L_h_polled")
    a.e(f"s_lshl_b32 s{sT0}, s{sMT}, 12")
    a.e("v_and_b32 v10, 31, v0")
    a.e("v_lshlrev_b32 v10, 7, v10")
    a.e(f"s_mov_b32 s{sT1}, s{sTAG}")
    a.e(f"s_mov_b32 s{sT2}, 0")
    a.lab("L_h_poll")
    a.e(f"buffer_load_dword v32, v10, {sq(rA)}, s{sT0} offen sc1")
    a.e("s_waitcnt vmcnt(0)")
    a.e(f"v_cmp_ne_u32 vcc, s{sT1}, v32")
    a.e("s_cbranch_vccz L_h_polled")
    a.e(f"s_sleep {OPT.get('psleep', 4)}")
    a.e(f"s_add_u32 s{sT2}, s{sT2}, 1")
    a.e(f"s_cmp_lt_u32 s{sT2}, 0x40000")
    a.e("s_cbranch_scc1 L_h_poll")
    a.lab("L_h_polled")
    a.bar()
    stamp(a, 9)
    a.e(f"s_cmp_ge_u32 s{sGI}, 10")
    a.e("s_cbranch_scc1 L_h_has2")
    p2_issue(a, 2)
    a.lab("L_h_has2")
    a.vm = [("Q", 0)] * 12 + [("Q", 1)] * 12 + [("Q", 2)] * 12
    for s in range(11):
        a.wait(vm=[("Q", s)])
        a.bar()
        if s >= 1 and s + 2 < 11: p2_issue(a, s + 2)
    stamp(a, 10)
    stamp_flush(a)
    a.lab("L_done")
    a.e("s_endpgm")
    a.lab("L_end")

KD = f""".section .rodata,"a"
.p2align 6
.amdhsa_kernel {NAME}
  .amdhsa_next_free_vgpr 256
  .amdhsa_next_free_sgpr 100
  .amdhsa_accum_offset 256
  .amdhsa_group_segment_fixed_size 0
  .amdhsa_kernarg_size 128
  .amdhsa_user_sgpr_count 2
  .amdhsa_user_sgpr_kernarg_segment_ptr 1
  .amdhsa_system_sgpr_workgroup_id_x 1
  .amdhsa_float_denorm_mode_32 3
.end_amdhsa_kernel
"""
HEADER = open("recurrent_scan__ssm_conv_s5__glu_gated_swiglu__prompt.s.ref").read().split("; Override")[0]

def build(path):
    a = Asm()
    prologue(a)
    a.e(f"s_cmp_ge_u32 s{sGI}, 10")
    a.e("s_cbranch_scc1 L_c_nossm")
    regs = compute_ssm(a)
    a.lab("L_c_nossm")
    roles(a)
    a.e(f"s_cmp_lt_u32 s{sGI}, 10")
    a.e("s_cbranch_scc1 L_c_ssm")
    b0 = a.nbar; compute_ffn(a); nf = a.nbar - b0
    b0 = a.nbar; compute_p2(a); n2 = a.nbar - b0
    a.lab("L_c_ssm"); a.reset()
    b0 = a.nbar; compute_ssm2(a, regs); ns = a.nbar - b0
    a.e("s_branch L_p2")
    a.lab("L_helper"); a.reset()
    a.e(f"s_cmp_lt_u32 s{sGI}, 10")
    a.e("s_cbranch_scc1 L_h_ssm")
    b0 = a.nbar; helper(a, FFN); hf = a.nbar - b0
    a.lab("L_h_ssm"); a.reset()
    b0 = a.nbar; helper(a, SSM); hs = a.nbar - b0
    b0 = a.nbar; helper_p2(a); h2 = a.nbar - b0
    assert nf + n2 == hf + h2 and ns + n2 == hs + h2, (nf, ns, n2, hf, hs, h2)
    s = HEADER + f"; @launch grid=(256,1,1) block=(512,1,1) lds={LDS_BYTES}\n"
    s += '.amdgcn_target "amdgcn-amd-amdhsa--gfx950"\n.text\n' + a.text() + KD
    open(path, "w").write(s)

if __name__ == "__main__":
    out = sys.argv[1] if len(sys.argv) > 1 and not sys.argv[1].startswith("--") else "recurrent_scan__ssm_conv_s5__glu_gated_swiglu__prompt.s"
    if "--stamps" in sys.argv: STAMPS = True
    for x in sys.argv[1:]:
        if x.startswith("--opt="):
            for kv in x[6:].split(","):
                k, _, v = kv.partition("=")
                OPT[k] = int(v) if v else 1
    build(out)
```

```python
import sys, struct

NAME = "recurrent_scan__ssm_conv_s5__glu_gated_swiglu__prompt_kernel"
L, D, P, F = 2048, 640, 640, 1728
HA_OFF = 0x0
HA_SLAB = 94 * 4096
WB_OFF = 0xC00000
WB_SLAB = 27 * 10240
ST1_OFF = 0xF00000
AGG_OFF = 0xF20000
DONE_OFF = 0xF40000
FL2_OFF = 0xF60000
NONCE_OFF = 0xF80000
CS_OFF = 0x1000000
STAMP_OFF = 0x1200000
sTAG = 66
LDS_BYTES = 163840
STAMPS = False
OPT = {}

def f2u(x):
    return struct.unpack("<I", struct.pack("<f", x))[0]
def u2f(u):
    return struct.unpack("<f", struct.pack("<I", u))[0]

class Asm:
    def __init__(self):
        self.l = []; self.vm = []; self.lg = []; self.nbar = 0
    def e(self, s): self.l.append("    " + s)
    def lab(self, s): self.l.append(s + ":")
    def vmem(self, s, tag=None): self.e(s); self.vm.append(tag)
    def lds(self, s, tag=None): self.e(s); self.lg.append(tag)
    def bar(self): self.e("s_barrier"); self.nbar += 1
    def reset(self): self.vm = []; self.lg = []
    @staticmethod
    def _need(q, tags):
        idx = -1
        for i, t in enumerate(q):
            if t in tags: idx = i
        return idx
    def wait(self, vm=None, lg=None, vm_all=False, lg_all=False):
        parts = []
        i = len(self.vm) - 1 if vm_all else self._need(self.vm, vm or [])
        if i >= 0:
            n = min(len(self.vm) - 1 - i, 63)
            parts.append(f"vmcnt({n})")
            self.vm = self.vm[len(self.vm) - n:] if n else []
        i = len(self.lg) - 1 if lg_all else self._need(self.lg, lg or [])
        if i >= 0:
            n = min(len(self.lg) - 1 - i, 15)
            parts.append(f"lgkmcnt({n})")
            self.lg = self.lg[len(self.lg) - n:] if n else []
        if parts: self.e("s_waitcnt " + " ".join(parts))
    def text(self): return "\n".join(self.l) + "\n"

def vr(b, n=1): return f"v{b}" if n == 1 else f"v[{b}:{b+n-1}]"
def sq(b): return f"s[{b}:{b+3}]"

def srd(a, d, lo, nbytes, add=None):
    if add is None:
        a.e(f"s_mov_b32 s{d}, s{lo}"); a.e(f"s_mov_b32 s{d+1}, s{lo+1}")
    else:
        a.e(f"s_add_u32 s{d}, s{lo}, {add}"); a.e(f"s_addc_u32 s{d+1}, s{lo+1}, 0")
    a.e(f"s_mov_b32 s{d+2}, {nbytes}")
    a.e(f"s_mov_b32 s{d+3}, 0x00020000")

pX, pLRE, pLIM, pBRE, pBIM, pCRE, pCIM, pLDT, pDSK, pBX, pW1, pW3, pW2, pOUT, pDBG, pWS = range(4, 36, 2)
rX, rW, rA, rB, rC, rD = 36, 40, 44, 48, 52, 56
sM, sGI, sG, sMT, sNG, sHW = 60, 61, 62, 63, 64, 65
sT0, sT1, sT2, sT3, sT4, sT5 = 68, 69, 70, 71, 72, 73
sXO, sWO, sLB = 74, 75, 76
SV = 255

def stamp(a, slot):
    if not STAMPS: return
    if OPT.get("minst") and slot not in (0, 11): return
    a.e("s_memrealtime s[96:97]")
    a.e("s_memtime s[98:99]")
    a.e("s_waitcnt lgkmcnt(0)")
    a.e(f"v_writelane_b32 v{SV}, s96, {slot}")
    a.e(f"v_writelane_b32 v{SV}, s98, {slot+32}")
    a.lg = []
def stamp_flush(a):
    if not STAMPS: return
    if OPT.get("dbgout"):
        lab = f"L_dbg{len(a.l)}"
        a.e("s_cmp_lg_u32 s3, 0")
        a.e(f"s_cbranch_scc1 {lab}")
        srd(a, 92, pDBG, 256)
        a.e(f"v_readlane_b32 s98, v{SV}, 0")
        a.e("s_not_b32 s98, s98")
        a.e(f"v_writelane_b32 v{SV}, s98, 12")
        a.e(f"v_lshlrev_b32 v{SV-1}, 2, v0")
        a.e("s_mov_b64 exec, 0x1f07")
        a.e(f"buffer_atomic_umax v{SV}, v{SV-1}, s[92:95], 0 offen")
        a.lab(lab)
        return
    srd(a, 92, pWS, 1 << 20, add=hex(STAMP_OFF))
    a.e("s_lshl_b32 s98, s2, 3")
    a.e("s_add_u32 s98, s98, s3")
    a.e("s_lshl_b32 s98, s98, 8")
    a.e(f"v_lshlrev_b32 v{SV-1}, 2, v0")
    a.e(f"buffer_store_dword v{SV}, v{SV-1}, s[92:95], s98 offen")

def cmul(a, d, x, y, t):
    a.e(f"v_pk_mul_f32 {vr(t,2)}, {vr(x,2)}, {vr(y,2)} op_sel:[0,0] op_sel_hi:[0,1]")
    a.e(f"v_pk_fma_f32 {vr(d,2)}, {vr(x,2)}, {vr(y,2)}, {vr(t,2)} op_sel:[1,1,0] op_sel_hi:[1,0,1] neg_lo:[1,0,0]")
def cfma(a, d, x, y, z, t):
    a.e(f"v_pk_fma_f32 {vr(t,2)}, {vr(x,2)}, {vr(y,2)}, {vr(z,2)} op_sel:[0,0,0] op_sel_hi:[0,1,1]")
    a.e(f"v_pk_fma_f32 {vr(d,2)}, {vr(x,2)}, {vr(y,2)}, {vr(t,2)} op_sel:[1,1,0] op_sel_hi:[1,0,1] neg_lo:[1,0,0]")

class Map: pass
FFN = Map(); FFN.name = "ffn"; FFN.slot = 53248; FFN.woff = 32768; FFN.nfr = 10
FFN.tab_st = 159744; FFN.tab_cs = 159744 + 2048
SSM = Map(); SSM.name = "ssm"; SSM.slot = 49152; SSM.woff = 32768; SSM.nfr = 8
SSM.scr = 147456
SSM.tab_rs = 147456 + 14336 - 0
SSM.tab_rs = 161792 - 0
SSM.tab_mr = 161792 + 1024
SSM.tab_cs = 147456 + 8704
sPIT = 90
sSYN = 91
FFN.syn = 159744 + 3072
SSM.syn = 147456 + 10752
SSM.kscr = 2 * SSM.slot
def ent(u): return (u % 3 + 1) % 3

def prologue(a):
    a.l.append(f".globl {NAME}"); a.l.append(".p2align 8"); a.l.append(f".type {NAME},@function")
    a.lab(NAME)
    a.e("s_cmp_ge_u32 s2, 256")
    a.e("s_cbranch_scc1 L_done")
    a.e("s_load_dwordx16 s[4:19], s[0:1], 0")
    a.e("s_load_dwordx16 s[20:35], s[0:1], 64")
    a.e("v_lshrrev_b32 v1, 6, v0")
    a.e("v_and_b32 v0, 63, v0")
    a.e("v_readfirstlane_b32 s3, v1")
    if OPT.get("scramble"):
        a.e(f"s_lshr_b32 s{sT0}, s2, 5")
        a.e(f"s_and_b32 s{sT1}, s2, 31")
    else:
        a.e(f"s_and_b32 s{sT0}, s2, 7")
        a.e(f"s_lshr_b32 s{sT1}, s2, 3")
    a.e(f"s_and_b32 s{sM}, s{sT0}, 1")
    a.e(f"s_lshl_b32 s{sM}, s{sM}, 2")
    a.e(f"s_and_b32 s{sT2}, s{sT1}, 3")
    a.e(f"s_add_u32 s{sM}, s{sM}, s{sT2}")
    a.e(f"s_lshr_b32 s{sT2}, s{sT0}, 1")
    a.e(f"s_lshr_b32 s{sT3}, s{sT1}, 2")
    a.e(f"s_lshl_b32 s{sMT}, s{sT2}, 3")
    a.e(f"s_and_b32 s{sT4}, s{sT1}, 7")
    a.e(f"s_add_u32 s{sMT}, s{sMT}, s{sT4}")
    a.e(f"s_and_b32 s{sNG}, s{sT0}, 1")
    a.e(f"s_lshl_b32 s{sNG}, s{sNG}, 2")
    a.e(f"s_lshr_b32 s{sT4}, s{sT1}, 3")
    a.e(f"s_add_u32 s{sNG}, s{sNG}, s{sT4}")
    a.e(f"s_mul_i32 s{sT4}, s{sT2}, 3")
    a.e(f"s_lshl_b32 s{sT5}, s{sT2}, 1")
    a.e(f"s_add_u32 s{sT5}, s{sT5}, 2")
    a.e(f"s_cmp_lt_u32 s{sT2}, 2")
    a.e(f"s_cselect_b32 s{sT4}, s{sT4}, s{sT5}")
    a.e(f"s_cselect_b32 s{sT5}, 3, 2")
    a.e(f"s_lshl_b32 s{sT0}, s{sT2}, 3")
    a.e(f"s_sub_u32 s{sT0}, s{sT0}, s{sT4}")
    a.e(f"s_add_u32 s{sT0}, s{sT0}, s{sT3}")
    a.e(f"s_sub_u32 s{sT0}, s{sT0}, s{sT5}")
    a.e(f"s_add_u32 s{sT0}, s{sT0}, 10")
    a.e(f"s_add_u32 s{sT4}, s{sT4}, s{sT3}")
    a.e(f"s_cmp_lt_u32 s{sT3}, s{sT5}")
    a.e(f"s_cselect_b32 s{sGI}, s{sT4}, s{sT0}")
    a.e(f"s_cselect_b32 s{sPIT}, {SSM.slot >> 12}, {FFN.slot >> 12}")
    a.e(f"s_cselect_b32 s{sSYN}, {(FFN.syn - SSM.syn)}, 0")
    a.e(f"s_sub_u32 s{sSYN}, {FFN.syn}, s{sSYN}")
    a.e(f"s_lshl_b32 s{sPIT}, s{sPIT}, 12")
    a.e(f"s_and_b32 s{sHW}, s3, 3")
    a.e("s_mov_b32 s67, 0")
    a.e("v_lshlrev_b32 v1, 4, v0")
    a.e("s_waitcnt lgkmcnt(0)")
    stamp(a, 0)
    a.e(f"s_add_u32 s{sT0}, s{pWS}, {hex(NONCE_OFF)}")
    a.e(f"s_addc_u32 s{sT1}, s{pWS+1}, 0")
    a.e(f"s_load_dword s{sTAG}, s[{sT0}:{sT1}], 0")
    a.e("s_cmp_ge_u32 s3, 4")
    a.e("s_cbranch_scc1 L_helper")

def roles(a):
    a.e("s_mov_b32 s89, 0x7000000")
    a.e("s_cmp_ge_u32 s3, 2")
    a.e("s_cbranch_scc1 L_relay")
    srd(a, rX, pX, L * D * 2)
    a.e(f"s_lshl_b32 s{sT0}, s{sM}, 8")
    a.e(f"s_lshl_b32 s{sT1}, s{sGI}, 3")
    a.e(f"s_add_u32 s{sT0}, s{sT0}, s{sT1}")
    a.e(f"s_lshl_b32 s{sT1}, s3, 2")
    a.e(f"s_add_u32 s{sT0}, s{sT0}, s{sT1}")
    a.e(f"s_mul_i32 s{sT1}, s{sT0}, 1280")
    a.e("v_lshrrev_b32 v2, 4, v0")
    a.e("v_and_b32 v3, 15, v0")
    a.e("v_mul_u32_u24 v4, 1280, v2")
    a.e("v_lshl_add_u32 v4, v3, 4, v4")
    for n in range(5):
        a.vmem(f"buffer_load_dwordx4 {vr(8+4*n,4)}, v4, {sq(rX)}, s{sT1} offen offset:{256*n}", ("x", n))
    srd(a, rA, pWS, 65536, add=hex(ST1_OFF))
    a.e(f"s_lshl_b32 s{sT0}, s{sT0}, 5")
    a.e("v_lshlrev_b32 v5, 5, v2")
    a.e("v_lshl_add_u32 v5, v3, 4, v5")
    a.e(f"s_mov_b32 s{sT2}, 0xffff0000")
    FB = 32
    for n in range(5):
        a.wait(vm=[("x", n)])
        for i in range(4):
            s = 8 + 4 * n + i; d = FB + 2 * (4 * n + i)
            a.e(f"v_lshlrev_b32 v{d}, 16, v{s}")
            a.e(f"v_and_b32 v{d+1}, s{sT2}, v{s}")
    a.e(f"v_pk_add_f32 v[72:73], {vr(FB,2)}, {vr(FB+2,2)}")
    a.e(f"v_pk_add_f32 v[74:75], {vr(FB+4,2)}, {vr(FB+6,2)}")
    for i in range(4, 20):
        t = 72 + 2 * (i & 1)
        a.e(f"v_pk_add_f32 {vr(t,2)}, {vr(t,2)}, {vr(FB+2*i,2)}")
    a.e("v_pk_add_f32 v[72:73], v[72:73], v[74:75]")
    a.e("v_add_f32 v72, v72, v73")
    def red16(r):
        for m in ("quad_perm:[1,0,3,2]", "quad_perm:[2,3,0,1]", "row_half_mirror", "row_mirror"):
            a.e("s_nop 1")
            a.e(f"v_add_f32_dpp v{r}, v{r}, v{r} {m} row_mask:0xf bank_mask:0xf")
    red16(72)
    a.e(f"v_mul_f32 v72, {hex(f2u(1.0/640))}, v72")
    a.e("v_cvt_pk_bf16_f32 v74, v72, v72")
    a.e("v_lshlrev_b32 v74, 16, v74")
    a.e("v_sub_f32 v73, v72, v74")
    for i in range(20):
        a.e(f"v_pk_add_f32 {vr(FB+2*i,2)}, {vr(FB+2*i,2)}, v[74:75] op_sel_hi:[1,0] neg_lo:[0,1] neg_hi:[0,1]")
    a.e(f"v_pk_mul_f32 v[76:77], {vr(FB,2)}, {vr(FB,2)}")
    a.e(f"v_pk_mul_f32 v[78:79], {vr(FB+2,2)}, {vr(FB+2,2)}")
    for i in range(2, 20):
        t = 76 + 2 * (i & 1)
        a.e(f"v_pk_fma_f32 {vr(t,2)}, {vr(FB+2*i,2)}, {vr(FB+2*i,2)}, {vr(t,2)}")
    a.e("v_pk_add_f32 v[76:77], v[76:77], v[78:79]")
    a.e("v_add_f32 v76, v76, v77")
    red16(76)
    a.e(f"v_mul_f32 v76, {hex(f2u(1.0/640))}, v76")
    a.e("v_fma_f32 v76, -v73, v73, v76")
    a.e("v_max_f32 v76, 0, v76")
    a.e("v_cvt_pk_bf16_f32 v76, v76, v76")
    a.e("v_lshlrev_b32 v76, 16, v76")
    a.e(f"v_add_f32 v76, {hex(f2u(1e-5))}, v76")
    a.e("v_cvt_pk_bf16_f32 v76, v76, v76")
    a.e("v_lshlrev_b32 v76, 16, v76")
    a.e("v_sqrt_f32 v76, v76")
    a.e("s_nop 0")
    a.e("v_cvt_pk_bf16_f32 v76, v76, v76")
    a.e("v_lshlrev_b32 v76, 16, v76")
    a.e("s_waitcnt lgkmcnt(0)")
    a.e(f"s_add_u32 s{sT1}, s{sTAG}, 0x9E3779B1")
    a.e(f"v_mov_b32 v75, s{sT1}")
    a.e(f"v_mov_b32 v77, s{sT1}")
    a.e("v_cmp_gt_u32 vcc, 2, v3")
    a.e(f"s_and_saveexec_b64 s[{sT2}:{sT3}], vcc")
    a.e(f"buffer_store_dwordx4 v[74:77], v5, {sq(rA)}, s{sT0} offen sc1")
    a.e(f"s_mov_b64 exec, s[{sT2}:{sT3}]")
    a.e("s_branch L_roles_done")
    a.lab("L_relay")
    a.e(f"s_cmp_lt_u32 s{sGI}, 10")
    a.e("s_cbranch_scc1 L_tssm")
    a.e("s_cmp_eq_u32 s3, 2")
    a.e(f"s_cselect_b32 s{rX}, s{pW1}, s{pW3}")
    a.e(f"s_cselect_b32 s{rX+1}, s{pW1+1}, s{pW3+1}")
    a.e(f"s_mov_b32 s{rX+2}, {D*F*2}")
    a.e(f"s_mov_b32 s{rX+3}, 0x00020000")
    a.e(f"s_sub_u32 s{sT0}, s{sGI}, 10")
    a.e(f"s_mul_i32 s{sT0}, s{sT0}, 160")
    a.e(f"s_min_u32 s{sT0}, s{sT0}, 3296")
    a.e(f"s_mul_i32 s{sT1}, s{sM}, {16*3456}")
    a.e(f"s_add_u32 s{sT0}, s{sT0}, s{sT1}")
    a.e("v_bfe_u32 v2, v0, 1, 4")
    a.e("v_mul_u32_u24 v2, 3456, v2")
    a.e("v_and_b32 v3, 1, v0")
    a.e("v_mul_u32_u24 v3, 156, v3")
    a.e("v_add_u32 v2, v2, v3")
    a.e("s_branch L_tgo")
    a.lab("L_tssm")
    a.e("s_cmp_eq_u32 s3, 2")
    a.e(f"s_cselect_b32 s{rX}, s{pBRE}, s{pBIM}")
    a.e(f"s_cselect_b32 s{rX+1}, s{pBRE+1}, s{pBIM+1}")
    a.e(f"s_mov_b32 s{rX+2}, {P*D*2}")
    a.e(f"s_mov_b32 s{rX+3}, 0x00020000")
    a.e(f"s_lshl_b32 s{sT0}, s{sGI}, 3")
    a.e(f"s_add_u32 s{sT0}, s{sT0}, s{sM}")
    a.e(f"s_mul_i32 s{sT0}, s{sT0}, {8*1280}")
    a.e("v_bfe_u32 v2, v0, 1, 3")
    a.e("v_mul_u32_u24 v2, 1280, v2")
    a.e("v_and_b32 v3, 1, v0")
    a.e("v_lshl_add_u32 v2, v3, 7, v2")
    a.lab("L_tgo")
    a.e("s_mov_b32 exec_hi, 0")
    a.e(f"buffer_load_dword v4, v2, {sq(rX)}, s{sT0} offen")
    a.e("s_mov_b64 exec, -1")
    if OPT.get("rel0", 2) == 1:
        srd(a, rX, pW2, F * D * 2)
        a.e(f"s_lshl_b32 s{sT0}, s{sMT}, 1")
        a.e(f"s_and_b32 s{sT1}, s3, 1")
        a.e(f"s_add_u32 s{sT0}, s{sT0}, s{sT1}")
        a.e(f"s_mul_i32 s88, s{sMT}, 10240")
        a.e(f"s_lshl_b32 s{sT1}, s{sT1}, 10")
        a.e(f"s_add_u32 s88, s88, s{sT1}")
        a.e(f"s_lshl_b32 s89, s{sNG}, 6")
        a.e(f"s_add_u32 s89, s89, s{sT0}")
        a.e(f"s_lshl_b32 s89, s89, 7")
        a.e(f"s_mul_i32 s{sT1}, s{sT0}, 52")
        a.e(f"s_lshr_b32 s{sT1}, s{sT1}, 8")
        a.e(f"s_mul_i32 s{sT2}, s{sT1}, 5")
        a.e(f"s_sub_u32 s{sT2}, s{sT0}, s{sT2}")
        a.e(f"s_cmp_eq_u32 s{sT0}, 53")
        a.e(f"s_cselect_b32 s{sT2}, 4, s{sT2}")
        a.e(f"s_cselect_b32 s{sT5}, 48, 80")
        a.e(f"s_lshl_b32 s{sT3}, s{sT2}, 5")
        a.e(f"s_cmp_ge_u32 s{sT2}, 2")
        a.e(f"s_cselect_b32 s{sT4}, 16, 0")
        a.e(f"s_add_u32 s{sT3}, s{sT3}, s{sT4}")
        a.e(f"s_cmp_eq_u32 s{sT2}, 4")
        a.e(f"s_cselect_b32 s{sT3}, 64, s{sT3}")
        a.e(f"s_cselect_b32 s{sT4}, s{sT5}, 16")
        a.e(f"s_cselect_b32 s80, 3, 2")
        a.e(f"s_cselect_b32 s81, 4, 16")
        a.e(f"s_mul_i32 s{sT1}, s{sT1}, 160")
        a.e(f"s_add_u32 s{sT3}, s{sT3}, s{sT1}")
        a.e(f"s_sub_u32 s{sT4}, s{sT4}, 16")
        a.e(f"s_mul_i32 s{sT4}, s{sT4}, 1280")
        a.e(f"s_mul_i32 s{sXO}, s{sT3}, 1280")
        a.e(f"s_mul_i32 s{sT1}, s{sNG}, 160")
        a.e(f"s_add_u32 s{sXO}, s{sXO}, s{sT1}")
        a.e(f"v_mov_b32 v8, s{sT4}")
        RL = 2 * FFN.slot + 8192
        a.e(f"s_mul_i32 s{sT2}, s3, 5120")
        a.e(f"s_add_u32 s{sT2}, s{sT2}, {RL - 10240}")
        for n in range(5):
            a.e(f"v_add_u32 v5, {64*n}, v0")
            a.e("v_mul_u32_u24 v6, 6554, v5")
            a.e("v_lshrrev_b32 v6, 16, v6")
            a.e("v_mul_u32_u24 v7, 10, v6")
            a.e("v_sub_u32 v7, v5, v7")
            a.e("v_cmp_lt_u32 vcc, 15, v6")
            a.e("v_mul_u32_u24 v6, 1280, v6")
            a.e("v_lshl_add_u32 v6, v7, 4, v6")
            a.e("v_cndmask_b32 v7, 0, v8, vcc")
            a.e(f"s_add_u32 m0, s{sT2}, {1024*n}")
            a.e("v_add_u32 v6, v6, v7")
            a.e(f"buffer_load_dwordx4 v6, {sq(rX)}, s{sXO} offen lds")
        a.e("s_cmp_eq_u32 s3, 2")
        a.e(f"s_cselect_b32 s{rA}, s{pCRE}, s{pCIM}")
        a.e(f"s_cselect_b32 s{rA+1}, s{pCRE+1}, s{pCIM+1}")
        a.e(f"s_mov_b32 s{rA+2}, {D*P*2}")
        a.e(f"s_mov_b32 s{rA+3}, 0x00020000")
        a.e(f"s_mul_i32 s{sT0}, s2, 3200")
        a.e("v_min_u32 v9, 24, v0")
        a.e("v_lshlrev_b32 v9, 7, v9")
        a.e(f"buffer_load_dword v10, v9, {sq(rA)}, s{sT0} offen")
        a.e("v_lshrrev_b32 v5, 4, v0")
        a.e("v_lshlrev_b32 v5, s80, v5")
        a.e("v_bfe_u32 v6, v0, 2, 2")
        a.e("v_add_u32 v5, v5, v6")
        a.e("v_add_u32 v6, s81, v5")
        a.e("v_and_b32 v7, 3, v0")
        a.e("v_lshlrev_b32 v7, 3, v7")
        a.e(f"v_add_u32 v7, s{sT2}, v7")
        a.e("v_mul_u32_u24 v5, 160, v5")
        a.e("v_mul_u32_u24 v6, 160, v6")
        a.e("v_add_u32 v5, v5, v7")
        a.e("v_add_u32 v6, v6, v7")
        a.e(f"s_mul_i32 s{sT4}, s{sNG}, {WB_SLAB}")
        a.e(f"s_add_u32 s{sT4}, s{sT4}, {hex(WB_OFF)}")
        srd(a, rW, pWS, WB_SLAB, add=f"s{sT4}")
        a.e(f"s_add_u32 s{sT0}, s88, 4096")
        a.e(f"s_add_u32 s{sT1}, s88, 8192")
        a.e("s_waitcnt vmcnt(0)")
        for nt in range(5):
            a.e(f"ds_read_b64_tr_b16 {vr(16+4*nt,2)}, v5 offset:{32*nt}")
            a.e(f"ds_read_b64_tr_b16 {vr(18+4*nt,2)}, v6 offset:{32*nt}")
        a.e("s_waitcnt lgkmcnt(0)")
        for nt in range(5):
            so = (88, sT0, sT1)[nt >> 1]
            a.e(f"buffer_store_dwordx4 {vr(16+4*nt,4)}, v1, {sq(rW)}, s{so} offen offset:{2048*(nt&1)} sc1")
    else:
        a.e("s_waitcnt vmcnt(0)")
    a.lab("L_roles_done")
    a.e("s_waitcnt lgkmcnt(0)")
    a.e(f"s_add_u32 s{sTAG}, s{sTAG}, 0x9E3779B1")
    a.reset()
    stamp(a, 6)

SLOW = []
def slow_paths(a):
    for lab, val, SA in SLOW:
        a.lab(lab + "a")
        a.e(f"ds_read_b128 v[8:11], v{SA} offset:32")
        a.e("s_waitcnt lgkmcnt(0)")
        a.e("v_min3_u32 v8, v8, v9, v10")
        a.e("v_min_u32 v8, v8, v11")
        a.e(f"v_cmp_gt_u32 vcc, {val}, v8")
        a.e(f"s_cbranch_vccz {lab}b")
        a.e("s_add_u32 s67, s67, 1")
        a.e("s_cmp_lt_u32 s67, 0x400000")
        a.e(f"s_cbranch_scc1 {lab}a")
        a.e(f"s_branch {lab}b")

def p1_loop(a, M, ACC, WB, XB, xread, wread, mfma, hooks):
    nfr = M.nfr; NG = 20 * nfr; SG = 2 * nfr
    WR = 10 if M is FFN else 8
    LA = WR - 2; BP = LA - 4 if M is FFN else 2
    pend = []
    for ks in range(20):
        for i in range(len(xread(ks))):
            pend.append((nfr * ks - 0.5, "X", (ks, i), nfr * (ks - 1) + 1 if ks else -99, ks >> 1))
    for g in range(NG):
        for i in range(len(wread(g))):
            pend.append((g, "W", (g, i), g - LA, g // SG))
    pend.sort(key=lambda t: t[0])
    avail = 0
    def issue(g, n):
        k = 0
        while k < len(pend) and n > 0:
            need, kind, idx, early, st = pend[k]
            if need > g + WR + nfr: break
            if early <= g and st < avail:
                ins = (xread if kind == "X" else wread)(idx[0])[idx[1]]
                a.lds(ins, (kind, idx[0]))
                pend.pop(k); n -= 1
            else:
                k += 1
    SA, FA, FV = hooks
    a.e(f"v_mov_b32 v{SA}, s{sSYN}")
    a.e(f"s_lshl_b32 s{sT0}, s3, 2")
    a.e(f"v_add_u32 v{FA}, s{sT0}, v{SA}")
    if OPT.get("prio", 1): a.e("s_setprio 3")
    srd(a, rD, pWS, 65536, add=hex(FL2_OFF))
    stamp(a, 7)
    a.bar(); avail = 1
    stamp(a, 1)
    issue(-1, 14)
    slow = []
    for g in range(NG):
        ks, fr = divmod(g, nfr)
        extra = [[], [], [], []]
        if (g + BP + 3) % SG == 0:
            extra[0] = [("lds", f"ds_read_b128 v[8:11], v{SA} offset:32")]
        if (g + BP + 1) % SG == 0:
            st = (g + BP + 1) // SG
            assert not any(p[4] < st for p in pend), (g, st)
            a.wait(lg_all=True)
            lab = f"L_{M.name}_s{st}"
            extra[0] = [("e", f"v_mov_b32 v{FV}, {st}"), ("e", "v_min3_u32 v8, v8, v9, v10")]
            extra[1] = [("lds", f"ds_write_b32 v{FA}, v{FV} offset:48"), ("e", "v_min_u32 v8, v8, v11")]
            extra[2] = [("e", f"v_cmp_gt_u32 vcc, {st+1}, v8")]
            extra[3] = [("e", f"s_cbranch_vccnz {lab}a"), ("lab", lab + "b"), ("avail", st + 1)]
            slow.append((lab, st + 1))
        if g == 2 * SG + 2 and OPT.get("rel0", 2) == 1:
            extra[0] = [("e", f"v_mov_b32 v8, s{sTAG}"), ("e", f"v_mov_b32 v9, s{sTAG}")]
            extra[1] = [("e", f"v_mov_b32 v10, s{sTAG}"), ("e", f"v_mov_b32 v11, s{sTAG}")]
            extra[2] = [("e", "s_waitcnt vmcnt(0)")]
            extra[3] = [("e", "s_mov_b64 exec, 0xff"), ("e", f"buffer_store_dwordx4 v[8:11], v1, {sq(rD)}, s89 offen sc1"), ("e", "s_mov_b64 exec, -1")]
        a.wait(lg=[("W", g), ("X", ks)])
        for tt in range(4):
            a.e(mfma(g, tt))
            for kind, x in extra[tt]:
                if kind == "lds": a.lds(x)
                elif kind == "e": a.e(x)
                elif kind == "lab": a.lab(x)
                else: avail = x
            issue(g if tt == 3 else g - 1, 1 if tt < 3 else 2)
    SLOW.extend((lab, val, SA) for lab, val in slow)
    a.e("v_and_b32 v8, 15, v0")
    a.e("v_lshrrev_b32 v9, 4, v0")
    assert not pend

def compute_ffn(a):
    M = FFN
    WB, XB, ACC = 16, 56, 88
    a.e(f"s_sub_u32 s{sG}, s{sGI}, 10")
    a.e("v_and_b32 v8, 15, v0")
    a.e("v_lshrrev_b32 v9, 4, v0")
    a.e("v_bfe_u32 v10, v0, 1, 3")
    a.e("v_xor_b32 v10, v10, v9")
    a.e("v_lshlrev_b32 v10, 4, v10")
    a.e("v_lshl_add_u32 v10, v8, 7, v10")
    a.e("v_and_b32 v11, 1, v9")
    a.e("v_lshl_add_u32 v10, v11, 3, v10")
    a.e(f"s_lshl_b32 s{sT0}, s3, 13")
    a.e(f"v_add_u32 v10, s{sT0}, v10")
    a.e("v_mov_b32 v2, v10")
    a.e("v_xor_b32 v3, 8, v10")
    a.e("v_xor_b32 v4, 64, v10")
    a.e("v_xor_b32 v5, 0x48, v10")
    for i in range(4):
        a.e(f"v_add_u32 v{248+i}, {2*M.slot}, v{2+i}")
    a.e("v_bfe_u32 v12, v0, 2, 2")
    a.e("v_lshl_add_u32 v12, v9, 3, v12")
    a.e("v_lshl_add_u32 v13, v11, 2, v12")
    a.e("v_xor_b32 v11, 1, v11")
    a.e("v_lshl_add_u32 v14, v11, 2, v12")
    a.e("v_and_b32 v12, 3, v0")
    a.e("v_lshlrev_b32 v12, 3, v12")
    a.e(f"v_add_u32 v12, {M.woff}, v12")
    a.e("v_mul_u32_u24 v13, 160, v13")
    a.e("v_mul_u32_u24 v14, 160, v14")
    a.e("v_add_u32 v6, v13, v12")
    a.e("v_add_u32 v7, v14, v12")
    a.e(f"v_add_u32 v13, {M.slot}, v6")
    a.e(f"v_add_u32 v14, {M.slot}, v7")
    a.e(f"v_add_u32 v252, {2*M.slot}, v6")
    a.e(f"v_add_u32 v253, {2*M.slot}, v7")
    wbase = {0: (6, 7), 1: (13, 14), 2: (252, 253)}
    def xread(ks):
        sl = (ks >> 1) % 3; kk = ks & 1
        out = []
        for tt in range(4):
            for h in range(2):
                reg = (2 if sl < 2 else 248) + 2 * kk + h
                off = (sl * M.slot if sl < 2 else 0) + tt * 2048
                out.append(f"ds_read_b64 {vr(XB+16*kk+4*tt+2*h,2)}, v{reg} offset:{off}")
        return out
    def wread(g):
        ks, fr = divmod(g, 10); sl = (ks >> 1) % 3
        off = (fr & 1) * 10240 + (ks & 1) * 5120 + 32 * (fr >> 1)
        return [f"ds_read_b64_tr_b16 {vr(WB+4*(g%10)+2*s,2)}, v{wbase[sl][s]} offset:{off}" for s in range(2)]
    def acc(tt, fr): return ACC + 40 * tt + 4 * fr
    def mfma(g, tt):
        ks, fr = divmod(g, 10)
        c = "0" if ks == 0 else vr(acc(tt, fr), 4)
        return f"v_mfma_f32_16x16x32_bf16 {vr(acc(tt,fr),4)}, {vr(WB+4*(g%10),4)}, {vr(XB+16*(ks&1)+4*tt,4)}, {c}"
    p1_loop(a, M, ACC, WB, XB, xread, wread, mfma, (12, 254, 15))
    stamp(a, 2)
    CS = 16
    ST = 56
    a.e(f"s_lshl_b32 s{sT0}, s3, 9")
    a.e(f"s_add_u32 s{sT0}, s{sT0}, {M.tab_st}")
    a.e("v_lshlrev_b32 v2, 3, v8")
    a.e(f"v_add_u32 v2, s{sT0}, v2")
    a.e("v_lshlrev_b32 v3, 4, v9")
    a.e(f"v_add_u32 v3, {M.tab_cs}, v3")
    for tt in range(4):
        a.lds(f"ds_read_b64 {vr(ST+2*tt,2)}, v2 offset:{128*tt}", "st")
    for fr in range(10):
        a.lds(f"ds_read_b128 {vr(CS+4*fr,4)}, v3 offset:{(fr&1)*512+(fr>>1)*64}", ("cs", fr))
    a.e(f"s_lshl_b32 s{sT0}, s{sM}, 2")
    a.e(f"s_add_u32 s{sT0}, s{sT0}, s3")
    a.e(f"s_mul_i32 s{sT0}, s{sT0}, {HA_SLAB}")
    srd(a, rA, pWS, HA_SLAB, add=f"s{sT0}")
    a.e(f"s_lshr_b32 s{sT1}, s{sG}, 1")
    a.e(f"s_mul_i32 s{sT1}, s{sT1}, 5")
    a.e(f"s_add_u32 s{sT1}, s{sT1}, 40")
    a.e(f"s_and_b32 s{sT2}, s{sG}, 1")
    a.e(f"s_lshl_b32 s{sT3}, s{sT2}, 1")
    a.e(f"s_add_u32 s{sT3}, s{sT3}, s{sT1}")
    a.e(f"s_lshl_b32 s{sT3}, s{sT3}, 12")
    a.e(f"s_add_u32 s{sT4}, s{sT3}, 4096")
    a.e(f"s_add_u32 s{sT1}, s{sT1}, 4")
    a.e(f"s_min_u32 s{sT1}, s{sT1}, 93")
    a.e(f"s_lshl_b32 s{sT1}, s{sT1}, 12")
    a.e(f"s_lshl_b32 s{sT2}, s{sT2}, 9")
    a.e(f"s_add_u32 s{sT1}, s{sT1}, s{sT2}")
    a.e(f"s_cmp_eq_u32 s{sG}, 21")
    a.e(f"s_cselect_b32 s{sT4}, s{sT3}, s{sT4}")
    a.e(f"s_cselect_b32 s{sT3}, 0x7000000, s{sT3}")
    a.e("v_lshrrev_b32 v4, 1, v9")
    a.e("v_lshlrev_b32 v4, 8, v4")
    a.e("v_lshl_add_u32 v4, v8, 4, v4")
    a.e("v_and_b32 v5, 1, v9")
    a.e("v_lshl_add_u32 v4, v5, 3, v4")
    C1 = 64; C2 = 72
    a.wait(lg=["st"])
    for tt in range(4):
        a.e(f"v_rcp_f32 v{C1+2*tt}, v{ST+2*tt+1}")
        a.e(f"v_mul_f32 v{C2+2*tt}, v{ST+2*tt+1}, v{ST+2*tt+1}")
    for tt in range(4):
        a.e(f"v_mul_f32 v{C1+2*tt}, {hex(f2u(-1.4426950408889634))}, v{C1+2*tt}")
    a.wait(lg_all=True)
    items = [(tt, j) for tt in range(4) for j in range(5)]
    def A(tt, j):
        g, u_ = acc(tt, 2 * j), acc(tt, 2 * j + 1)
        t = 80 + 4 * ((5 * tt + j) & 1)
        out = []
        for mat, r in ((0, g), (1, u_)):
            for h in range(2):
                out.append(f"v_pk_fma_f32 {vr(r+2*h,2)}, {vr(ST+2*tt,2)}, {vr(CS+4*(2*j+mat)+2*h,2)}, {vr(r+2*h,2)} op_sel:[0,0,0] op_sel_hi:[0,1,1] neg_lo:[1,0,0] neg_hi:[1,0,0]")
        for h in range(2):
            out.append(f"v_pk_mul_f32 {vr(t+2*h,2)}, {vr(g+2*h,2)}, {vr(C1+2*tt,2)} op_sel_hi:[1,0]")
        for h in range(2):
            out.append(f"v_pk_mul_f32 {vr(g+2*h,2)}, {vr(g+2*h,2)}, {vr(u_+2*h,2)}")
        return out
    def B(tt, j):
        t = 80 + 4 * ((5 * tt + j) & 1); u_ = acc(tt, 2 * j + 1)
        return [f"v_exp_f32 v{u_+p}, v{t+p}" for p in range(4)]
    def Cc(tt, j):
        u_ = acc(tt, 2 * j + 1)
        return [f"v_pk_fma_f32 {vr(u_+2*h,2)}, {vr(u_+2*h,2)}, {vr(C2+2*tt,2)}, {vr(C2+2*tt,2)} op_sel_hi:[1,0,0]" for h in range(2)]
    def Dd(tt, j):
        u_ = acc(tt, 2 * j + 1)
        return [f"v_rcp_f32 v{u_+p}, v{u_+p}" for p in range(4)]
    def E(tt, j):
        g, u_ = acc(tt, 2 * j), acc(tt, 2 * j + 1)
        out = [f"v_pk_mul_f32 {vr(g+2*h,2)}, {vr(g+2*h,2)}, {vr(u_+2*h,2)}" for h in range(2)]
        o = acc(tt, 2 * (j & ~1) + 1) + 2 * (j & 1)
        out += [f"v_cvt_pk_bf16_f32 v{o+h}, v{g+2*h}, v{g+2*h+1}" for h in range(2)]
        if j in (1, 3):
            out.append(f"buffer_store_dwordx4 {vr(o-2,4)}, v1, {sq(rA)}, s{sT3 if j == 1 else sT4} offen offset:{1024*tt} sc1")
        if j == 4:
            out.append(f"buffer_store_dwordx2 {vr(o,2)}, v4, {sq(rA)}, s{sT1} offen offset:{1024*tt} sc1")
        return out
    n = len(items)
    get = lambda f, i: f(*items[i]) if 0 <= i < n else []
    for i in range(n + 4):
        plain = get(E, i - 4) + get(Cc, i - 2) + get(A, i)
        trans = get(B, i - 1) + get(Dd, i - 3)
        k = 0
        while plain or trans:
            if trans and (k & 1 or not plain): a.e(trans.pop(0))
            else:
                a.e(plain.pop(0))
                if len(plain) > len(trans) + 1 and plain: a.e(plain.pop(0))
            k += 1
        a.e("s_nop 0") if i >= n else None
    stamp(a, 3)

def compute_ssm(a):
    M = SSM
    WB, XB, ACC = 16, 48, 80
    KL, KC, K8, KP = 208, 216, 224, 232
    L16, L256 = 240, 242
    a.e(f"s_mov_b32 s{sG}, s{sGI}")
    srd(a, rB, pLRE, P * 2); srd(a, rC, pLIM, P * 2); srd(a, rD, pLDT, P * 2)
    a.e("v_lshlrev_b32 v2, 1, v0")
    a.e(f"s_lshl_b32 s{sT0}, s{sG}, 7")
    a.e(f"buffer_load_ushort v100, v2, {sq(rB)}, s{sT0} offen")
    a.e(f"buffer_load_ushort v101, v2, {sq(rC)}, s{sT0} offen")
    a.e(f"buffer_load_ushort v102, v2, {sq(rD)}, s{sT0} offen")
    return WB, XB, ACC, KL, KC, K8, KP, L16, L256

def compute_ssm2(a, regs):
    M = SSM
    WB, XB, ACC, KL, KC, K8, KP, L16, L256 = regs
    a.e("v_lshlrev_b32 v100, 16, v100")
    a.e("v_lshlrev_b32 v101, 16, v101")
    a.e("v_lshlrev_b32 v102, 16, v102")
    HI = f2u(1.4426950408889634)
    a.e(f"s_mov_b32 s{sT0}, {hex(HI)}")
    a.e(f"s_mov_b32 s{sT1}, {hex(f2u(1.4426950408889634 - u2f(HI)))}")
    a.e(f"s_mov_b32 s{sT2}, {hex(f2u(0.6931471805599453))}")
    def expf(d, x, t0, t1):
        a.e(f"v_mul_f32 v{t0}, s{sT0}, v{x}")
        a.e(f"v_fma_f32 v{t1}, v{x}, s{sT0}, -v{t0}")
        a.e(f"v_fma_f32 v{t1}, v{x}, s{sT1}, v{t1}")
        a.e(f"v_exp_f32 v{t0}, v{t0}")
        a.e(f"v_mul_f32 v{t1}, s{sT2}, v{t1}")
        a.e(f"v_fma_f32 v{d}, v{t0}, v{t1}, v{t0}")
    expf(102, 102, 104, 105)
    a.e("v_cvt_pk_bf16_f32 v102, v102, v102")
    a.e("v_lshlrev_b32 v102, 16, v102")
    a.e("v_mul_f32 v106, v102, v100")
    a.e("v_mul_f32 v107, v102, v101")
    expf(106, 106, 104, 105)
    HI = f2u(0.15915494309189535)
    a.e(f"s_mov_b32 s{sT0}, {hex(HI)}")
    a.e(f"s_mov_b32 s{sT1}, {hex(f2u(0.15915494309189535 - u2f(HI)))}")
    a.e(f"v_mul_f32 v104, s{sT0}, v107")
    a.e(f"v_fma_f32 v105, v107, s{sT0}, -v104")
    a.e(f"v_fma_f32 v105, v107, s{sT1}, v105")
    a.e("v_rndne_f32 v103, v104")
    a.e("v_sub_f32 v104, v104, v103")
    a.e("v_add_f32 v104, v104, v105")
    a.e("v_cos_f32 v108, v104")
    a.e("v_sin_f32 v109, v104")
    a.e("s_nop 0")
    LAM, COEF, L8, P0, TMP, TMP2, L32, L64, L128 = 110, 112, 114, 116, 124, 126, 128, 130, 132
    a.e(f"v_mul_f32 v{LAM}, v106, v108")
    a.e(f"v_mul_f32 v{LAM+1}, v106, v109")
    a.e("v_max_f32 v106, |v100|, |v101|")
    a.e("v_rcp_f32 v107, v106")
    a.e(f"v_add_f32 v108, -1.0, v{LAM}")
    a.e("v_mul_f32 v100, v100, v107")
    a.e("v_mul_f32 v101, v101, v107")
    a.e("v_mul_f32 v109, v100, v100")
    a.e("v_fma_f32 v109, v101, v101, v109")
    a.e("v_mul_f32 v109, v109, v106")
    a.e("v_rcp_f32 v109, v109")
    a.e("v_mul_f32 v104, v108, v100")
    a.e(f"v_fma_f32 v104, v{LAM+1}, v101, v104")
    a.e(f"v_mul_f32 v105, v{LAM+1}, v100")
    a.e("v_fma_f32 v105, -v108, v101, v105")
    a.e("v_add_f32 v109, v109, v109")
    a.e(f"v_mul_f32 v{COEF}, v104, v109")
    a.e(f"v_mul_f32 v{COEF+1}, v105, v109")
    cmul(a, L8, LAM, LAM, TMP)
    cmul(a, TMP2, L8, L8, TMP)
    cmul(a, L8, TMP2, TMP2, TMP)
    cmul(a, L16, L8, L8, TMP)
    cmul(a, L32, L16, L16, TMP)
    cmul(a, L64, L32, L32, TMP)
    cmul(a, L128, L64, L64, TMP)
    cmul(a, L256, L128, L128, TMP)
    a.e(f"v_mov_b32 v{P0}, 1.0")
    a.e(f"v_mov_b32 v{P0+1}, 0")
    for bit, src in ((0, L64), (1, L128)):
        a.e(f"s_bitcmp0_b32 s3, {bit}")
        a.e(f"s_cbranch_scc1 L_pw{bit}")
        cmul(a, TMP2, P0, src, TMP)
        a.e(f"v_mov_b32 v{P0}, v{TMP2}")
        a.e(f"v_mov_b32 v{P0+1}, v{TMP2+1}")
        a.lab(f"L_pw{bit}")
    cmul(a, P0 + 2, P0, L16, TMP)
    cmul(a, P0 + 4, P0, L32, TMP)
    cmul(a, P0 + 6, P0 + 4, L16, TMP)
    a.e("v_lshlrev_b32 v6, 3, v0")
    a.e(f"v_add_u32 v6, {M.scr}, v6")
    a.e(f"ds_write_b64 v6, {vr(L16,2)} offset:9728")
    a.e(f"ds_write_b64 v6, {vr(L256,2)} offset:10240")
    a.e(f"s_mul_i32 s{sT0}, s3, 3584")
    a.e(f"s_add_u32 s{sT0}, s{sT0}, {M.kscr}")
    a.e("v_lshlrev_b32 v2, 3, v0")
    a.e(f"v_add_u32 v2, s{sT0}, v2")
    for i in range(7):
        a.e(f"ds_write_b64 v2, {vr(LAM+2*i,2)} offset:{512*i}")
    a.e("v_and_b32 v8, 15, v0")
    a.e("v_lshrrev_b32 v9, 4, v0")
    a.e("v_lshlrev_b32 v2, 3, v8")
    a.e(f"v_add_u32 v2, s{sT0}, v2")
    a.e("v_lshl_add_u32 v3, v9, 9, v2")
    a.e("s_waitcnt lgkmcnt(0)")
    for ct in range(4):
        a.e(f"ds_read_b64 {vr(KL+2*ct,2)}, v2 offset:{128*ct}")
        a.e(f"ds_read_b64 {vr(KC+2*ct,2)}, v2 offset:{512+128*ct}")
        a.e(f"ds_read_b64 {vr(K8+2*ct,2)}, v2 offset:{1024+128*ct}")
        a.e(f"ds_read_b64 {vr(KP+2*ct,2)}, v3 offset:{1536+128*ct}")
    a.e("v_bfe_u32 v10, v0, 1, 3")
    a.e("v_xor_b32 v10, v10, v9")
    a.e("v_lshlrev_b32 v10, 4, v10")
    a.e("v_lshl_add_u32 v10, v8, 7, v10")
    a.e(f"s_lshl_b32 s{sT0}, s3, 13")
    a.e(f"v_add_u32 v2, s{sT0}, v10")
    a.e("v_xor_b32 v3, 64, v2")
    a.e(f"v_add_u32 v4, {2*M.slot}, v2")
    a.e(f"v_add_u32 v5, {2*M.slot}, v3")
    a.e(f"v_add_u32 v6, {M.woff}, v10")
    a.e("v_xor_b32 v7, 64, v6")
    a.e(f"v_add_u32 v12, {2*M.slot}, v6")
    a.e(f"v_add_u32 v13, {2*M.slot}, v7")
    a.e("s_waitcnt lgkmcnt(0)")
    def xread(ks):
        sl = (ks >> 1) % 3; kk = ks & 1
        reg = (2 if sl < 2 else 4) + kk
        return [f"ds_read_b128 {vr(XB+16*kk+4*tt,4)}, v{reg} offset:{(sl*M.slot if sl < 2 else 0)+tt*2048}" for tt in range(4)]
    def wread(g):
        ks, fr = divmod(g, 8); sl = (ks >> 1) % 3
        reg = (6 if sl < 2 else 12) + (ks & 1)
        return [f"ds_read_b128 {vr(WB+4*(g%8),4)}, v{reg} offset:{(sl*M.slot if sl < 2 else 0)+fr*2048}"]
    def acc(tt, fr): return ACC + 16 * fr + 4 * tt
    def mfma(g, tt):
        ks, fr = divmod(g, 8)
        c = "0" if ks == 0 else vr(acc(tt, fr), 4)
        return f"v_mfma_f32_16x16x32_bf16 {vr(acc(tt,fr),4)}, {vr(XB+16*(ks&1)+4*tt,4)}, {vr(WB+4*(g%8),4)}, {c}"
    p1_loop(a, M, ACC, WB, XB, xread, wread, mfma, (14, 254, 15))
    stamp(a, 2)
    RS, MR, CSR, CSI = 16, 32, 48, 52
    a.e(f"s_lshl_b32 s{sT0}, s3, 8")
    a.e(f"s_add_u32 s{sT0}, s{sT0}, {M.tab_rs}")
    a.e("v_lshlrev_b32 v2, 4, v9")
    a.e(f"v_add_u32 v2, s{sT0}, v2")
    a.e("v_lshlrev_b32 v3, 2, v8")
    a.e(f"v_add_u32 v3, {M.tab_cs}, v3")
    for tt in range(4):
        a.lds(f"ds_read_b128 {vr(RS+4*tt,4)}, v2 offset:{64*tt}", "t")
        a.lds(f"ds_read_b128 {vr(MR+4*tt,4)}, v2 offset:{1024+64*tt}", "t")
    for fr in range(8):
        a.lds(f"ds_read_b32 v{CSR+fr}, v3 offset:{(fr>>2)*512+64*(fr&3)}", "t")
    EL = M.scr; CAR = EL + 8192
    a.e(f"s_lshl_b32 s{sT0}, s3, 11")
    a.e(f"s_add_u32 s{sT0}, s{sT0}, {EL}")
    a.e("v_lshlrev_b32 v4, 3, v8")
    a.e("v_lshl_add_u32 v5, v9, 9, v4")
    a.e(f"v_add_u32 v5, s{sT0}, v5")
    a.e(f"v_add_u32 v4, {CAR}, v4")
    a.wait(lg=["t"])
    R = lambda ct: ACC + 16 * ct
    I = lambda ct: ACC + 64 + 16 * ct
    H = 56
    def scan_step(ct, hr, hi, ur, ui, dr, di, tr, ti):
        lam = KL + 2 * ct
        a.e(f"v_pk_fma_f32 {vr(tr,2)}, {vr(lam,2)}, {vr(hr,2)}, {vr(ur,2)} op_sel:[0,0,0] op_sel_hi:[0,1,1]")
        a.e(f"v_pk_fma_f32 {vr(ti,2)}, {vr(lam,2)}, {vr(hi,2)}, {vr(ui,2)} op_sel:[0,0,0] op_sel_hi:[0,1,1]")
        a.e(f"v_pk_fma_f32 {vr(dr,2)}, {vr(lam,2)}, {vr(hi,2)}, {vr(tr,2)} op_sel:[1,0,0] op_sel_hi:[1,1,1] neg_lo:[1,0,0] neg_hi:[1,0,0]")
        a.e(f"v_pk_fma_f32 {vr(di,2)}, {vr(lam,2)}, {vr(hr,2)}, {vr(ti,2)} op_sel:[1,0,0] op_sel_hi:[1,1,1]")
    def lncorr(fr, j):
        u = ACC + 16 * fr + 2 * j
        cs = CSR + fr
        sel = cs & 1; csp = cs - sel
        a.e(f"v_pk_mul_f32 {vr(u,2)}, {vr(u,2)}, {vr(RS+2*j,2)}")
        a.e(f"v_pk_fma_f32 {vr(u,2)}, {vr(MR+2*j,2)}, {vr(csp,2)}, {vr(u,2)} op_sel:[0,{sel},0] op_sel_hi:[1,{sel},1] neg_lo:[1,0,0] neg_hi:[1,0,0]")
    E0 = 244
    for cp in range(2):
        cts = (2 * cp, 2 * cp + 1)
        cur = {}
        for j in range(8):
            for ct in cts:
                lncorr(ct, j); lncorr(4 + ct, j)
            if j == 0: continue
            for i, ct in enumerate(cts):
                b = H + 12 * i
                hr, hi = (R(ct), I(ct)) if j == 1 else cur[ct]
                dr, di = b + 4 * (j & 1), b + 4 * (j & 1) + 2
                scan_step(ct, hr, hi, R(ct) + 2 * j, I(ct) + 2 * j, dr, di, b + 8, b + 10)
                cur[ct] = (dr, di)
        for i, ct in enumerate(cts):
            hr, hi = cur[ct]; b = H + 12 * i
            a.e(f"v_mov_b32 v{E0+2*ct}, v{hr}")
            a.e(f"v_mov_b32 v{E0+2*ct+1}, v{hi}")
            a.e(f"v_mov_b32 v{b}, v{hr+1}")
            a.e(f"v_mov_b32 v{b+1}, v{hi+1}")
            cfma(a, b + 2, K8 + 2 * ct, E0 + 2 * ct, b, b + 8)
            a.lds(f"ds_write_b64 v5, {vr(b+2,2)} offset:{128*ct}")
    a.e("v_mov_b32 v15, 11")
    a.lds("ds_write_b32 v254, v15 offset:48")
    a.e("s_setprio 0")
    stamp(a, 3)
    for ct in range(4):
        cf = KC + 2 * ct
        for j in range(8):
            ur, ui = R(ct) + 2 * j, I(ct) + 2 * j
            t = H + 4 * (j & 1)
            a.e(f"v_pk_mul_f32 {vr(t,2)}, {vr(cf,2)}, {vr(ur,2)} op_sel:[0,0] op_sel_hi:[0,1]")
            a.e(f"v_pk_mul_f32 {vr(t+2,2)}, {vr(cf,2)}, {vr(ur,2)} op_sel:[1,0] op_sel_hi:[1,1]")
            a.e(f"v_pk_fma_f32 {vr(ur,2)}, {vr(cf,2)}, {vr(ui,2)}, {vr(t,2)} op_sel:[1,0,0] op_sel_hi:[1,1,1] neg_lo:[1,0,0] neg_hi:[1,0,0]")
            a.e(f"v_pk_fma_f32 {vr(ui,2)}, {vr(cf,2)}, {vr(ui,2)}, {vr(t+2,2)} op_sel:[0,0,0] op_sel_hi:[0,1,1]")
    a.e(f"s_mul_i32 s{sT0}, s3, 10240")
    a.e("v_mul_u32_u24 v6, 144, v8")
    a.e("v_lshl_add_u32 v6, v9, 5, v6")
    a.e(f"v_add_u32 v6, s{sT0}, v6")
    a.e("v_bfe_u32 v7, v0, 2, 2")
    a.e("v_lshl_add_u32 v7, v9, 3, v7")
    a.e("v_mul_u32_u24 v7, 144, v7")
    a.e("v_and_b32 v10, 3, v0")
    a.e("v_lshl_add_u32 v7, v10, 3, v7")
    a.e(f"v_add_u32 v7, s{sT0}, v7")
    a.e(f"s_lshl_b32 s{sT0}, s{sM}, 2")
    a.e(f"s_add_u32 s{sT0}, s{sT0}, s3")
    a.e(f"s_mul_i32 s{sT0}, s{sT0}, {HA_SLAB}")
    srd(a, rA, pWS, HA_SLAB, add=f"s{sT0}")
    a.e(f"s_lshl_b32 s{sT1}, s{sG}, 14")
    lds_wait_ge(a, 14, 40, 12, "L_s2a", tmp=10)
    lds_wait_ge(a, 14, 44, 12, "L_s2", tmp=10)
    a.e("s_setprio 3")
    stamp(a, 4)
    PS, CW = 16, 24
    for ct in range(4):
        a.lds(f"ds_read_b64 {vr(PS+2*ct,2)}, v5 offset:{128*ct}", ("c", ct))
        a.lds(f"ds_read_b64 {vr(CW+2*ct,2)}, v4 offset:{128*ct}", ("c", ct))
    INI = 32
    for ct in range(4):
        a.wait(lg=[("c", ct)])
        c0, c1 = H, H + 2
        cfma(a, c0, KP + 2 * ct, CW + 2 * ct, PS + 2 * ct, H + 8)
        cfma(a, c1, K8 + 2 * ct, c0, E0 + 2 * ct, H + 8)
        cmul(a, H + 4, KC + 2 * ct, c0, H + 8)
        cmul(a, H + 6, KC + 2 * ct, c1, H + 10)
        b = INI + 4 * ct
        a.e(f"v_mov_b32 v{b}, v{H+4}")
        a.e(f"v_mov_b32 v{b+1}, v{H+6}")
        a.e(f"v_mov_b32 v{b+2}, v{H+5}")
        a.e(f"v_mov_b32 v{b+3}, v{H+7}")
    PK = 56
    def scan2(cp):
        for j in range(8):
            for ct in (2 * cp, 2 * cp + 1):
                b = INI + 4 * ct
                hr, hi = (b, b + 2) if j == 0 else (R(ct) + 2 * (j - 1), I(ct) + 2 * (j - 1))
                ur, ui = R(ct) + 2 * j, I(ct) + 2 * j
                scan_step(ct, hr, hi, ur, ui, ur, ui, ur, ui)
    def pack(cp):
        k = 0
        for ct in (2 * cp, 2 * cp + 1):
            for comp in range(2):
                base = ACC + 64 * comp + 16 * ct
                neg = "-" if comp else ""
                for sg in range(2):
                    q = PK + 4 * (k % 6); k += 1
                    for tt in range(4):
                        a.e(f"v_cvt_pk_bf16_f32 v{q+tt}, {neg}v{base+4*tt+sg}, {neg}v{base+4*tt+2+sg}")
                    a.lds(f"ds_write_b128 v6, {vr(q,4)} offset:{(32*comp+16*(ct&1))*144+16*sg}", ("w", cp, k))
                    if k >= 5: a.wait(lg=[("w", cp, k - 4)])
    def tread(cp):
        O = ACC + 32 * cp
        for kk, ksl in enumerate((cp, 2 + cp)):
            for mi in range(4):
                o = O + 16 * kk + 4 * mi
                for sub in range(2):
                    a.lds(f"ds_read_b64_tr_b16 {vr(o+2*sub,2)}, v7 offset:{(32*kk+4*sub)*144+32*mi}", ("o", cp, kk, mi))
    def tstore(cp):
        O = ACC + 32 * cp
        for kk, ksl in enumerate((cp, 2 + cp)):
            a.e(f"s_add_u32 s{sT2}, s{sT1}, {4096*ksl}")
            for mi in range(4):
                o = O + 16 * kk + 4 * mi
                a.wait(lg=[("o", cp, kk, mi)])
                a.e(f"buffer_store_dwordx4 {vr(o,4)}, v1, {sq(rA)}, s{sT2} offen offset:{1024*mi} sc1")
    scan2(0); pack(0); scan2(1)
    a.wait(lg_all=True)
    tread(0); pack(1); tstore(0)
    a.wait(lg_all=True)
    tread(1); tstore(1)
    stamp(a, 5)

def lds_wait_ge(a, addr_v, off, val, lab, tmp=13, sreg=None):
    sreg = sreg or sT5
    a.lab(lab)
    a.e(f"ds_read_b32 v{tmp}, v{addr_v} offset:{off}")
    a.e("s_waitcnt lgkmcnt(0)")
    a.e(f"v_readfirstlane_b32 s{sreg}, v{tmp}")
    a.e("s_nop 0")
    a.e(f"s_cmp_ge_u32 s{sreg}, {val}")
    a.e(f"s_cbranch_scc1 {lab}x")
    if tmp == 46 and OPT.get("hsl", 3): a.e(f"s_sleep {OPT.get('hsl', 3)}")
    a.e("s_add_u32 s67, s67, 1")
    a.e("s_cmp_lt_u32 s67, 0x400000")
    a.e(f"s_cbranch_scc1 {lab}")
    a.lab(lab + "x")
    a.lg = []

def fre1_wait(a, val, lab):
    a.lab(lab)
    a.e("ds_read_b128 v[4:7], v251 offset:48")
    a.e("s_waitcnt lgkmcnt(0)")
    a.e("v_min3_u32 v4, v4, v5, v6")
    a.e("v_min_u32 v4, v4, v7")
    a.e(f"v_cmp_gt_u32 vcc, {val}, v4")
    a.e(f"s_cbranch_vccz {lab}x")
    a.e(f"s_sleep {OPT.get('fsl', 1)}")
    a.e("s_add_u32 s67, s67, 1")
    a.e("s_cmp_lt_u32 s67, 0x400000")
    a.e(f"s_cbranch_scc1 {lab}")
    a.lab(lab + "x")
    a.lg = []

def compute_p2(a):
    a.lab("L_p2")
    a.reset()
    srd(a, rW, pWS, 131072, add=hex(DONE_OFF))
    a.e(f"s_lshl_b32 s{sT3}, s{sM}, 2")
    a.e(f"s_add_u32 s{sT3}, s{sT3}, s3")
    a.e(f"s_lshl_b32 s{sT3}, s{sT3}, 5")
    a.e(f"s_add_u32 s{sT3}, s{sT3}, s{sGI}")
    a.e(f"s_lshl_b32 s{sT3}, s{sT3}, 7")
    a.e(f"v_mov_b32 v14, s{sTAG}")
    a.e("v_lshlrev_b32 v15, 2, v0")
    a.e("v_and_b32 v8, 15, v0")
    a.e("v_lshrrev_b32 v9, 4, v0")
    a.e("v_bfe_u32 v2, v0, 1, 3")
    a.e("v_xor_b32 v2, v2, v9")
    a.e("v_lshlrev_b32 v2, 4, v2")
    a.e("v_lshl_add_u32 v2, v8, 7, v2")
    a.e("v_xor_b32 v3, 64, v2")
    a.e("s_cmp_lt_u32 s3, 2")
    a.e("s_cbranch_scc1 L_p2_c")
    a.e("v_mov_b32 v2, v1")
    a.e("v_add_u32 v3, 1024, v1")
    a.lab("L_p2_c")
    a.e(f"s_mul_i32 s{sLB}, s3, 10240")
    def bases():
        a.e(f"v_add_u32 v2, s{sLB}, v2")
        a.e(f"v_add_u32 v3, s{sLB}, v3")
        for i in range(4): a.e(f"v_add_u32 v{4+i}, s{sPIT}, v{2+i}")
    bases()
    a.e(f"s_lshl_b32 s{sT0}, s3, 2")
    a.e(f"s_add_u32 s{sT0}, s{sT0}, s{sSYN}")
    a.e(f"v_mov_b32 v12, s{sT0}")
    a.e("s_waitcnt vmcnt(0)")
    a.e("s_mov_b32 exec_hi, 0")
    a.e(f"buffer_store_dword v14, v15, {sq(rW)}, s{sT3} offen sc1")
    a.e("s_mov_b64 exec, -1")
    stamp(a, 8)
    ACC, WB, XB = 16, 96, 176
    wreg = lambda u, kk, nt: WB + 40 * (u & 1) + 20 * kk + 4 * nt
    xreg = lambda u, kk, mi: XB + 32 * (u & 1) + 16 * kk + 4 * mi
    def pulls(u):
        return [(f"ds_read_b128 {vr(wreg(u,kk,nt),4)}, v{2+2*ent(u)+kk} offset:{2048*nt}", ("W", u)) for kk in range(2) for nt in range(5)]
    def freed(n):
        a.e(f"v_mov_b32 v13, {n}")
        a.lds("ds_write_b32 v12, v13 offset:16")
    for u in range(2):
        lds_wait_ge(a, 12, 0, u + 1, f"L_p2_r{u}")
        for ins, tag in pulls(u): a.lds(ins, tag)
        a.wait(lg_all=True)
        freed(u + 1)
    a.e(f"v_add_u32 v10, s{sLB}, v1")
    a.e(f"v_add_u32 v11, s{sPIT}, v10")
    a.e(f"s_mov_b32 s{sT0}, 0x160c0600")
    a.e(f"s_mov_b32 s{sT1}, 0x09090605")
    a.e(f"s_lshl_b32 s{sT2}, s3, 3")
    a.e(f"s_lshr_b32 s{sT0}, s{sT0}, s{sT2}")
    a.e(f"s_lshr_b32 s{sT1}, s{sT1}, s{sT2}")
    a.e(f"s_and_b32 s{sT0}, s{sT0}, 0xff")
    a.e(f"s_and_b32 s{sT1}, s{sT1}, 0xff")
    a.e(f"v_min_u32 v244, s{sT1}, v0")
    a.e("v_lshlrev_b32 v244, 7, v244")
    a.e(f"s_lshl_b32 s{sT2}, s{sMT}, 5")
    a.e(f"s_add_u32 s{sT0}, s{sT0}, s{sT2}")
    a.e(f"s_lshl_b32 s{sT0}, s{sT0}, 7")
    a.e(f"s_mul_i32 s{sT2}, s{sMT}, {HA_SLAB}")
    srd(a, rA, pWS, HA_SLAB, add=f"s{sT2}")
    a.e(f"s_mul_i32 s{sXO}, s3, {24*4096}")
    a.e(f"s_lshr_b32 s{sT1}, s3, 1")
    a.e(f"s_lshl_b32 s{sT1}, s{sT1}, 13")
    a.e(f"s_sub_u32 s{sXO}, s{sXO}, s{sT1}")
    if OPT.get("xoob"): a.e(f"s_mov_b32 s{sXO}, 0x7000000")
    a.e(f"s_mov_b32 s{sT2}, 0")
    a.e("s_mov_b64 exec, 0xffff")
    a.lab("L_p2_poll")
    a.e(f"buffer_load_dword v245, v244, {sq(rW)}, s{sT0} offen sc1")
    a.e("s_waitcnt vmcnt(0)")
    a.e(f"v_cmp_ne_u32 vcc, s{sTAG}, v245")
    a.e("s_cbranch_vccz L_p2_go")
    a.e(f"s_sleep {OPT.get('psleep', 2)}")
    a.e(f"s_add_u32 s{sT2}, s{sT2}, 1")
    a.e(f"s_cmp_lt_u32 s{sT2}, 0x40000")
    a.e("s_cbranch_scc1 L_p2_poll")
    a.lab("L_p2_go")
    a.e("s_mov_b64 exec, -1")
    stamp(a, 9)
    def xl(u, kk, mi):
        def f():
            a.vmem(f"buffer_load_dwordx4 {vr(xreg(u,kk,mi),4)}, v1, {sq(rA)}, s{sXO} offen offset:{1024*mi} sc1", ("X", u, kk))
            if mi == 3: a.e(f"s_add_u32 s{sXO}, s{sXO}, 4096")
        return f
    for u in range(2):
        for kk in range(2):
            for mi in range(4): xl(u, kk, mi)()
    acc = lambda mi, nt: ACC + 4 * (5 * mi + nt)
    def pwrite(mi, nt):
        a.lds(f"ds_write_b128 v{10+(mi>>1)}, {vr(acc(mi,nt),4)} offset:{1024*(5*(mi&1)+nt)}")
    def mf(u, kk, mi, nt):
        c = "0" if (u == 0 and kk == 0) else vr(acc(mi, nt), 4)
        a.e(f"v_mfma_f32_16x16x32_bf16 {vr(acc(mi,nt),4)}, {vr(wreg(u,kk,nt),4)}, {vr(xreg(u,kk,mi),4)}, {c}")
    def last(u):
        a.wait(vm=[("X", u, 0), ("X", u, 1)])
        tiles = [(mi, nt) for mi in range(4) for nt in range(5)]
        for i in range(0, 20, 2):
            for kk in range(2):
                for mi, nt in tiles[i:i+2]: mf(u, kk, mi, nt)
            if i >= 4:
                for t in tiles[i-4:i-2]: pwrite(*t)
        a.e("s_nop 3")
        for t in tiles[16:18]: pwrite(*t)
        a.e("s_nop 3")
        for t in tiles[18:20]: pwrite(*t)
    slow = []
    for u in range(11):
        if u == 7:
            a.e("s_cmp_lg_u32 s3, 1")
            a.e("s_cbranch_scc1 L_p2_nosw")
            a.e("v_mov_b32 v2, v1")
            a.e("v_add_u32 v3, 1024, v1")
            bases()
            a.lab("L_p2_nosw")
        if u == 8:
            a.e("s_cmp_eq_u32 s3, 1")
            a.e("s_cbranch_scc1 L_p2_fl")
            a.lab("L_p2_nofl")
        if u == 10:
            a.e("s_cmp_eq_u32 s3, 1")
            a.e("s_cbranch_scc1 L_p2_w1")
            vm10 = list(a.vm)
        if OPT.get("ust"): stamp(a, 12 + u)
        fill = {i: [] for i in range(40)}
        if u >= 1:
            lab = f"L_p2_r{u+1}"
            fill[0].append(lambda: a.wait(lg=["rdy"]))
            fill[0].append(lambda u=u: a.e(f"v_cmp_gt_u32 vcc, {u+2}, v9"))
            fill[1].append(lambda lab=lab: (a.e(f"s_cbranch_vccnz {lab}a"), a.lab(lab + "b")))
            slow.append((lab, u + 2))
            for i, (ins, tag) in enumerate(pulls(u + 1)):
                fill[2 + 2 * i].append(lambda ins=ins, tag=tag: a.lds(ins, tag))
            for mi in range(4): fill[3 + 4 * mi].append(xl(u + 1, 1, mi))
            fill[30].append(lambda u=u: a.wait(lg=[("W", u + 1)]))
            if u <= 8:
                fill[30].append(lambda u=u: a.e(f"v_mov_b32 v13, {u+2}"))
                fill[31].append(lambda: a.lds("ds_write_b32 v12, v13 offset:16"))
        if u + 2 < 12:
            for mi in range(4): fill[21 + 4 * mi].append(xl(u + 2, 0, mi))
            fill[34].append(lambda: a.lds("ds_read_b32 v9, v12", "rdy"))
        i = 0
        for kk in range(2):
            a.wait(vm=[("X", u, kk)])
            for nt in range(5):
                for mi in range(4):
                    mf(u, kk, mi, nt)
                    for f in fill[i]: f()
                    i += 1
    if OPT.get("ust"): stamp(a, 23)
    last(11)
    a.lab("L_p2_end")
    stamp(a, 10)
    a.e("s_waitcnt lgkmcnt(0)")
    a.bar()
    stamp_flush(a)
    a.e("s_endpgm")
    a.lab("L_p2_w1")
    a.vm = vm10; a.lg = []
    last(10)
    a.e("s_branch L_p2_end")
    a.lab("L_p2_fl")
    a.e("v_add_u32 v240, 40960, v1")
    a.e(f"v_add_u32 v241, s{sPIT}, v240")
    a.e(f"v_add_u32 v242, s{sPIT}, v241")
    a.e(f"s_cmp_lt_u32 s{sGI}, 10")
    a.e(f"s_cselect_b32 s{sT0}, {147456-40960-5120}, 0")
    a.e(f"s_add_u32 s{sT0}, s{sT0}, 5120")
    a.e(f"v_add_u32 v243, s{sT0}, v240")
    for nt in range(5):
        for mi in range(4):
            a.e(f"ds_write_b128 v{240+mi}, {vr(acc(mi,nt),4)} offset:{1024*nt}")
    a.e("s_waitcnt lgkmcnt(0)")
    for i in range(80): a.e(f"v_mov_b32 v{ACC+i}, 0")
    a.e("s_nop 1")
    a.e("s_branch L_p2_nofl")
    for lab, val in slow:
        a.lab(lab + "a")
        a.e("ds_read_b32 v9, v12")
        a.e("s_waitcnt lgkmcnt(0)")
        a.e(f"v_cmp_gt_u32 vcc, {val}, v9")
        a.e(f"s_cbranch_vccz {lab}b")
        a.e("s_add_u32 s67, s67, 1")
        a.e("s_cmp_lt_u32 s67, 0x400000")
        a.e(f"s_cbranch_scc1 {lab}a")
        a.e(f"s_branch {lab}b")

def helper(a, M):
    ffn = M is FFN
    nm = M.name
    XV, WV = 16, 24
    srd(a, rX, pX, L * D * 2)
    a.e("v_lshrrev_b32 v2, 3, v0")
    a.e("v_and_b32 v3, 7, v0")
    a.e("v_lshrrev_b32 v4, 4, v0")
    a.e("v_xor_b32 v3, v3, v4")
    a.e("v_lshlrev_b32 v3, 4, v3")
    a.e("v_xor_b32 v4, 64, v3")
    if ffn:
        a.e("v_mov_b32 v5, v2")
    else:
        a.e("v_lshrrev_b32 v5, 2, v2")
        a.e("v_lshlrev_b32 v5, 4, v5")
        a.e("v_and_b32 v6, 1, v2")
        a.e("v_lshl_add_u32 v5, v6, 3, v5")
        a.e("v_bfe_u32 v6, v2, 1, 1")
        a.e("v_add_u32 v5, v5, v6")
    a.e(f"s_lshl_b32 s{sT0}, s{sM}, 8")
    a.e(f"s_lshl_b32 s{sT1}, s{sHW}, 6")
    a.e(f"s_add_u32 s{sT0}, s{sT0}, s{sT1}")
    a.e(f"v_add_u32 v5, s{sT0}, v5")
    a.e("v_mul_u32_u24 v5, 1280, v5")
    a.e("v_add_u32 v6, v5, v3")
    a.e("v_add_u32 v7, v5, v4")
    for i in range(8):
        rows = 8 * i if ffn else 32 * (i & 1) + 2 * (i >> 1)
        a.e(f"v_add_u32 v{XV+i}, {rows*1280}, v{6+(i&1)}")
    a.e(f"s_cmp_ge_u32 s{sHW}, 2")
    if ffn:
        a.e(f"s_cselect_b32 s{rW}, s{pW3}, s{pW1}")
        a.e(f"s_cselect_b32 s{rW+1}, s{pW3+1}, s{pW1+1}")
        a.e(f"s_mov_b32 s{rW+2}, {D*F*2}")
        a.e(f"s_mov_b32 s{rW+3}, 0x00020000")
        a.e(f"s_sub_u32 s{sG}, s{sGI}, 10")
        a.e(f"s_mul_i32 s{sT0}, s{sG}, 160")
        a.e(f"s_min_u32 s{sT0}, s{sT0}, 3296")
        a.e(f"s_and_b32 s{sT1}, s{sHW}, 1")
        a.e(f"s_mul_i32 s{sT1}, s{sT1}, {32*3456}")
        a.e(f"s_add_u32 s{sT0}, s{sT0}, s{sT1}")
        for n in range(5):
            a.e(f"v_add_u32 v8, {64*n}, v0")
            a.e("v_mul_u32_u24 v9, 6554, v8")
            a.e("v_lshrrev_b32 v9, 16, v9")
            a.e("v_mul_u32_u24 v10, 10, v9")
            a.e("v_sub_u32 v10, v8, v10")
            a.e("v_mul_u32_u24 v9, 3456, v9")
            a.e("v_lshl_add_u32 v9, v10, 4, v9")
            a.e(f"v_add_u32 v{WV+n}, s{sT0}, v9")
        a.e(f"s_mul_i32 s{sLB}, s{sHW}, 5120")
        NW = 5; WSTEP = 64 * 3456
    else:
        a.e(f"s_cselect_b32 s{rW}, s{pBIM}, s{pBRE}")
        a.e(f"s_cselect_b32 s{rW+1}, s{pBIM+1}, s{pBRE+1}")
        a.e(f"s_mov_b32 s{rW+2}, {P*D*2}")
        a.e(f"s_mov_b32 s{rW+3}, 0x00020000")
        a.e(f"s_mov_b32 s{sG}, s{sGI}")
        a.e(f"s_lshl_b32 s{sT0}, s{sG}, 6")
        a.e(f"s_and_b32 s{sT1}, s{sHW}, 1")
        a.e(f"s_lshl_b32 s{sT1}, s{sT1}, 5")
        a.e(f"s_add_u32 s{sT0}, s{sT0}, s{sT1}")
        a.e(f"v_add_u32 v5, s{sT0}, v2")
        a.e("v_mul_u32_u24 v5, 1280, v5")
        a.e("v_add_u32 v6, v5, v3")
        a.e("v_add_u32 v7, v5, v4")
        for n in range(4):
            a.e(f"v_add_u32 v{WV+n}, {8*n*1280}, v{6+(n&1)}")
        a.e(f"s_lshl_b32 s{sLB}, s{sHW}, 12")
        NW = 4; WSTEP = 128
    a.e(f"s_lshl_b32 s77, s{sHW}, 13")
    def issue_w(ls, i, so=None, tag=None):
        base = (ls % 3) * M.slot
        a.e(f"s_add_u32 m0, s{sLB}, {base+M.woff+1024*i}")
        a.e("s_nop 0"); so = so or sWO
        a.vmem(f"buffer_load_dwordx4 v{WV+i}, {sq(rW)}, s{so} offen lds", tag or ("S", ls))
    def issue_x(ls, i):
        base = (ls % 3) * M.slot
        a.e(f"s_add_u32 m0, s77, {base+1024*i}")
        a.e("s_nop 0")
        a.vmem(f"buffer_load_dwordx4 v{XV+i}, {sq(rX)}, s{sXO} offen lds", ("S", ls))
    def issue_stage(ls, w=True, x=True, part=None):
        ops = []
        for i in range(8):
            if i < NW and w: ops.append((issue_w, i))
            if x: ops.append((issue_x, i))
        h = OPT.get("half", 6)
        if part == 0: ops = ops[:h]
        if part == 1: ops = ops[h:]
        a.e(f"s_movk_i32 s{sXO}, {128*ls}")
        a.e(f"s_mov_b32 s{sWO}, {WSTEP*ls}")
        for f, i in ops: f(ls, i)
    stamp(a, 4)
    issue_stage(0)
    stamp(a, 5)
    if not ffn:
        a.e(f"s_lshl_b32 s{sT0}, s{sG}, 13")
        a.e(f"s_add_u32 s{sT0}, s{sT0}, {hex(AGG_OFF)}")
        srd(a, rB, pWS, 8192, add=f"s{sT0}")
        a.e(f"s_lshl_b32 s79, s{sM}, 10")
    a.e("s_waitcnt lgkmcnt(0)")
    a.e(f"s_add_u32 s{sTAG}, s{sTAG}, 0x9E3779B1")
    issue_stage(1, part=0)
    stamp(a, 6)
    CF, CA, ONE = 40, 64, 36
    for i in range(4): a.e(f"v_mov_b32 v{ONE+i}, 0x3f803f80")
    a.e("v_lshrrev_b32 v9, 4, v0")
    if ffn:
        a.e("v_bfe_u32 v8, v0, 2, 2")
        a.e("v_lshl_add_u32 v8, v9, 2, v8")
        a.e("v_mul_u32_u24 v8, 160, v8")
        a.e("v_and_b32 v10, 3, v0")
        a.e("v_lshl_add_u32 v8, v10, 3, v8")
    else:
        a.e("v_and_b32 v10, 15, v0")
        a.e("v_lshlrev_b32 v8, 7, v10")
        a.e("v_bfe_u32 v10, v0, 1, 3")
        a.e("v_xor_b32 v10, v10, v9")
        a.e("v_lshl_add_u32 v8, v10, 4, v8")
    a.e(f"s_add_u32 s{sT0}, s{sLB}, {M.woff}")
    a.e(f"v_add_u32 v8, s{sT0}, v8")
    a.e(f"v_add_u32 v11, {2*M.slot}, v8")
    if not ffn:
        a.e("v_xor_b32 v13, 64, v8")
        a.e("v_xor_b32 v14, 64, v11")
    for i in range(20): a.e(f"v_mov_b32 v{CA+i}, 0")
    def colsum(st):
        reg, off = (8, st * M.slot) if st < 2 else (11, 0)
        n = 5 if ffn else 4
        for t in range(n):
            if ffn:
                a.lds(f"ds_read_b64_tr_b16 {vr(CF+4*t,2)}, v{reg} offset:{off+32*t}", ("c", t))
                a.lds(f"ds_read_b64_tr_b16 {vr(CF+4*t+2,2)}, v{reg} offset:{off+32*t+2560}", ("c", t))
            else:
                r2 = reg if t < 2 else {8: 13, 11: 14}[reg]
                a.lds(f"ds_read_b128 {vr(CF+4*t,4)}, v{r2} offset:{off+2048*(t&1)}", ("c", t))
        for t in range(n):
            a.wait(lg=[("c", t)])
            c = vr(CA + 4 * (t if ffn else t & 1), 4)
            a.e(f"v_mfma_f32_16x16x32_bf16 {c}, {vr(ONE,4)}, {vr(CF+4*t,4)}, {c}")
    srd(a, rC, pWS, 32 * 32768, add=hex(CS_OFF))
    a.e(f"s_lshl_b32 s{sT2}, s{sGI}, 15")
    a.e(f"s_lshl_b32 s{sT1}, s{sM}, {12 if ffn else 11}")
    a.e(f"s_add_u32 s{sT2}, s{sT2}, s{sT1}")
    a.e(f"s_lshr_b32 s{sT1}, s{sHW}, 1")
    a.e(f"s_lshl_b32 s{sT1}, s{sT1}, 10")
    a.e(f"s_add_u32 s{sT2}, s{sT2}, s{sT1}")
    a.e(f"s_and_b32 s{sT1}, s{sHW}, 1")
    a.e(f"s_lshl_b32 s{sT1}, s{sT1}, {11 if ffn else 8}")
    a.e(f"s_add_u32 s78, s{sT2}, s{sT1}")
    a.e(f"s_add_u32 s87, s{sM}, 2")
    a.e(f"s_mul_i32 s87, s87, {WSTEP}")
    a.e("v_lshlrev_b32 v9, 2, v0")
    a.e("v_lshlrev_b32 v12, 3, v0")
    a.e(f"s_lshl_b32 s{sT0}, s{sHW}, 2")
    a.e(f"s_add_u32 s{sT0}, s{sT0}, s{sSYN}")
    a.e(f"v_mov_b32 v15, s{sT0}")
    a.e(f"v_mov_b32 v251, s{sSYN}")
    a.e("v_mov_b32 v252, v4")
    a.e("v_mov_b32 v32, 0")
    for o in (0, 16, 32, 48): a.e(f"ds_write_b32 v15, v32 offset:{o}")
    def rdy(n):
        a.e(f"v_mov_b32 v253, {n}")
        a.e("ds_write_b32 v15, v253 offset:32")
        stamp(a, 11 + n)
    a.wait(vm=[("S", 0)])
    a.e("s_waitcnt lgkmcnt(0)")
    stamp(a, 12)
    a.bar()
    stamp(a, 1)
    def cs_publish():
      if True:
        for t in range(1, 4 if ffn else 2):
            m = 0xffff << (16 * t)
            a.e(f"s_mov_b32 exec_lo, {hex(m & 0xffffffff)}")
            a.e(f"s_mov_b32 exec_hi, {hex(m >> 32)}")
            a.e(f"v_mov_b32 v{CA}, v{CA+4*t}")
        a.e("s_mov_b64 exec, -1")
        a.e(f"v_mov_b32 v{CA+1}, s{sTAG}")
        a.e(f"v_mov_b32 v{CA+17}, s{sTAG}")
        if ffn:
            a.vmem(f"buffer_store_dwordx2 {vr(CA,2)}, v12, {sq(rC)}, s78 offen sc1", "cs")
            a.e("s_mov_b64 exec, 0xffff")
            a.vmem(f"buffer_store_dwordx2 {vr(CA+16,2)}, v12, {sq(rC)}, s78 offen offset:512 sc1", "cs")
        else:
            a.e("s_mov_b32 exec_hi, 0")
            a.vmem(f"buffer_store_dwordx2 {vr(CA,2)}, v12, {sq(rC)}, s78 offen sc1", "cs")
        a.e("s_mov_b64 exec, -1")
    issue_stage(1, part=1)
    for i in range(NW): issue_w(2, i, so=87, tag="slab")
    a.wait(vm=[("S", 1)])
    rdy(2)
    r0 = 2 if ffn else 3
    if not r0:
        relay_start(a, M)
        a.vm.append("rl")
    a.e(f"s_movk_i32 s{sXO}, 256")
    for i in range(0 if r0 else 5, 8): issue_x(2, i)
    a.e(f"s_cmp_lg_u32 s{sM}, 0")
    a.e(f"s_cbranch_scc1 L_h{nm}_cs0")
    colsum(0)
    colsum(1)
    a.lab(f"L_h{nm}_cs0")
    a.wait(vm=["slab"])
    colsum(2)
    issue_stage(2, x=False)
    cs_publish()
    if not r0:
        a.wait(vm=["rl"])
        relay_finish(a, M)
        for i in range(5): issue_x(2, i)
    srd(a, rD, pWS, 65536, add=hex(ST1_OFF))
    if ffn:
        a.e("v_lshlrev_b32 v10, 5, v0")
    else:
        a.e("v_bfe_u32 v10, v0, 2, 2")
        a.e("v_lshlrev_b32 v10, 4, v10")
        a.e("v_and_b32 v30, 1, v0")
        a.e("v_lshl_add_u32 v10, v30, 3, v10")
        a.e("v_lshrrev_b32 v30, 4, v0")
        a.e("v_lshl_add_u32 v10, v30, 1, v10")
        a.e("v_bfe_u32 v30, v0, 1, 1")
        a.e("v_add_u32 v10, v10, v30")
        a.e("v_lshlrev_b32 v10, 5, v10")
    a.e(f"s_lshl_b32 s18, s{sM}, 13")
    a.e(f"s_lshl_b32 s{sT1}, s{sHW}, 11")
    a.e(f"s_add_u32 s18, s18, s{sT1}")
    a.e(f"s_lshl_b32 s19, s{sGI}, 15")
    a.e(f"s_lshl_b32 s{sT1}, s{sHW}, 9")
    if ffn:
        a.e(f"s_add_u32 s19, s19, s{sT1}")
        a.e(f"s_bitcmp1_b32 s{sHW}, 0")
        a.e(f"s_cselect_b32 s{sT2}, 0x78, -1")
        a.e(f"v_and_b32 v13, s{sT2}, v12")
    else:
        a.e(f"s_and_b32 s{sT2}, s{sT1}, 0x400")
        a.e(f"s_add_u32 s19, s19, s{sT2}")
        a.e("v_mov_b32 v13, v12")
    NP = 16 if ffn else 8
    def gather(track):
        f = a.vmem if track else (lambda ins, tag: a.e(ins))
        f(f"buffer_load_dwordx4 v[32:35], v10, {sq(rD)}, s18 offen sc1", "g")
        for p in range(NP):
            if p % 2 == 0: a.e(f"s_add_u32 s{sT0}, s19, {2048*p}")
            f(f"buffer_load_dwordx2 {vr(40+2*p,2)}, v13, {sq(rC)}, s{sT0} offen offset:{2048*(p&1)} sc1", "g")
    def tables():
        a.wait(vm=["g"])
        a.e(f"s_mov_b32 s{sT3}, 0")
        a.lab(f"L_h{nm}_g")
        a.e(f"v_xor_b32 v36, s{sTAG}, v33")
        a.e(f"v_xor_b32 v37, s{sTAG}, v35")
        a.e("v_or_b32 v36, v36, v37")
        for p in range(NP):
            a.e(f"v_xor_b32 v37, s{sTAG}, v{41+2*p}")
            a.e("v_or_b32 v36, v36, v37")
        a.e("v_cmp_ne_u32 vcc, 0, v36")
        a.e(f"s_cbranch_vccz L_h{nm}_gok")
        a.e("s_sleep 4")
        gather(False)
        a.e("s_waitcnt vmcnt(0)")
        a.e(f"s_add_u32 s{sT3}, s{sT3}, 1")
        a.e(f"s_cmp_lt_u32 s{sT3}, 0x40000")
        a.e(f"s_cbranch_scc1 L_h{nm}_g")
        a.lab(f"L_h{nm}_gok")
        a.e(f"s_lshl_b32 s{sT1}, s{sHW}, 8")
        if ffn:
            a.e(f"s_lshl_b32 s{sT0}, s{sHW}, 9")
            a.e(f"s_add_u32 s{sT0}, s{sT0}, {M.tab_st}")
            a.e(f"v_add_u32 v10, s{sT0}, v12")
            a.e("v_mov_b32 v33, v34")
            a.e("ds_write_b64 v10, v[32:33]")
        else:
            a.e("v_rcp_f32 v33, v34")
            a.e(f"s_add_u32 s{sT0}, s{sT1}, {M.tab_rs}")
            a.e(f"v_add_u32 v10, s{sT0}, v9")
            a.e("v_mul_f32 v32, v32, v33")
            a.e("ds_write_b32 v10, v33")
            a.e("ds_write_b32 v10, v32 offset:1024")
        for p in range(1, NP):
            a.e(f"v_add_f32 v40, v40, v{40+2*p}")
        a.e(f"s_add_u32 s{sT0}, s{sT1}, {M.tab_cs}")
        a.e(f"v_add_u32 v10, s{sT0}, v9")
        a.e("ds_write_b32 v10, v40")
        a.e("s_waitcnt lgkmcnt(0)")
    RB_ = OPT.get("relb", 4); RD_ = OPT.get("reld", 2)
    for b in range(3, 10):
        fre1_wait(a, b - 2, f"L_h{nm}_f{b}")
        if r0 == 2 and b == RB_ + RD_:
            a.e(f"s_movk_i32 s{sXO}, {128*b}")
            a.e(f"s_mov_b32 s{sWO}, {WSTEP*b}")
            for i in range(NW): issue_w(b, i)
            for i in range(5, 8): issue_x(b, i)
            if RD_ == 1:
                a.wait(vm=[("S", b - 1)])
                rdy(b)
            a.wait(vm=["rl"])
            sv = list(a.vm)
            relay_finish(a, M, slot=b % 3, regs=True, mid=(lambda: None) if RD_ == 1 else (lambda: (a.wait(vm=[("S", b - 1)]), rdy(b))))
            for i in range(5): issue_x(b, i)
        else:
            issue_stage(b, part=0)
            a.wait(vm=[("S", b - 1)])
            rdy(b)
            issue_stage(b, part=1)
        if not ffn and b == OPT.get("stch", 99):
            a.e(f"s_lshl_b32 s{sT2}, s{sG}, 3")
            a.e(f"s_add_u32 s{sT2}, s{sT2}, s{sM}")
            a.e(f"s_mul_i32 s{sT0}, s{sT2}, {80*128}")
            a.e(f"s_lshl_b32 s{sT1}, s{sT2}, 1")
            a.e(f"s_add_u32 s{sT1}, s{sT1}, s{sHW}")
            a.e(f"s_mul_i32 s{sT1}, s{sT1}, {108*128}")
            a.e(f"s_cmp_eq_u32 s{sHW}, 2")
            a.e(f"s_cselect_b32 s80, s{pCRE}, s{pCIM}")
            a.e(f"s_cselect_b32 s81, s{pCRE+1}, s{pCIM+1}")
            a.e(f"s_mov_b32 s82, {D*P*2}")
            a.e(f"s_cmp_lt_u32 s{sHW}, 2")
            a.e(f"s_cselect_b32 s80, s{pW2}, s80")
            a.e(f"s_cselect_b32 s81, s{pW2+1}, s81")
            a.e(f"s_cselect_b32 s82, {F*D*2}, s82")
            a.e(f"s_mov_b32 s83, 0x00020000")
            a.e(f"s_cselect_b32 s{sT0}, s{sT1}, s{sT0}")
            a.e(f"s_cselect_b32 s{sT1}, 43, 15")
            a.e("v_lshlrev_b32 v5, 7, v0")
            a.vmem(f"buffer_load_dword v31, v5, {sq(80)}, s{sT0} offen")
            a.e(f"v_min_u32 v5, s{sT1}, v0")
            a.e("v_lshlrev_b32 v5, 7, v5")
            a.e(f"s_add_u32 s{sT0}, s{sT0}, 8192")
            a.vmem(f"buffer_load_dword v31, v5, {sq(80)}, s{sT0} offen")
        if r0 == 2 and b == RB_:
            relay_start(a, M, regs=True)
            a.vm.append("rl")
        if (b == 3 and not r0) or (r0 == 2 and b == RB_ + RD_ + 1):
            a.e(f"v_mov_b32 v253, s{sTAG}")
            a.e("s_mov_b32 exec_hi, 0")
            a.vmem(f"buffer_store_dword v253, v9, {sq(rA)}, s89 offen sc1")
            a.e("s_mov_b64 exec, -1")
    gather(True)
    a.wait(vm=[("S", 9)])
    rdy(10)
    p2_helper_setup(a)
    tables()
    rdy(11)
    a.e(f"s_cmp_lt_u32 s{sHW}, 2")
    a.e(f"s_cbranch_scc1 L_h{nm}_c")
    if not ffn:
        ssm_exchange(a)
        lds_wait_ge(a, 251, 40, 12, "L_hssm_pause", tmp=46)
        lds_wait_ge(a, 251, 44, 12, "L_hssm_pause2", tmp=46)
    wb_switch(a, nm)
    a.lab(f"L_h{nm}_c")
    a.reset()
    order = (0, 1, 2, 3, 4, 5, 6) if ffn else (2, 0, 3, 1, 4, 5, 6)
    for u in order:
        if u < 2: fre1_wait(a, 8 + u, f"L_h{nm}_e{u}")
        p2_load(a, u)
        if u == 4:
            a.wait(vm=[("U", 0), ("U", 1)])
            a.e("v_mov_b32 v46, 2")
            a.e("ds_write_b32 v15, v46")
    stamp(a, 3)
    a.e("s_branch L_h_p2")

sB0, sSTEP = 4, 5
RC = 48
XR, DR = 26, 36
def p2_helper_setup(a):
    lab = len(a.l)
    a.e(f"s_mul_i32 s6, s{sHW}, 10240")
    a.e(f"s_add_u32 s7, s6, s{sPIT}")
    a.e(f"s_add_u32 s8, s7, s{sPIT}")
    for i in range(3): a.e(f"v_add_u32 v{248+i}, s{6+i}, v1")
    srd(a, rX, pCRE, D * P * 2)
    srd(a, rW, pCIM, D * P * 2)
    a.e(f"s_mul_i32 s{sT5}, s{sNG}, 80")
    a.e(f"v_add_u32 v5, s{sT5}, v2")
    a.e("v_mul_u32_u24 v5, 1280, v5")
    a.e("v_add_u32 v6, v5, v3")
    a.e("v_add_u32 v7, v5, v252")
    for i in range(10):
        a.e(f"v_add_u32 v{16+i}, {8*i*1280}, v{6+(i&1)}")
    a.e(f"s_mul_i32 s{sB0}, s{sHW}, 768")
    a.e(f"s_movk_i32 s{sSTEP}, 128")

def p2_load(a, u):
    r = rW if u & 1 else rX
    a.e(f"s_mul_i32 s{sXO}, s{sSTEP}, {u >> 1}")
    a.e(f"s_add_u32 s{sXO}, s{sXO}, s{sB0}")
    if OPT.get("woob"): a.e(f"s_mov_b32 s{sXO}, 0x7000000")
    if u == 11:
        a.e(f"s_cmp_eq_u32 s{sHW}, 1")
        a.e(f"s_cselect_b32 s{sXO}, 0x7000000, s{sXO}")
    for i in range(10):
        if u < 2:
            a.e(f"s_add_u32 m0, s{6+ent(u)}, {1024*i}")
            a.e("s_nop 0")
            a.vmem(f"buffer_load_dwordx4 v{16+i}, {sq(r)}, s{sXO} offen sc1 lds", ("U", u))
        else:
            a.vmem(f"buffer_load_dwordx4 {vr(RC+40*((u-2)%5)+4*i,4)}, v{16+i}, {sq(r)}, s{sXO} offen sc1", ("U", u))

def relay_start(a, M, regs=False):
    nm = M.name
    srd(a, rA, pWS, 65536, add=hex(FL2_OFF))
    a.e(f"s_lshl_b32 s{sT2}, s{sG}, 3")
    a.e(f"s_add_u32 s{sT2}, s{sT2}, s{sM}")
    a.e(f"s_cmp_lt_u32 s{sHW}, 3")
    a.e(f"s_cbranch_scc1 L_rs_{nm}")
    a.e("s_mov_b32 s89, 0x7000000")
    srd(a, 80, pCRE, D * P * 2)
    a.e(f"s_mul_i32 s{sT0}, s{sT2}, 4736")
    if OPT.get("stch", 99) < 10: a.e(f"s_mov_b32 s{sT0}, 0x7000000")
    a.e("v_min_u32 v5, 36, v0")
    a.e("v_lshlrev_b32 v5, 7, v5")
    a.e(f"buffer_load_dword v31, v5, {sq(80)}, s{sT0} offen")
    if OPT.get("stch", 99) >= 10:
        a.e(f"s_mov_b32 s80, s{pCIM}")
        a.e(f"s_mov_b32 s81, s{pCIM+1}")
        a.e(f"buffer_load_dword v31, v5, {sq(80)}, s{sT0} offen")
    a.e(f"s_branch L_rs_{nm}x")
    a.lab(f"L_rs_{nm}")
    srd(a, 80, pW2, F * D * 2)
    a.e(f"s_lshl_b32 s{sT0}, s{sT2}, 1")
    a.e(f"s_add_u32 s{sT0}, s{sT0}, s{sHW}")
    a.e(f"s_add_u32 s{sT1}, s{sT2}, 352")
    a.e(f"s_cmp_eq_u32 s{sHW}, 2")
    a.e(f"s_cselect_b32 s{sT1}, s{sT1}, s{sT0}")
    a.e(f"s_min_u32 s{sT1}, s{sT1}, 480")
    a.e(f"s_cmp_ge_u32 s{sT1}, 432")
    a.e(f"s_cselect_b32 s{sT1}, 480, s{sT1}")
    a.e(f"s_lshr_b32 s{sT0}, s{sT1}, 3")
    a.e(f"s_and_b32 s87, s{sT1}, 7")
    a.e(f"s_lshr_b32 s88, s{sT0}, 1")
    a.e(f"s_mul_i32 s88, s88, 10240")
    a.e(f"s_and_b32 s{sT1}, s{sT0}, 1")
    a.e(f"s_lshl_b32 s{sT1}, s{sT1}, 10")
    a.e(f"s_add_u32 s88, s88, s{sT1}")
    a.e(f"s_lshl_b32 s89, s87, 6")
    a.e(f"s_add_u32 s89, s89, s{sT0}")
    a.e(f"s_lshl_b32 s89, s89, 7")
    a.e(f"s_mul_i32 s{sT1}, s{sT0}, 52")
    a.e(f"s_lshr_b32 s{sT1}, s{sT1}, 8")
    a.e(f"s_mul_i32 s{sT2}, s{sT1}, 5")
    a.e(f"s_sub_u32 s{sT2}, s{sT0}, s{sT2}")
    a.e(f"s_cmp_eq_u32 s{sT0}, 53")
    a.e(f"s_cselect_b32 s{sT2}, 4, s{sT2}")
    a.e(f"s_cselect_b32 s{sT5}, 48, 80")
    a.e(f"s_lshl_b32 s{sT3}, s{sT2}, 5")
    a.e(f"s_cmp_ge_u32 s{sT2}, 2")
    a.e(f"s_cselect_b32 s{sT4}, 16, 0")
    a.e(f"s_add_u32 s{sT3}, s{sT3}, s{sT4}")
    a.e(f"s_cmp_eq_u32 s{sT2}, 4")
    a.e(f"s_cselect_b32 s{sT3}, 64, s{sT3}")
    a.e(f"s_cselect_b32 s{sT4}, s{sT5}, 16")
    a.e(f"s_cselect_b32 s84, 3, 2")
    a.e(f"s_cselect_b32 s85, 4, 16")
    a.e(f"s_mul_i32 s{sT1}, s{sT1}, 160")
    a.e(f"s_add_u32 s{sT3}, s{sT3}, s{sT1}")
    a.e(f"s_sub_u32 s{sT4}, s{sT4}, 16")
    a.e(f"s_mul_i32 s{sT4}, s{sT4}, 1280")
    a.e(f"s_mul_i32 s86, s{sT3}, 1280")
    a.e(f"s_mul_i32 s{sT1}, s87, 160")
    a.e(f"s_add_u32 s86, s86, s{sT1}")
    a.e(f"v_mov_b32 v30, s{sT4}")
    for n in range(5):
        a.e(f"v_add_u32 v5, {64*n}, v0")
        a.e("v_mul_u32_u24 v6, 6554, v5")
        a.e("v_lshrrev_b32 v6, 16, v6")
        a.e("v_mul_u32_u24 v7, 10, v6")
        a.e("v_sub_u32 v7, v5, v7")
        a.e("v_cmp_lt_u32 vcc, 15, v6")
        a.e("v_mul_u32_u24 v6, 1280, v6")
        a.e("v_lshl_add_u32 v6, v7, 4, v6")
        a.e("v_cndmask_b32 v7, 0, v30, vcc")
        if not regs: a.e(f"s_add_u32 m0, s77, {2*M.slot+1024*n}")
        a.e("v_add_u32 v6, v6, v7")
        if regs: a.e(f"buffer_load_dwordx4 {vr(128+4*n,4)}, v6, {sq(80)}, s86 offen")
        else: a.e(f"buffer_load_dwordx4 v6, {sq(80)}, s86 offen lds")
    a.lab(f"L_rs_{nm}x")

def relay_finish(a, M, slot=2, regs=False, mid=None):
    nm = M.name
    a.e(f"s_cmp_eq_u32 s{sHW}, 3")
    a.e(f"s_cbranch_scc1 L_rf_{nm}")
    a.e("v_lshrrev_b32 v5, 4, v0")
    a.e("v_lshlrev_b32 v5, s84, v5")
    a.e("v_bfe_u32 v6, v0, 2, 2")
    a.e("v_add_u32 v5, v5, v6")
    a.e("v_add_u32 v6, s85, v5")
    a.e("v_and_b32 v7, 3, v0")
    a.e("v_lshlrev_b32 v7, 3, v7")
    a.e(f"s_add_u32 s{sT2}, s77, {slot*M.slot}")
    if regs:
        a.e(f"v_add_u32 v4, s{sT2}, v1")
        for n in range(5): a.e(f"ds_write_b128 v4, {vr(128+4*n,4)} offset:{1024*n}")
    a.e(f"v_add_u32 v7, s{sT2}, v7")
    a.e("v_mul_u32_u24 v5, 160, v5")
    a.e("v_mul_u32_u24 v6, 160, v6")
    a.e("v_add_u32 v5, v5, v7")
    a.e("v_add_u32 v6, v6, v7")
    for nt in range(5):
        a.e(f"ds_read_b64_tr_b16 {vr(96+4*nt,2)}, v5 offset:{32*nt}")
        a.e(f"ds_read_b64_tr_b16 {vr(98+4*nt,2)}, v6 offset:{32*nt}")
    a.e(f"s_mul_i32 s{sT4}, s87, {WB_SLAB}")
    a.e(f"s_add_u32 s{sT4}, s{sT4}, {hex(WB_OFF)}")
    srd(a, 80, pWS, WB_SLAB, add=f"s{sT4}")
    a.e(f"s_add_u32 s{sT0}, s88, 4096")
    a.e(f"s_add_u32 s{sT1}, s88, 8192")
    a.lab(f"L_rf_{nm}")
    mid()
    a.e(f"s_cmp_eq_u32 s{sHW}, 3")
    a.e(f"s_cbranch_scc1 L_rg_{nm}")
    a.e("s_waitcnt lgkmcnt(0)")
    for nt in range(5):
        so = (88, sT0, sT1)[nt >> 1]
        a.e(f"buffer_store_dwordx4 {vr(96+4*nt,4)}, v1, {sq(80)}, s{so} offen offset:{2048*(nt&1)} sc1")
    a.lab(f"L_rg_{nm}")

def wb_switch(a, tag):
    srd(a, rA, pWS, 65536, add=hex(FL2_OFF))
    a.e(f"s_mul_i32 s{sT4}, s{sNG}, {WB_SLAB}")
    a.e(f"s_add_u32 s{sT4}, s{sT4}, {hex(WB_OFF)}")
    srd(a, rX, pWS, WB_SLAB, add=f"s{sT4}")
    a.e(f"s_add_u32 s{sT4}, s{sT4}, 10240")
    srd(a, rW, pWS, WB_SLAB - 10240, add=f"s{sT4}")
    for i in range(10): a.e(f"v_add_u32 v{16+i}, {1024*i}, v1")
    a.e(f"s_mul_i32 s{sB0}, s{sHW}, {12*10240}")
    a.e(f"s_sub_u32 s{sB0}, s{sB0}, {20*10240}")
    a.e(f"s_lshr_b32 s{sT0}, s{sHW}, 1")
    a.e(f"s_mul_i32 s{sT0}, s{sT0}, 10240")
    a.e(f"s_sub_u32 s{sB0}, s{sB0}, s{sT0}")
    a.e(f"s_movk_i32 s{sSTEP}, 20480")
    a.e("v_min_u32 v11, 53, v0")
    a.e("v_lshlrev_b32 v11, 7, v11")
    a.e(f"s_lshl_b32 s{sT0}, s{sNG}, 13")
    a.e(f"s_mov_b32 s{sT2}, 0")
    a.lab(f"L_f2{tag}")
    a.e(f"buffer_load_dword v253, v11, {sq(rA)}, s{sT0} offen sc1")
    a.e("s_waitcnt vmcnt(0)")
    a.e(f"v_cmp_ne_u32 vcc, s{sTAG}, v253")
    a.e(f"s_cbranch_vccz L_f2ok{tag}")
    a.e(f"s_sleep {OPT.get('fsleep', 8)}")
    a.e(f"s_add_u32 s{sT2}, s{sT2}, 1")
    a.e(f"s_cmp_lt_u32 s{sT2}, 0x40000")
    a.e(f"s_cbranch_scc1 L_f2{tag}")
    a.lab(f"L_f2ok{tag}")

def ssm_exchange(a):
    M = SSM
    EL = M.scr
    X = 64; LP = 60
    a.e("s_setprio 2")
    a.e("v_lshlrev_b32 v3, 3, v0")
    a.e(f"v_add_u32 v3, {EL}, v3")
    a.e(f"s_cmp_eq_u32 s{sHW}, 3")
    a.e("s_cbranch_scc1 L_x_gather")
    a.e(f"ds_read_b64 {vr(LP,2)}, v3 offset:9728")
    a.e(f"v_mov_b32 v97, s{sTAG}")
    a.e(f"v_mov_b32 v99, s{sTAG}")
    stamp(a, 23)
    fre1_wait(a, 11, "L_x_s1")
    stamp(a, 24)
    a.lg = []
    for s in range(16):
        a.lds(f"ds_read_b64 {vr(X+2*s,2)}, v3 offset:{512*s}", ("E", s))
    for s in range(1, 16):
        a.wait(lg=[("E", s)])
        cfma(a, X + 2 * s, LP, X + 2 * (s - 1), X + 2 * s, 58)
    a.e(f"v_mov_b32 v96, v{X+30}")
    a.e(f"v_mov_b32 v98, v{X+31}")
    a.e(f"buffer_store_dwordx4 v[96:99], v1, {sq(rB)}, s79 offen sc1")
    stamp(a, 25)
    a.e("v_mov_b32 v58, 0")
    a.e("v_mov_b32 v59, 0")
    a.e("ds_write_b64 v3, v[58:59]")
    for s in range(1, 16):
        a.e(f"ds_write_b64 v3, {vr(X+2*(s-1),2)} offset:{512*s}")
    a.e("s_branch L_x_done")
    a.lab("L_x_gather")
    a.e(f"ds_read_b64 {vr(LP,2)}, v3 offset:10240")
    for i in range(1, 8):
        a.e(f"s_sub_u32 s{sT1}, s79, {1024*i}")
        a.e(f"s_cmp_ge_u32 s{sM}, {i}")
        a.e(f"s_cselect_b32 s{79+i}, s{sTAG}, 0")
        a.e(f"s_cselect_b32 s{17+i}, s{sT1}, 0x10000")
    G = 100
    a.e(f"s_mov_b32 s{sT1}, 0")
    stamp(a, 23)
    fre1_wait(a, 10, "L_x_s0")
    stamp(a, 24)
    a.lab("L_x_poll")
    for i in range(1, 8):
        a.e(f"buffer_load_dwordx4 {vr(G+4*(i-1),4)}, v1, {sq(rB)}, s{17+i} offen sc1")
    a.e("s_waitcnt vmcnt(0)")
    a.e("v_mov_b32 v58, 0")
    for i in range(1, 8):
        a.e(f"v_xor_b32 v59, s{79+i}, v{G+4*(i-1)+1}")
        a.e(f"v_xor_b32 v57, s{79+i}, v{G+4*(i-1)+3}")
        a.e("v_or3_b32 v58, v58, v59, v57")
    a.e("v_cmp_ne_u32 vcc, 0, v58")
    a.e("s_cbranch_vccz L_x_ok")
    a.e(f"s_sleep {OPT.get('xsl', 3)}")
    a.e(f"s_add_u32 s{sT1}, s{sT1}, 1")
    a.e(f"s_cmp_lt_u32 s{sT1}, 0x40000")
    a.e("s_cbranch_scc1 L_x_poll")
    a.lab("L_x_ok")
    stamp(a, 25)
    for i in range(1, 8):
        a.e(f"v_mov_b32 v{G+4*(i-1)+1}, v{G+4*(i-1)+2}")
    for i in range(6, 0, -1):
        cfma(a, G + 4 * (i - 1), LP, G + 4 * i, G + 4 * (i - 1), 58)
    a.e(f"ds_write_b64 v3, {vr(G,2)} offset:8192")
    a.lab("L_x_done")
    a.e("v_mov_b32 v46, 12")
    a.e("ds_write_b32 v15, v46 offset:32")
    stamp(a, 27)
    a.e("s_setprio 0")
    a.e("s_waitcnt lgkmcnt(0)")
    a.lg = []

def helper_p2(a):
    a.lab("L_h_p2")
    a.vm = [("U", u) for u in range(2, 7) for i in range(10)]
    a.lg = []
    fre1_wait(a, 10, "L_h_e4")
    for u in range(2, 12):
        if u == 11:
            a.e(f"s_cmp_eq_u32 s{sHW}, 1")
            a.e("s_cbranch_scc1 L_h_fin")
        lds_wait_ge(a, 15, 16, max(u - 2, 1), f"L_h_fre{u}", tmp=46)
        if OPT.get("ust") and u >= 4: stamp(a, 8 + u)
        a.wait(vm=[("U", u)])
        for i in range(10):
            a.e(f"ds_write_b128 v{248+ent(u)}, {vr(RC+40*((u-2)%5)+4*i,4)} offset:{1024*i}")
        a.e(f"v_mov_b32 v46, {u+1}")
        a.e("ds_write_b32 v15, v46")
        if OPT.get("ust") and u >= 4: stamp(a, 20 + u)
        if u + 5 < 12:
            if u + 5 == 8:
                a.e(f"s_cmp_lg_u32 s{sHW}, 1")
                a.e("s_cbranch_scc1 L_h_nosw")
                wb_switch(a, "b")
                a.lab("L_h_nosw")
            a.e("s_waitcnt lgkmcnt(0)")
            if not (OPT.get("defer") and u < 5): p2_load(a, u + 5)
            if OPT.get("defer") and u == 4:
                lds_wait_ge(a, 15, 16, 3, "L_h_defer", tmp=46)
                assert False
        if u == OPT.get("xru", 6):
            a.e("s_load_dwordx2 s[12:13], s[0:1], 0")
            a.e("s_load_dwordx2 s[14:15], s[0:1], 64")
            srd(a, rB, pWS, 65536, add=hex(ST1_OFF))
            a.e("v_and_b32 v5, 15, v0")
            a.e("v_lshrrev_b32 v6, 4, v0")
            a.e(f"s_lshl_b32 s{sT0}, s{sMT}, 6")
            a.e(f"s_lshl_b32 s{sT1}, s{sHW}, 4")
            a.e(f"s_add_u32 s{sT0}, s{sT0}, s{sT1}")
            a.e(f"s_mul_i32 s{sT1}, s{sT0}, 1280")
            a.e(f"s_mul_i32 s{sT2}, s{sNG}, 160")
            a.e(f"s_add_u32 s{sT1}, s{sT1}, s{sT2}")
            a.e(f"s_lshl_b32 s77, s{sT1}, 1")
            a.e(f"s_lshl_b32 s{sT0}, s{sT0}, 5")
            a.e("v_mul_u32_u24 v7, 1280, v5")
            a.e("v_lshl_add_u32 v7, v6, 3, v7")
            a.e("v_lshlrev_b32 v14, 1, v7")
            a.e("v_lshlrev_b32 v6, 3, v6")
            a.e("v_lshlrev_b32 v5, 5, v5")
            a.e("s_waitcnt lgkmcnt(0)")
            srd(a, rA, 12, L * D * 2)
            srd(a, rC, 14, D * 2)
            for nt in range(5):
                a.vmem(f"buffer_load_dwordx2 {vr(XR+2*nt,2)}, v7, {sq(rA)}, s{sT1} offen offset:{32*nt}", "xr")
                a.vmem(f"buffer_load_dwordx2 {vr(DR+2*nt,2)}, v6, {sq(rC)}, s{sT2} offen offset:{32*nt}", "xr")
            a.vmem(f"buffer_load_dwordx4 v[8:11], v5, {sq(rB)}, s{sT0} offen sc1", "st")
    a.lab("L_h_fin")
    stamp(a, 9)
    srd(a, rD, pOUT, L * D * 4)
    STt, XF, SK = 8, RC + 8, RC + 28
    a.e(f"s_or_b32 s{sT4}, s2, s{sHW}")
    a.e(f"s_cmp_lg_u32 s{sT4}, 0")
    a.e("s_cbranch_scc1 L_h_nonce")
    srd(a, rA, pWS, 131072, add=hex(DONE_OFF))
    a.e("v_and_b32 v5, 31, v0")
    a.e("v_lshlrev_b32 v5, 7, v5")
    a.e("v_lshrrev_b32 v6, 5, v0")
    a.e("v_lshl_add_u32 v5, v6, 14, v5")
    a.e(f"s_mov_b32 s{sT2}, 0")
    a.lab("L_h_np")
    for i in range(4):
        a.e(f"s_mov_b32 s{sT3}, {32768*i}")
        a.e(f"buffer_load_dword v{16+i}, v5, {sq(rA)}, s{sT3} offen sc1")
    a.e("s_waitcnt vmcnt(0)")
    for i in range(4): a.e(f"v_xor_b32 v{16+i}, s{sTAG}, v{16+i}")
    a.e("v_or3_b32 v16, v16, v17, v18")
    a.e("v_or_b32 v16, v16, v19")
    a.e("v_cmp_ne_u32 vcc, 0, v16")
    a.e("s_cbranch_vccz L_h_npok")
    a.e(f"s_add_u32 s{sT2}, s{sT2}, 1")
    a.e(f"s_cmp_lt_u32 s{sT2}, 0x40000")
    a.e("s_cbranch_scc1 L_h_np")
    a.lab("L_h_npok")
    srd(a, rA, pWS, 128, add=hex(NONCE_OFF))
    a.e(f"v_mov_b32 v16, s{sTAG}")
    a.e("v_lshlrev_b32 v5, 2, v0")
    a.e(f"buffer_store_dword v16, v5, {sq(rA)}, 0 offen sc1")
    a.lab("L_h_nonce")
    a.e(f"s_lshr_b32 s{sT0}, s{sHW}, 1")
    a.e(f"s_mul_i32 s{sT0}, s{sT0}, s{sPIT}")
    a.e(f"s_and_b32 s{sT1}, s{sHW}, 1")
    a.e(f"s_mul_i32 s{sT1}, s{sT1}, 5120")
    a.e(f"s_add_u32 s{sT0}, s{sT0}, s{sT1}")
    a.e(f"v_add_u32 v5, s{sT0}, v1")
    a.e(f"s_mul_i32 s{sT0}, s{sHW}, s{sPIT}")
    a.e(f"s_cmp_lt_u32 s{sGI}, 10")
    a.e(f"s_cselect_b32 s{sT1}, {147456-40960-5120}, 0")
    a.e(f"s_add_u32 s{sT1}, s{sT1}, 5120")
    a.e(f"s_cmp_eq_u32 s{sHW}, 3")
    a.e(f"s_cselect_b32 s{sT0}, s{sT1}, s{sT0}")
    a.e(f"s_add_u32 s{sT0}, s{sT0}, 40960")
    a.e(f"v_add_u32 v6, s{sT0}, v1")
    a.e(f"s_mov_b32 s{sT2}, 0xffff0000")
    a.e(f"s_mov_b32 s{sT0}, {hex(f2u(-1.4426950408889634))}")
    a.e("s_waitcnt vmcnt(0) lgkmcnt(0)")
    a.e(f"v_rcp_f32 v{STt+1}, v{STt+2}")
    for i in range(10):
        a.e(f"v_lshlrev_b32 v{XF+2*i}, 16, v{XR+i}")
        a.e(f"v_and_b32 v{XF+2*i+1}, s{sT2}, v{XR+i}")
        t = SK + 2 * i
        for h in range(2): a.e(f"v_sub_f32 v{t+h}, v{XF+2*i+h}, v{STt}")
        a.e(f"v_cvt_pk_bf16_f32 v{t+1}, v{t}, v{t+1}")
        a.e(f"v_lshlrev_b32 v{t}, 16, v{t+1}")
        a.e(f"v_and_b32 v{t+1}, s{sT2}, v{t+1}")
        for h in range(2): a.e(f"v_mul_f32 v{t+h}, v{t+h}, v{STt+1}")
        a.e(f"v_cvt_pk_bf16_f32 v{t+1}, v{t}, v{t+1}")
        a.e(f"v_lshlrev_b32 v{t}, 16, v{t+1}")
        a.e(f"v_and_b32 v{t+1}, s{sT2}, v{t+1}")
        a.e(f"v_lshlrev_b32 v{RC+4}, 16, v{DR+i}")
        a.e(f"v_and_b32 v{RC+5}, s{sT2}, v{DR+i}")
        for h in range(2): a.e(f"v_mul_f32 v{t+h}, v{t+h}, v{RC+4+h}")
        a.e(f"v_cvt_pk_bf16_f32 v{t+1}, v{t}, v{t+1}")
        a.e(f"v_lshlrev_b32 v{t}, 16, v{t+1}")
        a.e(f"v_and_b32 v{t+1}, s{sT2}, v{t+1}")
    stamp(a, 10)
    a.bar()
    RB = 96
    a.lg = []
    for nt in range(5):
        b = RB + 20 * nt
        for w in (1, 2, 3, 0):
            a.lds(f"ds_read_b128 {vr(b+4*w,4)}, v5 offset:{10240*w+1024*nt}", ("r", nt))
        a.lds(f"ds_read_b128 {vr(b+16,4)}, v6 offset:{1024*nt}", ("r", nt))
    for nt in range(5):
        a.wait(lg=[("r", nt)])
        b = RB + 20 * nt
        y, o, t = b, b + 4, b + 8
        for h in range(2):
            a.e(f"v_pk_add_f32 {vr(o+2*h,2)}, {vr(o+2*h,2)}, {vr(b+8+2*h,2)}")
            a.e(f"v_pk_add_f32 {vr(y+2*h,2)}, {vr(y+2*h,2)}, {vr(b+16+2*h,2)}")
        for h in range(2):
            a.e(f"v_pk_add_f32 {vr(o+2*h,2)}, {vr(o+2*h,2)}, {vr(b+12+2*h,2)}")
            a.e(f"v_pk_add_f32 {vr(y+2*h,2)}, {vr(y+2*h,2)}, {vr(SK+4*nt+2*h,2)}")
        for h in range(2):
            a.e(f"v_pk_mul_f32 {vr(t+2*h,2)}, {vr(o+2*h,2)}, s[{sT0}:{sT1}] op_sel_hi:[1,0]")
        for r in range(4): a.e(f"v_exp_f32 v{t+r}, v{t+r}")
        for h in range(2):
            a.e(f"v_pk_mul_f32 {vr(y+2*h,2)}, {vr(y+2*h,2)}, {vr(o+2*h,2)}")
        for h in range(2):
            a.e(f"v_pk_add_f32 {vr(t+2*h,2)}, {vr(t+2*h,2)}, 1.0 op_sel_hi:[1,0]")
        for r in range(4): a.e(f"v_rcp_f32 v{t+r}, v{t+r}")
        a.e("s_nop 0")
        for h in range(2):
            a.e(f"v_pk_fma_f32 {vr(y+2*h,2)}, {vr(y+2*h,2)}, {vr(t+2*h,2)}, {vr(XF+4*nt+2*h,2)}")
        a.e(f"buffer_store_dwordx4 {vr(y,4)}, v14, {sq(rD)}, s77 offen offset:{64*nt} sc1")
    stamp(a, 11)
    stamp_flush(a)
    a.lab("L_done")
    a.e("s_endpgm")
    a.lab("L_end")

KD = f""".section .rodata,"a"
.p2align 6
.amdhsa_kernel {NAME}
  .amdhsa_next_free_vgpr 256
  .amdhsa_next_free_sgpr 100
  .amdhsa_accum_offset 256
  .amdhsa_group_segment_fixed_size 0
  .amdhsa_kernarg_size 128
  .amdhsa_user_sgpr_count 2
  .amdhsa_user_sgpr_kernarg_segment_ptr 1
  .amdhsa_system_sgpr_workgroup_id_x 1
  .amdhsa_float_denorm_mode_32 3
.end_amdhsa_kernel
"""
HEADER = open("recurrent_scan__ssm_conv_s5__glu_gated_swiglu__prompt.s.ref").read().split("; Override")[0]

def build(path):
    a = Asm()
    prologue(a)
    a.e(f"s_cmp_ge_u32 s{sGI}, 10")
    a.e("s_cbranch_scc1 L_c_nossm")
    regs = compute_ssm(a)
    a.lab("L_c_nossm")
    roles(a)
    a.e(f"s_cmp_lt_u32 s{sGI}, 10")
    a.e("s_cbranch_scc1 L_c_ssm")
    b0 = a.nbar; compute_ffn(a); nf = a.nbar - b0
    b0 = a.nbar; compute_p2(a); n2 = a.nbar - b0
    a.lab("L_c_ssm"); a.reset()
    b0 = a.nbar; compute_ssm2(a, regs); ns = a.nbar - b0
    a.e("s_branch L_p2")
    slow_paths(a)
    a.lab("L_helper"); a.reset()
    if OPT.get("hprio"): a.e(f"s_setprio {OPT['hprio']}")
    a.e(f"s_cmp_lt_u32 s{sGI}, 10")
    a.e("s_cbranch_scc1 L_h_ssm")
    b0 = a.nbar; helper(a, FFN); hf = a.nbar - b0
    a.lab("L_h_ssm"); a.reset()
    b0 = a.nbar; helper(a, SSM); hs = a.nbar - b0
    b0 = a.nbar; helper_p2(a); h2 = a.nbar - b0
    assert nf + n2 == hf + h2 and ns + n2 == hs + h2, (nf, ns, n2, hf, hs, h2)
    s = HEADER + f"; @launch grid=(256,1,1) block=(512,1,1) lds={LDS_BYTES}\n"
    s += '.amdgcn_target "amdgcn-amd-amdhsa--gfx950"\n.text\n' + a.text() + KD
    open(path, "w").write(s)

if __name__ == "__main__":
    out = sys.argv[1] if len(sys.argv) > 1 and not sys.argv[1].startswith("--") else "recurrent_scan__ssm_conv_s5__glu_gated_swiglu__prompt.s"
    if "--stamps" in sys.argv: STAMPS = True
    for x in sys.argv[1:]:
        if x.startswith("--opt="):
            for kv in x[6:].split(","):
                k, _, v = kv.partition("=")
                OPT[k] = int(v) if v else 1
    build(out)
```

```python
import sys, struct

NAME = "recurrent_scan__ssm_conv_s5__glu_gated_swiglu__prompt_kernel"
L, D, P, F = 2048, 640, 640, 1728
HA_OFF = 0x0
HA_SLAB = 94 * 4096
WB_OFF = 0xC00000
WB_SLAB = 27 * 10240
ST1_OFF = 0xF00000
AGG_OFF = 0xF20000
DONE_OFF = 0xF40000
FL2_OFF = 0xF60000
NONCE_OFF = 0xF80000
CS_OFF = 0x1000000
STAMP_OFF = 0x1200000
sTAG = 66
LDS_BYTES = 163840
STAMPS = False
OPT = {}

def f2u(x):
    return struct.unpack("<I", struct.pack("<f", x))[0]
def u2f(u):
    return struct.unpack("<f", struct.pack("<I", u))[0]

class Asm:
    def __init__(self):
        self.l = []; self.vm = []; self.lg = []; self.nbar = 0
    def e(self, s): self.l.append("    " + s)
    def lab(self, s): self.l.append(s + ":")
    def vmem(self, s, tag=None): self.e(s); self.vm.append(tag)
    def lds(self, s, tag=None): self.e(s); self.lg.append(tag)
    def bar(self): self.e("s_barrier"); self.nbar += 1
    def reset(self): self.vm = []; self.lg = []
    @staticmethod
    def _need(q, tags):
        idx = -1
        for i, t in enumerate(q):
            if t in tags: idx = i
        return idx
    def wait(self, vm=None, lg=None, vm_all=False, lg_all=False):
        parts = []
        i = len(self.vm) - 1 if vm_all else self._need(self.vm, vm or [])
        if i >= 0:
            n = min(len(self.vm) - 1 - i, 63)
            parts.append(f"vmcnt({n})")
            self.vm = self.vm[len(self.vm) - n:] if n else []
        i = len(self.lg) - 1 if lg_all else self._need(self.lg, lg or [])
        if i >= 0:
            n = min(len(self.lg) - 1 - i, 15)
            parts.append(f"lgkmcnt({n})")
            self.lg = self.lg[len(self.lg) - n:] if n else []
        if parts: self.e("s_waitcnt " + " ".join(parts))
    def text(self):
        import re
        def regs(tok):
            out = set()
            for m in re.finditer(r"v\[(\d+):(\d+)\]|v(\d+)", tok):
                if m.group(3): out.add(int(m.group(3)))
                else: out.update(range(int(m.group(1)), int(m.group(2)) + 1))
            return out
        out = []; prev = None; self.npk = 0
        for l in self.l:
            t = l.strip()
            if l.startswith("    "):
                if prev is not None and t.startswith("v_") and prev & regs(t.partition(" ")[2]):
                    out.append("    s_nop 0"); self.npk += 1
                prev = regs(t.partition(" ")[2].split(",")[0]) if t.startswith("v_pk_") else None
            out.append(l)
        return "\n".join(out) + "\n"

def vr(b, n=1): return f"v{b}" if n == 1 else f"v[{b}:{b+n-1}]"
def sq(b): return f"s[{b}:{b+3}]"

def srd(a, d, lo, nbytes, add=None):
    if add is None:
        a.e(f"s_mov_b32 s{d}, s{lo}"); a.e(f"s_mov_b32 s{d+1}, s{lo+1}")
    else:
        a.e(f"s_add_u32 s{d}, s{lo}, {add}"); a.e(f"s_addc_u32 s{d+1}, s{lo+1}, 0")
    a.e(f"s_mov_b32 s{d+2}, {nbytes}")
    a.e(f"s_mov_b32 s{d+3}, 0x00020000")

pX, pLRE, pLIM, pBRE, pBIM, pCRE, pCIM, pLDT, pDSK, pBX, pW1, pW3, pW2, pOUT, pDBG, pWS = range(4, 36, 2)
rX, rW, rA, rB, rC, rD = 36, 40, 44, 48, 52, 56
sM, sGI, sG, sMT, sNG, sHW = 60, 61, 62, 63, 64, 65
sT0, sT1, sT2, sT3, sT4, sT5 = 68, 69, 70, 71, 72, 73
sXO, sWO, sLB = 74, 75, 76
SV = 255

def stamp(a, slot):
    if not STAMPS: return
    if OPT.get("minst") and slot not in (0, 11): return
    a.e("s_memrealtime s[96:97]")
    a.e("s_memtime s[98:99]")
    a.e("s_waitcnt lgkmcnt(0)")
    a.e(f"v_writelane_b32 v{SV}, s96, {slot}")
    a.e(f"v_writelane_b32 v{SV}, s98, {slot+32}")
    a.lg = []
def stamp_flush(a):
    if not STAMPS: return
    if OPT.get("dbgout"):
        lab = f"L_dbg{len(a.l)}"
        a.e("s_cmp_lg_u32 s3, 0")
        a.e(f"s_cbranch_scc1 {lab}")
        srd(a, 92, pDBG, 256)
        a.e(f"v_readlane_b32 s98, v{SV}, 0")
        a.e("s_not_b32 s98, s98")
        a.e(f"v_writelane_b32 v{SV}, s98, 12")
        a.e(f"v_lshlrev_b32 v{SV-1}, 2, v0")
        a.e("s_mov_b64 exec, 0x1f07")
        a.e(f"buffer_atomic_umax v{SV}, v{SV-1}, s[92:95], 0 offen")
        a.lab(lab)
        return
    srd(a, 92, pWS, 1 << 20, add=hex(STAMP_OFF))
    a.e("s_lshl_b32 s98, s2, 3")
    a.e("s_add_u32 s98, s98, s3")
    a.e("s_lshl_b32 s98, s98, 8")
    a.e(f"v_lshlrev_b32 v{SV-1}, 2, v0")
    a.e(f"buffer_store_dword v{SV}, v{SV-1}, s[92:95], s98 offen")

def cmul(a, d, x, y, t):
    a.e(f"v_pk_mul_f32 {vr(t,2)}, {vr(x,2)}, {vr(y,2)} op_sel:[0,0] op_sel_hi:[0,1]")
    a.e(f"v_pk_fma_f32 {vr(d,2)}, {vr(x,2)}, {vr(y,2)}, {vr(t,2)} op_sel:[1,1,0] op_sel_hi:[1,0,1] neg_lo:[1,0,0]")
def cfma(a, d, x, y, z, t):
    a.e(f"v_pk_fma_f32 {vr(t,2)}, {vr(x,2)}, {vr(y,2)}, {vr(z,2)} op_sel:[0,0,0] op_sel_hi:[0,1,1]")
    a.e(f"v_pk_fma_f32 {vr(d,2)}, {vr(x,2)}, {vr(y,2)}, {vr(t,2)} op_sel:[1,1,0] op_sel_hi:[1,0,1] neg_lo:[1,0,0]")

class Map: pass
FFN = Map(); FFN.name = "ffn"; FFN.slot = 53248; FFN.woff = 32768; FFN.nfr = 10
FFN.tab_st = 159744; FFN.tab_cs = 159744 + 2048
SSM = Map(); SSM.name = "ssm"; SSM.slot = 49152; SSM.woff = 32768; SSM.nfr = 8
SSM.scr = 147456
SSM.tab_rs = 147456 + 14336 - 0
SSM.tab_rs = 161792 - 0
SSM.tab_mr = 161792 + 1024
SSM.tab_cs = 147456 + 8704
sPIT = 90
sSYN = 91
FFN.syn = 159744 + 3072
SSM.syn = 147456 + 10752
SSM.kscr = 2 * SSM.slot
def ent(u): return (u % 3 + 1) % 3

def prologue(a):
    a.l.append(f".globl {NAME}"); a.l.append(".p2align 8"); a.l.append(f".type {NAME},@function")
    a.lab(NAME)
    a.e("s_cmp_ge_u32 s2, 256")
    a.e("s_cbranch_scc1 L_done")
    a.e("s_load_dwordx16 s[4:19], s[0:1], 0")
    a.e("s_load_dwordx16 s[20:35], s[0:1], 64")
    a.e("v_lshrrev_b32 v1, 6, v0")
    a.e("v_and_b32 v0, 63, v0")
    a.e("v_readfirstlane_b32 s3, v1")
    if OPT.get("scramble"):
        a.e(f"s_lshr_b32 s{sT0}, s2, 5")
        a.e(f"s_and_b32 s{sT1}, s2, 31")
    else:
        a.e(f"s_and_b32 s{sT0}, s2, 7")
        a.e(f"s_lshr_b32 s{sT1}, s2, 3")
    a.e(f"s_and_b32 s{sM}, s{sT0}, 1")
    a.e(f"s_lshl_b32 s{sM}, s{sM}, 2")
    a.e(f"s_and_b32 s{sT2}, s{sT1}, 3")
    a.e(f"s_add_u32 s{sM}, s{sM}, s{sT2}")
    a.e(f"s_lshr_b32 s{sT2}, s{sT0}, 1")
    a.e(f"s_lshr_b32 s{sT3}, s{sT1}, 2")
    a.e(f"s_lshl_b32 s{sMT}, s{sT2}, 3")
    a.e(f"s_and_b32 s{sT4}, s{sT1}, 7")
    a.e(f"s_add_u32 s{sMT}, s{sMT}, s{sT4}")
    a.e(f"s_and_b32 s{sNG}, s{sT0}, 1")
    a.e(f"s_lshl_b32 s{sNG}, s{sNG}, 2")
    a.e(f"s_lshr_b32 s{sT4}, s{sT1}, 3")
    a.e(f"s_add_u32 s{sNG}, s{sNG}, s{sT4}")
    a.e(f"s_mul_i32 s{sT4}, s{sT2}, 3")
    a.e(f"s_lshl_b32 s{sT5}, s{sT2}, 1")
    a.e(f"s_add_u32 s{sT5}, s{sT5}, 2")
    a.e(f"s_cmp_lt_u32 s{sT2}, 2")
    a.e(f"s_cselect_b32 s{sT4}, s{sT4}, s{sT5}")
    a.e(f"s_cselect_b32 s{sT5}, 3, 2")
    a.e(f"s_lshl_b32 s{sT0}, s{sT2}, 3")
    a.e(f"s_sub_u32 s{sT0}, s{sT0}, s{sT4}")
    a.e(f"s_add_u32 s{sT0}, s{sT0}, s{sT3}")
    a.e(f"s_sub_u32 s{sT0}, s{sT0}, s{sT5}")
    a.e(f"s_add_u32 s{sT0}, s{sT0}, 10")
    a.e(f"s_add_u32 s{sT4}, s{sT4}, s{sT3}")
    a.e(f"s_cmp_lt_u32 s{sT3}, s{sT5}")
    a.e(f"s_cselect_b32 s{sGI}, s{sT4}, s{sT0}")
    a.e(f"s_cselect_b32 s{sPIT}, {SSM.slot >> 12}, {FFN.slot >> 12}")
    a.e(f"s_cselect_b32 s{sSYN}, {(FFN.syn - SSM.syn)}, 0")
    a.e(f"s_sub_u32 s{sSYN}, {FFN.syn}, s{sSYN}")
    a.e(f"s_lshl_b32 s{sPIT}, s{sPIT}, 12")
    a.e(f"s_and_b32 s{sHW}, s3, 3")
    a.e("s_mov_b32 s67, 0")
    a.e("v_lshlrev_b32 v1, 4, v0")
    a.e("s_waitcnt lgkmcnt(0)")
    stamp(a, 0)
    a.e(f"s_add_u32 s{sT0}, s{pWS}, {hex(NONCE_OFF)}")
    a.e(f"s_addc_u32 s{sT1}, s{pWS+1}, 0")
    a.e(f"s_load_dword s{sTAG}, s[{sT0}:{sT1}], 0")
    a.e("s_cmp_ge_u32 s3, 4")
    a.e("s_cbranch_scc1 L_helper")

def roles(a):
    a.e("s_mov_b32 s89, 0x7000000")
    a.e("s_cmp_ge_u32 s3, 2")
    a.e("s_cbranch_scc1 L_relay")
    srd(a, rX, pX, L * D * 2)
    a.e(f"s_lshl_b32 s{sT0}, s{sM}, 8")
    a.e(f"s_lshl_b32 s{sT1}, s{sGI}, 3")
    a.e(f"s_add_u32 s{sT0}, s{sT0}, s{sT1}")
    a.e(f"s_lshl_b32 s{sT1}, s3, 2")
    a.e(f"s_add_u32 s{sT0}, s{sT0}, s{sT1}")
    a.e(f"s_mul_i32 s{sT1}, s{sT0}, 1280")
    a.e("v_lshrrev_b32 v2, 4, v0")
    a.e("v_and_b32 v3, 15, v0")
    a.e("v_mul_u32_u24 v4, 1280, v2")
    a.e("v_lshl_add_u32 v4, v3, 4, v4")
    for n in range(5):
        a.vmem(f"buffer_load_dwordx4 {vr(8+4*n,4)}, v4, {sq(rX)}, s{sT1} offen offset:{256*n}", ("x", n))
    srd(a, rA, pWS, 65536, add=hex(ST1_OFF))
    a.e(f"s_lshl_b32 s{sT0}, s{sT0}, 5")
    a.e("v_lshlrev_b32 v5, 5, v2")
    a.e("v_lshl_add_u32 v5, v3, 4, v5")
    a.e(f"s_mov_b32 s{sT2}, 0xffff0000")
    FB = 32
    for n in range(5):
        a.wait(vm=[("x", n)])
        for i in range(4):
            s = 8 + 4 * n + i; d = FB + 2 * (4 * n + i)
            a.e(f"v_lshlrev_b32 v{d}, 16, v{s}")
            a.e(f"v_and_b32 v{d+1}, s{sT2}, v{s}")
    a.e(f"v_pk_add_f32 v[72:73], {vr(FB,2)}, {vr(FB+2,2)}")
    a.e(f"v_pk_add_f32 v[74:75], {vr(FB+4,2)}, {vr(FB+6,2)}")
    for i in range(4, 20):
        t = 72 + 2 * (i & 1)
        a.e(f"v_pk_add_f32 {vr(t,2)}, {vr(t,2)}, {vr(FB+2*i,2)}")
    a.e("v_pk_add_f32 v[72:73], v[72:73], v[74:75]")
    a.e("v_add_f32 v72, v72, v73")
    def red16(r):
        for m in ("quad_perm:[1,0,3,2]", "quad_perm:[2,3,0,1]", "row_half_mirror", "row_mirror"):
            a.e("s_nop 1")
            a.e(f"v_add_f32_dpp v{r}, v{r}, v{r} {m} row_mask:0xf bank_mask:0xf")
    red16(72)
    a.e(f"v_mul_f32 v72, {hex(f2u(1.0/640))}, v72")
    a.e("v_cvt_pk_bf16_f32 v74, v72, v72")
    a.e("v_lshlrev_b32 v74, 16, v74")
    a.e("v_sub_f32 v73, v72, v74")
    for i in range(20):
        a.e(f"v_pk_add_f32 {vr(FB+2*i,2)}, {vr(FB+2*i,2)}, v[74:75] op_sel_hi:[1,0] neg_lo:[0,1] neg_hi:[0,1]")
    a.e(f"v_pk_mul_f32 v[76:77], {vr(FB,2)}, {vr(FB,2)}")
    a.e(f"v_pk_mul_f32 v[78:79], {vr(FB+2,2)}, {vr(FB+2,2)}")
    for i in range(2, 20):
        t = 76 + 2 * (i & 1)
        a.e(f"v_pk_fma_f32 {vr(t,2)}, {vr(FB+2*i,2)}, {vr(FB+2*i,2)}, {vr(t,2)}")
    a.e("v_pk_add_f32 v[76:77], v[76:77], v[78:79]")
    a.e("v_add_f32 v76, v76, v77")
    red16(76)
    a.e(f"v_mul_f32 v76, {hex(f2u(1.0/640))}, v76")
    a.e("v_fma_f32 v76, -v73, v73, v76")
    a.e("v_max_f32 v76, 0, v76")
    a.e("v_cvt_pk_bf16_f32 v76, v76, v76")
    a.e("v_lshlrev_b32 v76, 16, v76")
    a.e(f"v_add_f32 v76, {hex(f2u(1e-5))}, v76")
    a.e("v_cvt_pk_bf16_f32 v76, v76, v76")
    a.e("v_lshlrev_b32 v76, 16, v76")
    a.e("v_sqrt_f32 v76, v76")
    a.e("s_nop 0")
    a.e("v_cvt_pk_bf16_f32 v76, v76, v76")
    a.e("v_lshlrev_b32 v76, 16, v76")
    a.e("s_waitcnt lgkmcnt(0)")
    a.e(f"s_add_u32 s{sT1}, s{sTAG}, 0x9E3779B1")
    a.e(f"v_mov_b32 v75, s{sT1}")
    a.e(f"v_mov_b32 v77, s{sT1}")
    a.e("v_cmp_gt_u32 vcc, 2, v3")
    a.e(f"s_and_saveexec_b64 s[{sT2}:{sT3}], vcc")
    a.e(f"buffer_store_dwordx4 v[74:77], v5, {sq(rA)}, s{sT0} offen sc1")
    a.e(f"s_mov_b64 exec, s[{sT2}:{sT3}]")
    a.e("s_branch L_roles_done")
    a.lab("L_relay")
    a.e(f"s_cmp_lt_u32 s{sGI}, 10")
    a.e("s_cbranch_scc1 L_tssm")
    a.e("s_cmp_eq_u32 s3, 2")
    a.e(f"s_cselect_b32 s{rX}, s{pW1}, s{pW3}")
    a.e(f"s_cselect_b32 s{rX+1}, s{pW1+1}, s{pW3+1}")
    a.e(f"s_mov_b32 s{rX+2}, {D*F*2}")
    a.e(f"s_mov_b32 s{rX+3}, 0x00020000")
    a.e(f"s_sub_u32 s{sT0}, s{sGI}, 10")
    a.e(f"s_mul_i32 s{sT0}, s{sT0}, 160")
    a.e(f"s_min_u32 s{sT0}, s{sT0}, 3296")
    NT0 = OPT.get("nt0", 3 if OPT.get("s2f", 0) else 2)
    a.e(f"s_mul_i32 s{sT1}, s{sM}, {8*NT0*3456}")
    a.e(f"s_add_u32 s{sT0}, s{sT0}, s{sT1}")
    a.e("v_lshrrev_b32 v2, 1, v0")
    a.e(f"v_min_u32 v2, {8*NT0-1}, v2")
    a.e("v_mul_u32_u24 v2, 3456, v2")
    a.e("v_and_b32 v3, 1, v0")
    a.e("v_mul_u32_u24 v3, 156, v3")
    a.e("v_add_u32 v2, v2, v3")
    a.e("s_branch L_tgo")
    a.lab("L_tssm")
    a.e("s_cmp_eq_u32 s3, 2")
    a.e(f"s_cselect_b32 s{rX}, s{pBRE}, s{pBIM}")
    a.e(f"s_cselect_b32 s{rX+1}, s{pBRE+1}, s{pBIM+1}")
    a.e(f"s_mov_b32 s{rX+2}, {P*D*2}")
    a.e(f"s_mov_b32 s{rX+3}, 0x00020000")
    a.e(f"s_lshl_b32 s{sT0}, s{sGI}, 3")
    a.e(f"s_add_u32 s{sT0}, s{sT0}, s{sM}")
    a.e(f"s_mul_i32 s{sT0}, s{sT0}, {8*1280}")
    a.e("v_bfe_u32 v2, v0, 2, 3")
    a.e("v_mul_u32_u24 v2, 1280, v2")
    a.e("v_and_b32 v3, 3, v0")
    a.e(f"v_min_u32 v3, {NT0-1}, v3")
    a.e("v_lshl_add_u32 v2, v3, 7, v2")
    a.lab("L_tgo")
    a.e(f"buffer_load_dword v4, v2, {sq(rX)}, s{sT0} offen")
    if OPT.get("rel0", 2) == 1:
        srd(a, rX, pW2, F * D * 2)
        a.e(f"s_lshl_b32 s{sT0}, s{sMT}, 1")
        a.e(f"s_and_b32 s{sT1}, s3, 1")
        a.e(f"s_add_u32 s{sT0}, s{sT0}, s{sT1}")
        a.e(f"s_mul_i32 s88, s{sMT}, 10240")
        a.e(f"s_lshl_b32 s{sT1}, s{sT1}, 10")
        a.e(f"s_add_u32 s88, s88, s{sT1}")
        a.e(f"s_lshl_b32 s89, s{sNG}, 6")
        a.e(f"s_add_u32 s89, s89, s{sT0}")
        a.e(f"s_lshl_b32 s89, s89, 7")
        a.e(f"s_mul_i32 s{sT1}, s{sT0}, 52")
        a.e(f"s_lshr_b32 s{sT1}, s{sT1}, 8")
        a.e(f"s_mul_i32 s{sT2}, s{sT1}, 5")
        a.e(f"s_sub_u32 s{sT2}, s{sT0}, s{sT2}")
        a.e(f"s_cmp_eq_u32 s{sT0}, 53")
        a.e(f"s_cselect_b32 s{sT2}, 4, s{sT2}")
        a.e(f"s_cselect_b32 s{sT5}, 48, 80")
        a.e(f"s_lshl_b32 s{sT3}, s{sT2}, 5")
        a.e(f"s_cmp_ge_u32 s{sT2}, 2")
        a.e(f"s_cselect_b32 s{sT4}, 16, 0")
        a.e(f"s_add_u32 s{sT3}, s{sT3}, s{sT4}")
        a.e(f"s_cmp_eq_u32 s{sT2}, 4")
        a.e(f"s_cselect_b32 s{sT3}, 64, s{sT3}")
        a.e(f"s_cselect_b32 s{sT4}, s{sT5}, 16")
        a.e(f"s_cselect_b32 s80, 3, 2")
        a.e(f"s_cselect_b32 s81, 4, 16")
        a.e(f"s_mul_i32 s{sT1}, s{sT1}, 160")
        a.e(f"s_add_u32 s{sT3}, s{sT3}, s{sT1}")
        a.e(f"s_sub_u32 s{sT4}, s{sT4}, 16")
        a.e(f"s_mul_i32 s{sT4}, s{sT4}, 1280")
        a.e(f"s_mul_i32 s{sXO}, s{sT3}, 1280")
        a.e(f"s_mul_i32 s{sT1}, s{sNG}, 160")
        a.e(f"s_add_u32 s{sXO}, s{sXO}, s{sT1}")
        a.e(f"v_mov_b32 v8, s{sT4}")
        RL = 2 * FFN.slot + 8192
        a.e(f"s_mul_i32 s{sT2}, s3, 5120")
        a.e(f"s_add_u32 s{sT2}, s{sT2}, {RL - 10240}")
        for n in range(5):
            a.e(f"v_add_u32 v5, {64*n}, v0")
            a.e("v_mul_u32_u24 v6, 6554, v5")
            a.e("v_lshrrev_b32 v6, 16, v6")
            a.e("v_mul_u32_u24 v7, 10, v6")
            a.e("v_sub_u32 v7, v5, v7")
            a.e("v_cmp_lt_u32 vcc, 15, v6")
            a.e("v_mul_u32_u24 v6, 1280, v6")
            a.e("v_lshl_add_u32 v6, v7, 4, v6")
            a.e("v_cndmask_b32 v7, 0, v8, vcc")
            a.e(f"s_add_u32 m0, s{sT2}, {1024*n}")
            a.e("v_add_u32 v6, v6, v7")
            a.e(f"buffer_load_dwordx4 v6, {sq(rX)}, s{sXO} offen lds")
        a.e("s_cmp_eq_u32 s3, 2")
        a.e(f"s_cselect_b32 s{rA}, s{pCRE}, s{pCIM}")
        a.e(f"s_cselect_b32 s{rA+1}, s{pCRE+1}, s{pCIM+1}")
        a.e(f"s_mov_b32 s{rA+2}, {D*P*2}")
        a.e(f"s_mov_b32 s{rA+3}, 0x00020000")
        a.e(f"s_mul_i32 s{sT0}, s2, 3200")
        a.e("v_min_u32 v9, 24, v0")
        a.e("v_lshlrev_b32 v9, 7, v9")
        a.e(f"buffer_load_dword v10, v9, {sq(rA)}, s{sT0} offen")
        a.e("v_lshrrev_b32 v5, 4, v0")
        a.e("v_lshlrev_b32 v5, s80, v5")
        a.e("v_bfe_u32 v6, v0, 2, 2")
        a.e("v_add_u32 v5, v5, v6")
        a.e("v_add_u32 v6, s81, v5")
        a.e("v_and_b32 v7, 3, v0")
        a.e("v_lshlrev_b32 v7, 3, v7")
        a.e(f"v_add_u32 v7, s{sT2}, v7")
        a.e("v_mul_u32_u24 v5, 160, v5")
        a.e("v_mul_u32_u24 v6, 160, v6")
        a.e("v_add_u32 v5, v5, v7")
        a.e("v_add_u32 v6, v6, v7")
        a.e(f"s_mul_i32 s{sT4}, s{sNG}, {WB_SLAB}")
        a.e(f"s_add_u32 s{sT4}, s{sT4}, {hex(WB_OFF)}")
        srd(a, rW, pWS, WB_SLAB, add=f"s{sT4}")
        a.e(f"s_add_u32 s{sT0}, s88, 4096")
        a.e(f"s_add_u32 s{sT1}, s88, 8192")
        a.e("s_waitcnt vmcnt(0)")
        for nt in range(5):
            a.e(f"ds_read_b64_tr_b16 {vr(16+4*nt,2)}, v5 offset:{32*nt}")
            a.e(f"ds_read_b64_tr_b16 {vr(18+4*nt,2)}, v6 offset:{32*nt}")
        a.e("s_waitcnt lgkmcnt(0)")
        for nt in range(5):
            so = (88, sT0, sT1)[nt >> 1]
            a.e(f"buffer_store_dwordx4 {vr(16+4*nt,4)}, v1, {sq(rW)}, s{so} offen offset:{2048*(nt&1)} sc1")
    else:
        a.e("s_waitcnt vmcnt(0)")
    a.lab("L_roles_done")
    a.e("s_waitcnt lgkmcnt(0)")
    a.e(f"s_add_u32 s{sTAG}, s{sTAG}, 0x9E3779B1")
    a.reset()
    stamp(a, 6)

SLOW = []
def slow_paths(a):
    for lab, val, SA in SLOW:
        a.lab(lab + "a")
        a.e(f"ds_read_b128 v[8:11], v{SA} offset:32")
        a.e("s_waitcnt lgkmcnt(0)")
        a.e("v_min3_u32 v8, v8, v9, v10")
        a.e("v_min_u32 v8, v8, v11")
        a.e(f"v_cmp_gt_u32 vcc, {val}, v8")
        a.e(f"s_cbranch_vccz {lab}b")
        if OPT.get("csl"): a.e(f"s_sleep {OPT['csl']}")
        a.e("s_add_u32 s67, s67, 1")
        a.e("s_cmp_lt_u32 s67, 0x400000")
        a.e(f"s_cbranch_scc1 {lab}a")
        a.e(f"s_branch {lab}b")

def p1_loop(a, M, ACC, WB, XB, xread, wread, mfma, hooks):
    nfr = M.nfr; NG = 20 * nfr; SG = 2 * nfr
    WR = 10 if M is FFN else 8
    LA = WR - 2; BP = LA - 4 if M is FFN else 2
    pend = []
    for ks in range(20):
        for i in range(len(xread(ks))):
            pend.append((nfr * ks - 0.5, "X", (ks, i), nfr * (ks - 1) + 1 if ks else -99, ks >> 1))
    for g in range(NG):
        for i in range(len(wread(g))):
            pend.append((g, "W", (g, i), g - LA, g // SG))
    pend.sort(key=lambda t: t[0])
    avail = 0
    def issue(g, n):
        k = 0
        while k < len(pend) and n > 0:
            need, kind, idx, early, st = pend[k]
            if need > g + WR + nfr: break
            if early <= g and st < avail:
                ins = (xread if kind == "X" else wread)(idx[0])[idx[1]]
                a.lds(ins, (kind, idx[0]))
                pend.pop(k); n -= 1
            else:
                k += 1
    SA, FA, FV = hooks
    a.e(f"v_mov_b32 v{SA}, s{sSYN}")
    a.e(f"s_lshl_b32 s{sT0}, s3, 2")
    a.e(f"v_add_u32 v{FA}, s{sT0}, v{SA}")
    if OPT.get("prio", 1): a.e("s_setprio 3")
    srd(a, rD, pWS, 65536, add=hex(FL2_OFF))
    stamp(a, 7)
    a.bar(); avail = 1
    stamp(a, 1)
    issue(-1, 14)
    slow = []
    for g in range(NG):
        ks, fr = divmod(g, nfr)
        extra = [[], [], [], []]
        if (g + BP + 3) % SG == 0:
            extra[0] = [("lds", f"ds_read_b128 v[8:11], v{SA} offset:32")]
        if (g + BP + 1) % SG == 0:
            st = (g + BP + 1) // SG
            assert not any(p[4] < st for p in pend), (g, st)
            a.wait(lg_all=True)
            lab = f"L_{M.name}_s{st}"
            extra[0] = [("e", f"v_mov_b32 v{FV}, {st}"), ("e", "v_min3_u32 v8, v8, v9, v10")]
            extra[1] = [("lds", f"ds_write_b32 v{FA}, v{FV} offset:48"), ("e", "v_min_u32 v8, v8, v11")]
            extra[2] = [("e", f"v_cmp_gt_u32 vcc, {st+1}, v8")]
            extra[3] = [("e", f"s_cbranch_vccnz {lab}a"), ("lab", lab + "b"), ("avail", st + 1)]
            slow.append((lab, st + 1))
        if g == 2 * SG + 2 and OPT.get("rel0", 2) == 1:
            extra[0] = [("e", f"v_mov_b32 v8, s{sTAG}"), ("e", f"v_mov_b32 v9, s{sTAG}")]
            extra[1] = [("e", f"v_mov_b32 v10, s{sTAG}"), ("e", f"v_mov_b32 v11, s{sTAG}")]
            extra[2] = [("e", "s_waitcnt vmcnt(0)")]
            extra[3] = [("e", "s_mov_b64 exec, 0xff"), ("e", f"buffer_store_dwordx4 v[8:11], v1, {sq(rD)}, s89 offen sc1"), ("e", "s_mov_b64 exec, -1")]
        a.wait(lg=[("W", g), ("X", ks)])
        for tt in range(4):
            a.e(mfma(g, tt))
            for kind, x in extra[tt]:
                if kind == "lds": a.lds(x)
                elif kind == "e": a.e(x)
                elif kind == "lab": a.lab(x)
                else: avail = x
            issue(g if tt == 3 else g - 1, 1 if tt < 3 else 2)
    SLOW.extend((lab, val, SA) for lab, val in slow)
    a.e("v_and_b32 v8, 15, v0")
    a.e("v_lshrrev_b32 v9, 4, v0")
    assert not pend

def compute_ffn(a):
    M = FFN
    WB, XB, ACC = 16, 56, 88
    a.e(f"s_sub_u32 s{sG}, s{sGI}, 10")
    a.e("v_and_b32 v8, 15, v0")
    a.e("v_lshrrev_b32 v9, 4, v0")
    a.e("v_bfe_u32 v10, v0, 1, 3")
    a.e("v_xor_b32 v10, v10, v9")
    a.e("v_lshlrev_b32 v10, 4, v10")
    a.e("v_lshl_add_u32 v10, v8, 7, v10")
    a.e("v_and_b32 v11, 1, v9")
    a.e("v_lshl_add_u32 v10, v11, 3, v10")
    a.e(f"s_lshl_b32 s{sT0}, s3, 13")
    a.e(f"v_add_u32 v10, s{sT0}, v10")
    a.e("v_mov_b32 v2, v10")
    a.e("v_xor_b32 v3, 8, v10")
    a.e("v_xor_b32 v4, 64, v10")
    a.e("v_xor_b32 v5, 0x48, v10")
    for i in range(4):
        a.e(f"v_add_u32 v{248+i}, {2*M.slot}, v{2+i}")
    a.e("v_bfe_u32 v12, v0, 2, 2")
    a.e("v_lshl_add_u32 v12, v9, 3, v12")
    a.e("v_lshl_add_u32 v13, v11, 2, v12")
    a.e("v_xor_b32 v11, 1, v11")
    a.e("v_lshl_add_u32 v14, v11, 2, v12")
    a.e("v_and_b32 v12, 3, v0")
    a.e("v_lshlrev_b32 v12, 3, v12")
    a.e(f"v_add_u32 v12, {M.woff}, v12")
    a.e("v_mul_u32_u24 v13, 160, v13")
    a.e("v_mul_u32_u24 v14, 160, v14")
    a.e("v_add_u32 v6, v13, v12")
    a.e("v_add_u32 v7, v14, v12")
    a.e(f"v_add_u32 v13, {M.slot}, v6")
    a.e(f"v_add_u32 v14, {M.slot}, v7")
    a.e(f"v_add_u32 v252, {2*M.slot}, v6")
    a.e(f"v_add_u32 v253, {2*M.slot}, v7")
    wbase = {0: (6, 7), 1: (13, 14), 2: (252, 253)}
    def xread(ks):
        sl = (ks >> 1) % 3; kk = ks & 1
        out = []
        for tt in range(4):
            for h in range(2):
                reg = (2 if sl < 2 else 248) + 2 * kk + h
                off = (sl * M.slot if sl < 2 else 0) + tt * 2048
                out.append(f"ds_read_b64 {vr(XB+16*kk+4*tt+2*h,2)}, v{reg} offset:{off}")
        return out
    def wread(g):
        ks, fr = divmod(g, 10); sl = (ks >> 1) % 3
        off = (fr & 1) * 10240 + (ks & 1) * 5120 + 32 * (fr >> 1)
        return [f"ds_read_b64_tr_b16 {vr(WB+4*(g%10)+2*s,2)}, v{wbase[sl][s]} offset:{off}" for s in range(2)]
    def acc(tt, fr): return ACC + 40 * tt + 4 * fr
    def mfma(g, tt):
        ks, fr = divmod(g, 10)
        c = "0" if ks == 0 else vr(acc(tt, fr), 4)
        return f"v_mfma_f32_16x16x32_bf16 {vr(acc(tt,fr),4)}, {vr(WB+4*(g%10),4)}, {vr(XB+16*(ks&1)+4*tt,4)}, {c}"
    p1_loop(a, M, ACC, WB, XB, xread, wread, mfma, (12, 254, 15))
    stamp(a, 2)
    CS = 16
    ST = 56
    a.e(f"s_lshl_b32 s{sT0}, s3, 9")
    a.e(f"s_add_u32 s{sT0}, s{sT0}, {M.tab_st}")
    a.e("v_lshlrev_b32 v2, 3, v8")
    a.e(f"v_add_u32 v2, s{sT0}, v2")
    a.e("v_lshlrev_b32 v3, 4, v9")
    a.e(f"v_add_u32 v3, {M.tab_cs}, v3")
    for tt in range(4):
        a.lds(f"ds_read_b64 {vr(ST+2*tt,2)}, v2 offset:{128*tt}", "st")
    for fr in range(10):
        a.lds(f"ds_read_b128 {vr(CS+4*fr,4)}, v3 offset:{(fr&1)*512+(fr>>1)*64}", ("cs", fr))
    a.e(f"s_lshl_b32 s{sT0}, s{sM}, 2")
    a.e(f"s_add_u32 s{sT0}, s{sT0}, s3")
    a.e(f"s_mul_i32 s{sT0}, s{sT0}, {HA_SLAB}")
    srd(a, rA, pWS, 0 if OPT.get("nost") else HA_SLAB, add=f"s{sT0}")
    a.e(f"s_lshr_b32 s{sT1}, s{sG}, 1")
    a.e(f"s_mul_i32 s{sT1}, s{sT1}, 5")
    a.e(f"s_add_u32 s{sT1}, s{sT1}, 40")
    a.e(f"s_and_b32 s{sT2}, s{sG}, 1")
    a.e(f"s_lshl_b32 s{sT3}, s{sT2}, 1")
    a.e(f"s_add_u32 s{sT3}, s{sT3}, s{sT1}")
    a.e(f"s_lshl_b32 s{sT3}, s{sT3}, 12")
    a.e(f"s_add_u32 s{sT4}, s{sT3}, 4096")
    a.e(f"s_add_u32 s{sT1}, s{sT1}, 4")
    a.e(f"s_min_u32 s{sT1}, s{sT1}, 93")
    a.e(f"s_lshl_b32 s{sT1}, s{sT1}, 12")
    a.e(f"s_lshl_b32 s{sT2}, s{sT2}, 9")
    a.e(f"s_add_u32 s{sT1}, s{sT1}, s{sT2}")
    a.e(f"s_cmp_eq_u32 s{sG}, 21")
    a.e(f"s_cselect_b32 s{sT4}, s{sT3}, s{sT4}")
    a.e(f"s_cselect_b32 s{sT3}, 0x7000000, s{sT3}")
    a.e("v_lshrrev_b32 v4, 1, v9")
    a.e("v_lshlrev_b32 v4, 8, v4")
    a.e("v_lshl_add_u32 v4, v8, 4, v4")
    a.e("v_and_b32 v5, 1, v9")
    a.e("v_lshl_add_u32 v4, v5, 3, v4")
    C1 = 64; C2 = 72
    a.wait(lg=["st"])
    for tt in range(4):
        a.e(f"v_rcp_f32 v{C1+2*tt}, v{ST+2*tt+1}")
        a.e(f"v_mul_f32 v{C2+2*tt}, v{ST+2*tt+1}, v{ST+2*tt+1}")
    for tt in range(4):
        a.e(f"v_mul_f32 v{C1+2*tt}, {hex(f2u(-1.4426950408889634))}, v{C1+2*tt}")
    a.wait(lg_all=True)
    items = [(tt, j) for tt in range(4) for j in range(5)]
    def A(tt, j):
        g, u_ = acc(tt, 2 * j), acc(tt, 2 * j + 1)
        t = 80 + 4 * ((5 * tt + j) & 1)
        out = []
        for mat, r in ((0, g), (1, u_)):
            for h in range(2):
                out.append(f"v_pk_fma_f32 {vr(r+2*h,2)}, {vr(ST+2*tt,2)}, {vr(CS+4*(2*j+mat)+2*h,2)}, {vr(r+2*h,2)} op_sel:[0,0,0] op_sel_hi:[0,1,1] neg_lo:[1,0,0] neg_hi:[1,0,0]")
        for h in range(2):
            out.append(f"v_pk_mul_f32 {vr(t+2*h,2)}, {vr(g+2*h,2)}, {vr(C1+2*tt,2)} op_sel_hi:[1,0]")
        for h in range(2):
            out.append(f"v_pk_mul_f32 {vr(g+2*h,2)}, {vr(g+2*h,2)}, {vr(u_+2*h,2)}")
        return out
    def B(tt, j):
        t = 80 + 4 * ((5 * tt + j) & 1); u_ = acc(tt, 2 * j + 1)
        return [f"v_exp_f32 v{u_+p}, v{t+p}" for p in range(4)]
    def Cc(tt, j):
        u_ = acc(tt, 2 * j + 1)
        return [f"v_pk_fma_f32 {vr(u_+2*h,2)}, {vr(u_+2*h,2)}, {vr(C2+2*tt,2)}, {vr(C2+2*tt,2)} op_sel_hi:[1,0,0]" for h in range(2)]
    def Dd(tt, j):
        u_ = acc(tt, 2 * j + 1)
        return [f"v_rcp_f32 v{u_+p}, v{u_+p}" for p in range(4)]
    def E(tt, j):
        g, u_ = acc(tt, 2 * j), acc(tt, 2 * j + 1)
        out = [f"v_pk_mul_f32 {vr(g+2*h,2)}, {vr(g+2*h,2)}, {vr(u_+2*h,2)}" for h in range(2)]
        o = acc(tt, 2 * (j & ~1) + 1) + 2 * (j & 1)
        out += [f"v_cvt_pk_bf16_f32 v{o+h}, v{g+2*h}, v{g+2*h+1}" for h in range(2)]
        if j in (1, 3):
            out.append(f"buffer_store_dwordx4 {vr(o-2,4)}, v1, {sq(rA)}, s{sT3 if j == 1 else sT4} offen offset:{1024*tt} sc1")
        if j == 4:
            out.append(f"buffer_store_dwordx2 {vr(o,2)}, v4, {sq(rA)}, s{sT1} offen offset:{1024*tt} sc1")
        return out
    n = len(items)
    get = lambda f, i: f(*items[i]) if 0 <= i < n else []
    for i in range(n + 4):
        plain = get(E, i - 4) + get(Cc, i - 2) + get(A, i)
        trans = get(B, i - 1) + get(Dd, i - 3)
        k = 0
        while plain or trans:
            if trans and (k & 1 or not plain): a.e(trans.pop(0))
            else:
                a.e(plain.pop(0))
                if len(plain) > len(trans) + 1 and plain: a.e(plain.pop(0))
            k += 1
        a.e("s_nop 0") if i >= n else None
    stamp(a, 3)

def compute_ssm(a):
    M = SSM
    WB, XB, ACC = 16, 48, 80
    KL, KC, K8, KP = 208, 216, 224, 232
    L16, L256 = 240, 242
    a.e(f"s_mov_b32 s{sG}, s{sGI}")
    srd(a, rB, pLRE, P * 2); srd(a, rC, pLIM, P * 2); srd(a, rD, pLDT, P * 2)
    a.e("v_lshlrev_b32 v2, 1, v0")
    a.e(f"s_lshl_b32 s{sT0}, s{sG}, 7")
    a.e(f"buffer_load_ushort v100, v2, {sq(rB)}, s{sT0} offen")
    a.e(f"buffer_load_ushort v101, v2, {sq(rC)}, s{sT0} offen")
    a.e(f"buffer_load_ushort v102, v2, {sq(rD)}, s{sT0} offen")
    return WB, XB, ACC, KL, KC, K8, KP, L16, L256

def compute_ssm2(a, regs):
    M = SSM
    WB, XB, ACC, KL, KC, K8, KP, L16, L256 = regs
    a.e("v_lshlrev_b32 v100, 16, v100")
    a.e("v_lshlrev_b32 v101, 16, v101")
    a.e("v_lshlrev_b32 v102, 16, v102")
    HI = f2u(1.4426950408889634)
    a.e(f"s_mov_b32 s{sT0}, {hex(HI)}")
    a.e(f"s_mov_b32 s{sT1}, {hex(f2u(1.4426950408889634 - u2f(HI)))}")
    a.e(f"s_mov_b32 s{sT2}, {hex(f2u(0.6931471805599453))}")
    def expf(d, x, t0, t1):
        a.e(f"v_mul_f32 v{t0}, s{sT0}, v{x}")
        a.e(f"v_fma_f32 v{t1}, v{x}, s{sT0}, -v{t0}")
        a.e(f"v_fma_f32 v{t1}, v{x}, s{sT1}, v{t1}")
        a.e(f"v_exp_f32 v{t0}, v{t0}")
        a.e(f"v_mul_f32 v{t1}, s{sT2}, v{t1}")
        a.e(f"v_fma_f32 v{d}, v{t0}, v{t1}, v{t0}")
    expf(102, 102, 104, 105)
    a.e("v_cvt_pk_bf16_f32 v102, v102, v102")
    a.e("v_lshlrev_b32 v102, 16, v102")
    a.e("v_mul_f32 v106, v102, v100")
    a.e("v_mul_f32 v107, v102, v101")
    expf(106, 106, 104, 105)
    HI = f2u(0.15915494309189535)
    a.e(f"s_mov_b32 s{sT0}, {hex(HI)}")
    a.e(f"s_mov_b32 s{sT1}, {hex(f2u(0.15915494309189535 - u2f(HI)))}")
    a.e(f"v_mul_f32 v104, s{sT0}, v107")
    a.e(f"v_fma_f32 v105, v107, s{sT0}, -v104")
    a.e(f"v_fma_f32 v105, v107, s{sT1}, v105")
    a.e("v_rndne_f32 v103, v104")
    a.e("v_sub_f32 v104, v104, v103")
    a.e("v_add_f32 v104, v104, v105")
    a.e("v_cos_f32 v108, v104")
    a.e("v_sin_f32 v109, v104")
    a.e("s_nop 0")
    LAM, COEF, L8, P0, TMP, TMP2, L32, L64, L128 = 110, 112, 114, 116, 124, 126, 128, 130, 132
    a.e(f"v_mul_f32 v{LAM}, v106, v108")
    a.e(f"v_mul_f32 v{LAM+1}, v106, v109")
    a.e("v_max_f32 v106, |v100|, |v101|")
    a.e("v_rcp_f32 v107, v106")
    a.e(f"v_add_f32 v108, -1.0, v{LAM}")
    a.e("v_mul_f32 v100, v100, v107")
    a.e("v_mul_f32 v101, v101, v107")
    a.e("v_mul_f32 v109, v100, v100")
    a.e("v_fma_f32 v109, v101, v101, v109")
    a.e("v_mul_f32 v109, v109, v106")
    a.e("v_rcp_f32 v109, v109")
    a.e("v_mul_f32 v104, v108, v100")
    a.e(f"v_fma_f32 v104, v{LAM+1}, v101, v104")
    a.e(f"v_mul_f32 v105, v{LAM+1}, v100")
    a.e("v_fma_f32 v105, -v108, v101, v105")
    a.e("v_add_f32 v109, v109, v109")
    a.e(f"v_mul_f32 v{COEF}, v104, v109")
    a.e(f"v_mul_f32 v{COEF+1}, v105, v109")
    cmul(a, L8, LAM, LAM, TMP)
    cmul(a, TMP2, L8, L8, TMP)
    cmul(a, L8, TMP2, TMP2, TMP)
    cmul(a, L16, L8, L8, TMP)
    cmul(a, L32, L16, L16, TMP)
    cmul(a, L64, L32, L32, TMP)
    cmul(a, L128, L64, L64, TMP)
    cmul(a, L256, L128, L128, TMP)
    a.e(f"v_mov_b32 v{P0}, 1.0")
    a.e(f"v_mov_b32 v{P0+1}, 0")
    for bit, src in ((0, L64), (1, L128)):
        a.e(f"s_bitcmp0_b32 s3, {bit}")
        a.e(f"s_cbranch_scc1 L_pw{bit}")
        cmul(a, TMP2, P0, src, TMP)
        a.e(f"v_mov_b32 v{P0}, v{TMP2}")
        a.e(f"v_mov_b32 v{P0+1}, v{TMP2+1}")
        a.lab(f"L_pw{bit}")
    cmul(a, P0 + 2, P0, L16, TMP)
    cmul(a, P0 + 4, P0, L32, TMP)
    cmul(a, P0 + 6, P0 + 4, L16, TMP)
    a.e("v_lshlrev_b32 v6, 3, v0")
    a.e(f"v_add_u32 v6, {M.scr}, v6")
    a.e(f"ds_write_b64 v6, {vr(L16,2)} offset:9728")
    a.e(f"ds_write_b64 v6, {vr(L256,2)} offset:10240")
    a.e(f"s_mul_i32 s{sT0}, s3, 3584")
    a.e(f"s_add_u32 s{sT0}, s{sT0}, {M.kscr}")
    a.e("v_lshlrev_b32 v2, 3, v0")
    a.e(f"v_add_u32 v2, s{sT0}, v2")
    for i in range(7):
        a.e(f"ds_write_b64 v2, {vr(LAM+2*i,2)} offset:{512*i}")
    a.e("v_and_b32 v8, 15, v0")
    a.e("v_lshrrev_b32 v9, 4, v0")
    a.e("v_lshlrev_b32 v2, 3, v8")
    a.e(f"v_add_u32 v2, s{sT0}, v2")
    a.e("v_lshl_add_u32 v3, v9, 9, v2")
    a.e("s_waitcnt lgkmcnt(0)")
    for ct in range(4):
        a.e(f"ds_read_b64 {vr(KL+2*ct,2)}, v2 offset:{128*ct}")
        a.e(f"ds_read_b64 {vr(KC+2*ct,2)}, v2 offset:{512+128*ct}")
        a.e(f"ds_read_b64 {vr(K8+2*ct,2)}, v2 offset:{1024+128*ct}")
        a.e(f"ds_read_b64 {vr(KP+2*ct,2)}, v3 offset:{1536+128*ct}")
    a.e("v_bfe_u32 v10, v0, 1, 3")
    a.e("v_xor_b32 v10, v10, v9")
    a.e("v_lshlrev_b32 v10, 4, v10")
    a.e("v_lshl_add_u32 v10, v8, 7, v10")
    a.e(f"s_lshl_b32 s{sT0}, s3, 13")
    a.e(f"v_add_u32 v2, s{sT0}, v10")
    a.e("v_xor_b32 v3, 64, v2")
    a.e(f"v_add_u32 v4, {2*M.slot}, v2")
    a.e(f"v_add_u32 v5, {2*M.slot}, v3")
    a.e(f"v_add_u32 v6, {M.woff}, v10")
    a.e("v_xor_b32 v7, 64, v6")
    a.e(f"v_add_u32 v12, {2*M.slot}, v6")
    a.e(f"v_add_u32 v13, {2*M.slot}, v7")
    a.e("s_waitcnt lgkmcnt(0)")
    def xread(ks):
        sl = (ks >> 1) % 3; kk = ks & 1
        reg = (2 if sl < 2 else 4) + kk
        return [f"ds_read_b128 {vr(XB+16*kk+4*tt,4)}, v{reg} offset:{(sl*M.slot if sl < 2 else 0)+tt*2048}" for tt in range(4)]
    def wread(g):
        ks, fr = divmod(g, 8); sl = (ks >> 1) % 3
        reg = (6 if sl < 2 else 12) + (ks & 1)
        return [f"ds_read_b128 {vr(WB+4*(g%8),4)}, v{reg} offset:{(sl*M.slot if sl < 2 else 0)+fr*2048}"]
    def acc(tt, fr): return ACC + 16 * fr + 4 * tt
    def mfma(g, tt):
        ks, fr = divmod(g, 8)
        c = "0" if ks == 0 else vr(acc(tt, fr), 4)
        return f"v_mfma_f32_16x16x32_bf16 {vr(acc(tt,fr),4)}, {vr(XB+16*(ks&1)+4*tt,4)}, {vr(WB+4*(g%8),4)}, {c}"
    p1_loop(a, M, ACC, WB, XB, xread, wread, mfma, (14, 254, 15))
    stamp(a, 2)
    RS, MR, CSR, CSI = 16, 32, 48, 52
    a.e(f"s_lshl_b32 s{sT0}, s3, 8")
    a.e(f"s_add_u32 s{sT0}, s{sT0}, {M.tab_rs}")
    a.e("v_lshlrev_b32 v2, 4, v9")
    a.e(f"v_add_u32 v2, s{sT0}, v2")
    a.e("v_lshlrev_b32 v3, 2, v8")
    a.e(f"v_add_u32 v3, {M.tab_cs}, v3")
    for tt in range(4):
        a.lds(f"ds_read_b128 {vr(RS+4*tt,4)}, v2 offset:{64*tt}", "t")
        a.lds(f"ds_read_b128 {vr(MR+4*tt,4)}, v2 offset:{1024+64*tt}", "t")
    for fr in range(8):
        a.lds(f"ds_read_b32 v{CSR+fr}, v3 offset:{(fr>>2)*512+64*(fr&3)}", "t")
    EL = M.scr; CAR = EL + 8192
    a.e(f"s_lshl_b32 s{sT0}, s3, 11")
    a.e(f"s_add_u32 s{sT0}, s{sT0}, {EL}")
    a.e("v_lshlrev_b32 v4, 3, v8")
    a.e("v_lshl_add_u32 v5, v9, 9, v4")
    a.e(f"v_add_u32 v5, s{sT0}, v5")
    a.e(f"v_add_u32 v4, {CAR}, v4")
    a.wait(lg=["t"])
    R = lambda ct: ACC + 16 * ct
    I = lambda ct: ACC + 64 + 16 * ct
    H = 56
    def scan_step(ct, hr, hi, ur, ui, dr, di, tr, ti):
        lam = KL + 2 * ct
        a.e(f"v_pk_fma_f32 {vr(tr,2)}, {vr(lam,2)}, {vr(hr,2)}, {vr(ur,2)} op_sel:[0,0,0] op_sel_hi:[0,1,1]")
        a.e(f"v_pk_fma_f32 {vr(ti,2)}, {vr(lam,2)}, {vr(hi,2)}, {vr(ui,2)} op_sel:[0,0,0] op_sel_hi:[0,1,1]")
        a.e(f"v_pk_fma_f32 {vr(dr,2)}, {vr(lam,2)}, {vr(hi,2)}, {vr(tr,2)} op_sel:[1,0,0] op_sel_hi:[1,1,1] neg_lo:[1,0,0] neg_hi:[1,0,0]")
        a.e(f"v_pk_fma_f32 {vr(di,2)}, {vr(lam,2)}, {vr(hr,2)}, {vr(ti,2)} op_sel:[1,0,0] op_sel_hi:[1,1,1]")
    def lncorr(frs, j):
        for fr in frs:
            u = ACC + 16 * fr + 2 * j
            a.e(f"v_pk_mul_f32 {vr(u,2)}, {vr(u,2)}, {vr(RS+2*j,2)}")
        for fr in frs:
            u = ACC + 16 * fr + 2 * j
            cs = CSR + fr
            sel = cs & 1; csp = cs - sel
            a.e(f"v_pk_fma_f32 {vr(u,2)}, {vr(MR+2*j,2)}, {vr(csp,2)}, {vr(u,2)} op_sel:[0,{sel},0] op_sel_hi:[1,{sel},1] neg_lo:[1,0,0] neg_hi:[1,0,0]")
    E0 = 244
    for cp in range(2):
        cts = (2 * cp, 2 * cp + 1)
        cur = {}
        for j in range(8):
            lncorr((cts[0], 4 + cts[0], cts[1], 4 + cts[1]), j)
            if j == 0: continue
            for i, ct in enumerate(cts):
                b = H + 12 * i
                hr, hi = (R(ct), I(ct)) if j == 1 else cur[ct]
                dr, di = b + 4 * (j & 1), b + 4 * (j & 1) + 2
                scan_step(ct, hr, hi, R(ct) + 2 * j, I(ct) + 2 * j, dr, di, b + 8, b + 10)
                cur[ct] = (dr, di)
        for i, ct in enumerate(cts):
            hr, hi = cur[ct]; b = H + 12 * i
            a.e(f"v_mov_b32 v{E0+2*ct}, v{hr}")
            a.e(f"v_mov_b32 v{E0+2*ct+1}, v{hi}")
            a.e(f"v_mov_b32 v{b}, v{hr+1}")
            a.e(f"v_mov_b32 v{b+1}, v{hi+1}")
            cfma(a, b + 2, K8 + 2 * ct, E0 + 2 * ct, b, b + 8)
            a.lds(f"ds_write_b64 v5, {vr(b+2,2)} offset:{128*ct}")
    a.e("v_mov_b32 v15, 11")
    a.lds("ds_write_b32 v254, v15 offset:48")
    a.e("s_setprio 0")
    stamp(a, 3)
    for ct in range(4):
        cf = KC + 2 * ct
        for j in range(8):
            ur, ui = R(ct) + 2 * j, I(ct) + 2 * j
            t = H + 4 * (j & 1)
            a.e(f"v_pk_mul_f32 {vr(t,2)}, {vr(cf,2)}, {vr(ur,2)} op_sel:[0,0] op_sel_hi:[0,1]")
            a.e(f"v_pk_mul_f32 {vr(t+2,2)}, {vr(cf,2)}, {vr(ur,2)} op_sel:[1,0] op_sel_hi:[1,1]")
            a.e(f"v_pk_fma_f32 {vr(ur,2)}, {vr(cf,2)}, {vr(ui,2)}, {vr(t,2)} op_sel:[1,0,0] op_sel_hi:[1,1,1] neg_lo:[1,0,0] neg_hi:[1,0,0]")
            a.e(f"v_pk_fma_f32 {vr(ui,2)}, {vr(cf,2)}, {vr(ui,2)}, {vr(t+2,2)} op_sel:[0,0,0] op_sel_hi:[0,1,1]")
    a.e(f"s_mul_i32 s{sT0}, s3, 10240")
    a.e("v_mul_u32_u24 v6, 144, v8")
    a.e("v_lshl_add_u32 v6, v9, 5, v6")
    a.e(f"v_add_u32 v6, s{sT0}, v6")
    a.e("v_bfe_u32 v7, v0, 2, 2")
    a.e("v_lshl_add_u32 v7, v9, 3, v7")
    a.e("v_mul_u32_u24 v7, 144, v7")
    a.e("v_and_b32 v10, 3, v0")
    a.e("v_lshl_add_u32 v7, v10, 3, v7")
    a.e(f"v_add_u32 v7, s{sT0}, v7")
    a.e(f"s_lshl_b32 s{sT0}, s{sM}, 2")
    a.e(f"s_add_u32 s{sT0}, s{sT0}, s3")
    a.e(f"s_mul_i32 s{sT0}, s{sT0}, {HA_SLAB}")
    srd(a, rA, pWS, 0 if OPT.get("nost") else HA_SLAB, add=f"s{sT0}")
    a.e(f"s_lshl_b32 s{sT1}, s{sG}, 14")
    lds_wait_ge(a, 14, 40, 12, "L_s2a", tmp=10)
    lds_wait_ge(a, 14, 44, 12, "L_s2", tmp=10)
    a.e("s_setprio 3")
    stamp(a, 4)
    PS, CW = 16, 24
    for ct in range(4):
        a.lds(f"ds_read_b64 {vr(PS+2*ct,2)}, v5 offset:{128*ct}", ("c", ct))
        a.lds(f"ds_read_b64 {vr(CW+2*ct,2)}, v4 offset:{128*ct}", ("c", ct))
    INI = 32
    a.wait(lg_all=True)
    for cp in range(2):
        seqs = []
        for i, ct in enumerate((2 * cp, 2 * cp + 1)):
            t = Asm(); Hh = H + 12 * i
            c0, c1 = Hh, Hh + 2
            cfma(t, c0, KP + 2 * ct, CW + 2 * ct, PS + 2 * ct, Hh + 8)
            cfma(t, c1, K8 + 2 * ct, c0, E0 + 2 * ct, Hh + 8)
            cmul(t, Hh + 4, KC + 2 * ct, c0, Hh + 8)
            cmul(t, Hh + 6, KC + 2 * ct, c1, Hh + 10)
            b = INI + 4 * ct
            t.e(f"v_mov_b32 v{b}, v{Hh+4}")
            t.e(f"v_mov_b32 v{b+1}, v{Hh+6}")
            t.e(f"v_mov_b32 v{b+2}, v{Hh+5}")
            t.e(f"v_mov_b32 v{b+3}, v{Hh+7}")
            seqs.append(t.l)
        for x, y in zip(*seqs): a.l += [x, y]
    PK = 56
    def scan2(cp):
        for j in range(8):
            for ct in (2 * cp, 2 * cp + 1):
                b = INI + 4 * ct
                hr, hi = (b, b + 2) if j == 0 else (R(ct) + 2 * (j - 1), I(ct) + 2 * (j - 1))
                ur, ui = R(ct) + 2 * j, I(ct) + 2 * j
                scan_step(ct, hr, hi, ur, ui, ur, ui, ur, ui)
    def pack(cp):
        k = 0
        for ct in (2 * cp, 2 * cp + 1):
            for comp in range(2):
                base = ACC + 64 * comp + 16 * ct
                neg = "-" if comp else ""
                for sg in range(2):
                    q = PK + 4 * (k % 6); k += 1
                    for tt in range(4):
                        a.e(f"v_cvt_pk_bf16_f32 v{q+tt}, {neg}v{base+4*tt+sg}, {neg}v{base+4*tt+2+sg}")
                    a.lds(f"ds_write_b128 v6, {vr(q,4)} offset:{(32*comp+16*(ct&1))*144+16*sg}", ("w", cp, k))
                    if k >= 5: a.wait(lg=[("w", cp, k - 4)])
    def tread(cp):
        O = ACC + 32 * cp
        for kk, ksl in enumerate((cp, 2 + cp)):
            for mi in range(4):
                o = O + 16 * kk + 4 * mi
                for sub in range(2):
                    a.lds(f"ds_read_b64_tr_b16 {vr(o+2*sub,2)}, v7 offset:{(32*kk+4*sub)*144+32*mi}", ("o", cp, kk, mi))
    def tstore(cp):
        O = ACC + 32 * cp
        for kk, ksl in enumerate((cp, 2 + cp)):
            a.e(f"s_add_u32 s{sT2}, s{sT1}, {4096*ksl}")
            for mi in range(4):
                o = O + 16 * kk + 4 * mi
                a.wait(lg=[("o", cp, kk, mi)])
                a.e(f"buffer_store_dwordx4 {vr(o,4)}, v1, {sq(rA)}, s{sT2} offen offset:{1024*mi} sc1")
    scan2(0); pack(0); scan2(1)
    a.wait(lg_all=True)
    tread(0); pack(1); tstore(0)
    a.wait(lg_all=True)
    tread(1); tstore(1)
    stamp(a, 5)

def lds_wait_ge(a, addr_v, off, val, lab, tmp=13, sreg=None):
    sreg = sreg or sT5
    a.lab(lab)
    a.e(f"ds_read_b32 v{tmp}, v{addr_v} offset:{off}")
    a.e("s_waitcnt lgkmcnt(0)")
    a.e(f"v_readfirstlane_b32 s{sreg}, v{tmp}")
    a.e("s_nop 0")
    a.e(f"s_cmp_ge_u32 s{sreg}, {val}")
    a.e(f"s_cbranch_scc1 {lab}x")
    if tmp == 253 and OPT.get("hsl", 3): a.e(f"s_sleep {OPT.get('hsl', 3)}")
    a.e("s_add_u32 s67, s67, 1")
    a.e("s_cmp_lt_u32 s67, 0x400000")
    a.e(f"s_cbranch_scc1 {lab}")
    a.lab(lab + "x")
    a.lg = []

def fre1_wait(a, val, lab):
    a.lab(lab)
    a.e("ds_read_b128 v[4:7], v251 offset:48")
    a.e("s_waitcnt lgkmcnt(0)")
    a.e("v_min3_u32 v4, v4, v5, v6")
    a.e("v_min_u32 v4, v4, v7")
    a.e(f"v_cmp_gt_u32 vcc, {val}, v4")
    a.e(f"s_cbranch_vccz {lab}x")
    a.e(f"s_sleep {OPT.get('fsl', 1)}")
    a.e("s_add_u32 s67, s67, 1")
    a.e("s_cmp_lt_u32 s67, 0x400000")
    a.e(f"s_cbranch_scc1 {lab}")
    a.lab(lab + "x")
    a.lg = []

def perm_table(a, w):
    a.e(f"s_add_u32 s{sT0}, s{sNG}, s{sMT}")
    a.e(f"s_and_b32 s{sT0}, s{sT0}, 3")
    if not OPT.get("perm", 0): a.e(f"s_mov_b32 s{sT0}, 0")
    a.e(f"s_lshl_b32 s{sT0}, s{sT0}, 2")
    a.e(f"s_lshr_b32 s{sT0}, 0x2103210, s{sT0}")
    a.e(f"s_and_b32 s{sT0}, s{sT0}, 0xffff")
    a.e(f"s_mul_i32 s{sT1}, s{sT0}, 0x10001")
    if OPT.get("perm", 0): a.e(f"s_bitcmp1_b32 s{sMT}, 2")
    else: a.e("s_cmp_eq_u32 0, 1")
    a.e(f"s_cselect_b32 s{sT2}, 0x44444444, 0")
    a.e(f"s_cselect_b32 s{sT3}, 0, 0x8888")
    a.e(f"s_cselect_b32 s{sT4}, 0x4444, 0")
    a.e(f"s_add_u32 s92, s{sT2}, 0x44440000")
    a.e(f"s_add_u32 s93, s{sT3}, s{sT0}")
    a.e(f"s_xor_b32 s{sT2}, s{sT2}, 0x44440000")
    a.e(f"s_cmp_eq_u32 {w}, 1")
    a.e(f"s_cselect_b32 s92, s{sT2}, s92")
    a.e(f"s_cselect_b32 s93, 0xba98, s93")
    a.e(f"s_add_u32 s92, s92, s{sT1}")
def unit_of(d, p): return f"s_bfe_u32 s{d}, s{92 + (p >> 3)}, {hex((4 << 16) | (4 * (p & 7)))}"

def compute_p2(a):
    a.lab("L_p2")
    a.reset()
    perm_table(a, "s3")
    a.e("v_add_u32 v246, 4096, v1")
    srd(a, rW, pWS, 131072, add=hex(DONE_OFF))
    a.e(f"s_lshl_b32 s{sT3}, s{sM}, 2")
    a.e(f"s_add_u32 s{sT3}, s{sT3}, s3")
    a.e(f"s_lshl_b32 s{sT3}, s{sT3}, 5")
    a.e(f"s_add_u32 s{sT3}, s{sT3}, s{sGI}")
    a.e(f"s_lshl_b32 s{sT3}, s{sT3}, 7")
    a.e(f"v_mov_b32 v14, s{sTAG}")
    a.e("v_lshlrev_b32 v15, 2, v0")
    a.e("v_and_b32 v8, 15, v0")
    a.e("v_lshrrev_b32 v9, 4, v0")
    a.e("v_bfe_u32 v2, v0, 1, 3")
    a.e("v_xor_b32 v2, v2, v9")
    a.e("v_lshlrev_b32 v2, 4, v2")
    a.e("v_lshl_add_u32 v2, v8, 7, v2")
    a.e("v_xor_b32 v3, 64, v2")
    a.e("s_cmp_lt_u32 s3, 2")
    a.e("s_cbranch_scc1 L_p2_c")
    a.e("v_mov_b32 v2, v1")
    a.e("v_add_u32 v3, 1024, v1")
    a.lab("L_p2_c")
    a.e(f"s_mul_i32 s{sLB}, s3, 10240")
    def bases():
        a.e(f"v_add_u32 v2, s{sLB}, v2")
        a.e(f"v_add_u32 v3, s{sLB}, v3")
        for i in range(4): a.e(f"v_add_u32 v{4+i}, s{sPIT}, v{2+i}")
    bases()
    a.e(f"s_lshl_b32 s{sT0}, s3, 2")
    a.e(f"s_add_u32 s{sT0}, s{sT0}, s{sSYN}")
    a.e(f"v_mov_b32 v12, s{sT0}")
    def done():
        a.e("s_waitcnt vmcnt(0)")
        a.e("s_mov_b32 exec_hi, 0")
        a.e(f"buffer_store_dword v14, v15, {sq(rW)}, s87 offen sc1")
        a.e("s_mov_b64 exec, -1")
        stamp(a, 8)
    a.e(f"s_mov_b32 s87, s{sT3}")
    LATE = OPT.get("late", 0)
    if not LATE: done()
    ACC, WB, XB = 16, 96, 176
    wreg = lambda u, kk, nt: WB + 40 * (u & 1) + 20 * kk + 4 * nt
    xreg = lambda u, kk, mi: XB + 32 * (u & 1) + 16 * kk + 4 * mi
    def pulls(u):
        if OPT.get("nopull") and u > 1: return []
        return [(f"ds_read_b128 {vr(wreg(u,kk,nt),4)}, v{2+2*ent(u)+kk} offset:{2048*nt}", ("W", u)) for kk in range(2) for nt in range(5)]
    def freed(n):
        a.e(f"v_mov_b32 v13, {n}")
        a.lds("ds_write_b32 v12, v13 offset:16")
    if LATE:
        a.e("ds_read_b32 v13, v12")
        a.e("s_waitcnt lgkmcnt(0)")
        a.e("v_cmp_gt_u32 vcc, 2, v13")
        a.e("s_cbranch_vccz L_p2_pl")
        done()
        a.e("s_mov_b32 s87, 0x7000000")
        a.lab("L_p2_pl")
    for u in range(2):
        lds_wait_ge(a, 12, 0, u + 1, f"L_p2_r{u}")
        for ins, tag in pulls(u): a.lds(ins, tag)
        a.wait(lg_all=True)
        freed(u + 1)
    a.e(f"v_add_u32 v10, s{sLB}, v1")
    a.e(f"v_add_u32 v11, s{sPIT}, v10")
    a.e(f"s_mov_b32 s{sT0}, 0x160c0600")
    a.e(f"s_mov_b32 s{sT1}, 0x09090605")
    a.e(f"s_lshl_b32 s{sT2}, s3, 3")
    a.e(f"s_lshr_b32 s{sT0}, s{sT0}, s{sT2}")
    a.e(f"s_lshr_b32 s{sT1}, s{sT1}, s{sT2}")
    a.e(f"s_and_b32 s{sT0}, s{sT0}, 0xff")
    a.e(f"s_and_b32 s{sT1}, s{sT1}, 0xff")
    a.e(f"v_min_u32 v244, s{sT1}, v0")
    a.e("v_lshlrev_b32 v244, 7, v244")
    a.e(f"s_lshl_b32 s{sT2}, s{sMT}, 5")
    a.e(f"s_add_u32 s{sT0}, s{sT0}, s{sT2}")
    a.e(f"s_lshl_b32 s{sT0}, s{sT0}, 7")
    a.e(f"s_mul_i32 s{sT2}, s{sMT}, {HA_SLAB}")
    srd(a, rA, pWS, HA_SLAB, add=f"s{sT2}")
    a.e(f"s_mul_i32 s{sXO}, s3, {24*4096}")
    a.e(f"s_lshr_b32 s{sT1}, s3, 1")
    a.e(f"s_lshl_b32 s{sT1}, s{sT1}, 13")
    a.e(f"s_sub_u32 s{sXO}, s{sXO}, s{sT1}")
    if OPT.get("xoob"): a.e(f"s_mov_b32 s{sXO}, 0x7000000")
    def gi_of(slot):
        if slot < 40: return slot >> 2
        o = slot - 40
        if o >= 52: return 31
        return 10 + 2 * (o // 5) + (1 if o % 5 >= 2 else 0)
    U0 = (0, 12, 23, 35); LO = (0, 6, 12, 22); NN = (6, 7, 10, 10)
    tabs = []
    for w in range(4):
        t = 0
        for u in range(12):
            n = min(max(gi_of(min(sl, 93)) for sl in range(2 * U0[w], 2 * (U0[w] + u) + 2)) - LO[w] + 1, NN[w])
            if not OPT.get("dep", 0): n = NN[w]
            t |= n << (4 * u)
        tabs.append(t)
    for half, sr_ in ((0, 80), (1, 81)):
        v = [(t >> (32 * half)) & 0xffffffff for t in tabs]
        a.e(f"s_mov_b32 s{sr_}, {hex(v[0])}")
        for w in range(1, 4):
            a.e(f"s_cmp_eq_u32 s3, {w}")
            a.e(f"s_cselect_b32 s{sr_}, {hex(v[w])}, s{sr_}")
    a.e(f"s_mov_b32 s84, s{sT0}")
    def need(u): return f"s_bfe_u32 s82, s{80 + (u >> 3)}, {hex((4 << 16) | (4 * (u & 7)))}"
    def pollsync(lab, back):
        a.lab(lab)
        a.e(f"buffer_load_dword v245, v244, {sq(rW)}, s84 offen sc1")
        a.e("s_waitcnt vmcnt(0)")
        a.e(f"v_cmp_ne_u32 vcc, s{sTAG}, v245")
        a.e("s_nop 1")
        a.e("s_ff1_i32_b64 s83, vcc")
        a.e("s_cmp_ge_u32 s83, s82")
        a.e(f"s_cbranch_scc1 {back}")
        a.e(f"s_sleep {OPT.get('psleep', 2)}")
        a.e("s_add_u32 s67, s67, 16")
        a.e("s_cmp_lt_u32 s67, 0x400000")
        a.e(f"s_cbranch_scc1 {lab}")
    a.e(need(1))
    if LATE: done()
    if not OPT.get("nowait"): pollsync("L_p2_poll", "L_p2_go")
    a.lab("L_p2_go")
    stamp(a, 9)
    def xl(u, kk, mi):
        so = 85 + (u & 1)
        def f():
            if mi == 0 and kk == 0:
                a.e(unit_of(so, u))
                a.e(f"s_lshl_b32 s{so}, s{so}, 13")
                a.e(f"s_add_u32 s{so}, s{so}, s{sXO}")
            a.vmem(f"buffer_load_dwordx4 {vr(xreg(u,kk,mi),4)}, v{246 if kk else 1}, {sq(rA)}, s{so} offen offset:{1024*mi} sc1", ("X", u, kk))
        return f
    poll = lambda: a.vmem(f"buffer_load_dword v245, v244, {sq(rW)}, s84 offen sc1", "poll")
    for kk in range(2):
        for mi in range(4): xl(0, kk, mi)()
    if OPT.get("dep", 0): poll()
    for mi in range(4): xl(1, 0, mi)()
    dslow = []
    acc = lambda mi, nt: ACC + 4 * (5 * mi + nt)
    def pwrite(mi, nt):
        a.lds(f"ds_write_b128 v{10+(mi>>1)}, {vr(acc(mi,nt),4)} offset:{1024*(5*(mi&1)+nt)}")
    def mf(u, kk, mi, nt):
        c = "0" if (u == 0 and kk == 0) else vr(acc(mi, nt), 4)
        a.e(f"v_mfma_f32_16x16x32_bf16 {vr(acc(mi,nt),4)}, {vr(wreg(u,kk,nt),4)}, {vr(xreg(u,kk,mi),4)}, {c}")
    def last(u):
        a.wait(vm=[("X", u, 0), ("X", u, 1)])
        tiles = [(mi, nt) for mi in range(4) for nt in range(5)]
        for i in range(0, 20, 2):
            for kk in range(2):
                for mi, nt in tiles[i:i+2]: mf(u, kk, mi, nt)
            if i >= 4:
                for t in tiles[i-4:i-2]: pwrite(*t)
        a.e("s_nop 3")
        for t in tiles[16:18]: pwrite(*t)
        a.e("s_nop 3")
        for t in tiles[18:20]: pwrite(*t)
    slow = []
    for u in range(11):
        if u == 7:
            a.e("s_cmp_lg_u32 s3, 1")
            a.e("s_cbranch_scc1 L_p2_nosw")
            a.e("v_mov_b32 v2, v1")
            a.e("v_add_u32 v3, 1024, v1")
            bases()
            a.lab("L_p2_nosw")
        if u == 8:
            a.e("s_cmp_eq_u32 s3, 1")
            a.e("s_cbranch_scc1 L_p2_fl")
            a.lab("L_p2_nofl")
        if u == 10:
            a.e("s_cmp_eq_u32 s3, 1")
            a.e("s_cbranch_scc1 L_p2_w1")
            vm10 = list(a.vm)
        if OPT.get("ust"): stamp(a, 12 + u)
        fill = {i: [] for i in range(40)}
        if u >= 1:
            lab = f"L_p2_r{u+1}"
            fill[0].append(lambda: a.wait(lg=["rdy"]))
            fill[0].append(lambda u=u: a.e(f"v_cmp_gt_u32 vcc, {u+2}, v9"))
            fill[1].append(lambda lab=lab: (a.e(f"s_cbranch_vccnz {lab}a"), a.lab(lab + "b")))
            slow.append((lab, u + 2))
            for i, (ins, tag) in enumerate(pulls(u + 1)):
                fill[2 + 2 * i].append(lambda ins=ins, tag=tag: a.lds(ins, tag))
            fill[30].append(lambda u=u: a.wait(lg=[("W", u + 1)]))
            if u <= 8:
                fill[30].append(lambda u=u: a.e(f"v_mov_b32 v13, {u+2}"))
                fill[31].append(lambda: a.lds("ds_write_b32 v12, v13 offset:16"))
        for mi in range(4): fill[3 + 4 * mi].append(xl(u + 1, 1, mi))
        if u + 2 < 12:
            dl = f"L_p2_d{u+2}"
        if u + 2 < 12 and OPT.get("dep", 0):
            fill[20].append(lambda: a.e(f"v_cmp_ne_u32 vcc, s{sTAG}, v245"))
            fill[20].append(lambda u=u: a.e(need(u + 2)))
            fill[21].append(lambda: (a.e("s_ff1_i32_b64 s83, vcc"), a.e("s_cmp_lt_u32 s83, s82")))
            fill[22].append(lambda dl=dl: (a.e(f"s_cbranch_scc1 {dl}a"), a.lab(dl + "b")))
            dslow.append(dl)
            if u + 3 < 12: fill[22].append(poll)
        if u + 2 < 12:
            for mi in range(4): fill[21 + 4 * mi].append(xl(u + 2, 0, mi))
            fill[34].append(lambda: a.lds("ds_read_b32 v9, v12", "rdy"))
        i = 0
        for kk in range(2):
            a.wait(vm=[("X", u, kk)] + (["poll"] if kk else []))
            for nt in range(5):
                for mi in range(4):
                    mf(u, kk, mi, nt)
                    for f in fill[i]: f()
                    i += 1
    if OPT.get("ust"): stamp(a, 23)
    last(11)
    a.lab("L_p2_end")
    stamp(a, 10)
    a.e("s_waitcnt lgkmcnt(0)")
    a.bar()
    stamp_flush(a)
    a.e("s_endpgm")
    a.lab("L_p2_w1")
    a.vm = vm10; a.lg = []
    last(10)
    a.e("s_branch L_p2_end")
    a.lab("L_p2_fl")
    a.e("v_add_u32 v240, 40960, v1")
    a.e(f"v_add_u32 v241, s{sPIT}, v240")
    a.e(f"v_add_u32 v242, s{sPIT}, v241")
    a.e(f"s_cmp_lt_u32 s{sGI}, 10")
    a.e(f"s_cselect_b32 s{sT0}, {147456-40960-5120}, 0")
    a.e(f"s_add_u32 s{sT0}, s{sT0}, 5120")
    a.e(f"v_add_u32 v243, s{sT0}, v240")
    for nt in range(5):
        for mi in range(4):
            a.e(f"ds_write_b128 v{240+mi}, {vr(acc(mi,nt),4)} offset:{1024*nt}")
    a.e("s_waitcnt lgkmcnt(0)")
    for i in range(80): a.e(f"v_mov_b32 v{ACC+i}, 0")
    a.e("s_nop 1")
    a.e("s_branch L_p2_nofl")
    for dl in dslow:
        pollsync(dl + "a", dl + "b")
        a.e(f"s_branch {dl}b")
    for lab, val in slow:
        a.lab(lab + "a")
        a.e("ds_read_b32 v9, v12")
        a.e("s_waitcnt lgkmcnt(0)")
        a.e(f"v_cmp_gt_u32 vcc, {val}, v9")
        a.e(f"s_cbranch_vccz {lab}b")
        if OPT.get("csl"): a.e(f"s_sleep {OPT['csl']}")
        a.e("s_add_u32 s67, s67, 1")
        a.e("s_cmp_lt_u32 s67, 0x400000")
        a.e(f"s_cbranch_scc1 {lab}a")
        a.e(f"s_branch {lab}b")

def helper(a, M):
    ffn = M is FFN
    nm = M.name
    XV, WV = 16, 24
    srd(a, rX, pX, L * D * 2)
    a.e("v_lshrrev_b32 v2, 3, v0")
    a.e("v_and_b32 v3, 7, v0")
    a.e("v_lshrrev_b32 v4, 4, v0")
    a.e("v_xor_b32 v3, v3, v4")
    a.e("v_lshlrev_b32 v3, 4, v3")
    a.e("v_xor_b32 v4, 64, v3")
    if ffn:
        a.e("v_mov_b32 v5, v2")
    else:
        a.e("v_lshrrev_b32 v5, 2, v2")
        a.e("v_lshlrev_b32 v5, 4, v5")
        a.e("v_and_b32 v6, 1, v2")
        a.e("v_lshl_add_u32 v5, v6, 3, v5")
        a.e("v_bfe_u32 v6, v2, 1, 1")
        a.e("v_add_u32 v5, v5, v6")
    a.e(f"s_lshl_b32 s{sT0}, s{sM}, 8")
    a.e(f"s_lshl_b32 s{sT1}, s{sHW}, 6")
    a.e(f"s_add_u32 s{sT0}, s{sT0}, s{sT1}")
    a.e(f"v_add_u32 v5, s{sT0}, v5")
    a.e("v_mul_u32_u24 v5, 1280, v5")
    a.e("v_add_u32 v6, v5, v3")
    a.e("v_add_u32 v7, v5, v4")
    for i in range(8):
        rows = 8 * i if ffn else 32 * (i & 1) + 2 * (i >> 1)
        a.e(f"v_add_u32 v{XV+i}, {rows*1280}, v{6+(i&1)}")
    a.e(f"s_cmp_ge_u32 s{sHW}, 2")
    if ffn:
        a.e(f"s_cselect_b32 s{rW}, s{pW3}, s{pW1}")
        a.e(f"s_cselect_b32 s{rW+1}, s{pW3+1}, s{pW1+1}")
        a.e(f"s_mov_b32 s{rW+2}, {D*F*2}")
        a.e(f"s_mov_b32 s{rW+3}, 0x00020000")
        a.e(f"s_sub_u32 s{sG}, s{sGI}, 10")
        a.e(f"s_mul_i32 s{sT0}, s{sG}, 160")
        a.e(f"s_min_u32 s{sT0}, s{sT0}, 3296")
        a.e(f"s_and_b32 s{sT1}, s{sHW}, 1")
        a.e(f"s_mul_i32 s{sT1}, s{sT1}, {32*3456}")
        a.e(f"s_add_u32 s{sT0}, s{sT0}, s{sT1}")
        for n in range(5):
            a.e(f"v_add_u32 v8, {64*n}, v0")
            a.e("v_mul_u32_u24 v9, 6554, v8")
            a.e("v_lshrrev_b32 v9, 16, v9")
            a.e("v_mul_u32_u24 v10, 10, v9")
            a.e("v_sub_u32 v10, v8, v10")
            a.e("v_mul_u32_u24 v9, 3456, v9")
            a.e("v_lshl_add_u32 v9, v10, 4, v9")
            a.e(f"v_add_u32 v{WV+n}, s{sT0}, v9")
        a.e(f"s_mul_i32 s{sLB}, s{sHW}, 5120")
        NW = 5; WSTEP = 64 * 3456
    else:
        a.e(f"s_cselect_b32 s{rW}, s{pBIM}, s{pBRE}")
        a.e(f"s_cselect_b32 s{rW+1}, s{pBIM+1}, s{pBRE+1}")
        a.e(f"s_mov_b32 s{rW+2}, {P*D*2}")
        a.e(f"s_mov_b32 s{rW+3}, 0x00020000")
        a.e(f"s_mov_b32 s{sG}, s{sGI}")
        a.e(f"s_lshl_b32 s{sT0}, s{sG}, 6")
        a.e(f"s_and_b32 s{sT1}, s{sHW}, 1")
        a.e(f"s_lshl_b32 s{sT1}, s{sT1}, 5")
        a.e(f"s_add_u32 s{sT0}, s{sT0}, s{sT1}")
        a.e(f"v_add_u32 v5, s{sT0}, v2")
        a.e("v_mul_u32_u24 v5, 1280, v5")
        a.e("v_add_u32 v6, v5, v3")
        a.e("v_add_u32 v7, v5, v4")
        for n in range(4):
            a.e(f"v_add_u32 v{WV+n}, {8*n*1280}, v{6+(n&1)}")
        a.e(f"s_lshl_b32 s{sLB}, s{sHW}, 12")
        NW = 4; WSTEP = 128
    a.e(f"s_lshl_b32 s77, s{sHW}, 13")
    def issue_w(ls, i, so=None, tag=None):
        base = (ls % 3) * M.slot
        a.e(f"s_add_u32 m0, s{sLB}, {base+M.woff+1024*i}")
        a.e("s_nop 0"); so = so or sWO
        a.vmem(f"buffer_load_dwordx4 v{WV+i}, {sq(rW)}, s{so} offen lds", tag or ("S", ls))
    def issue_x(ls, i):
        base = (ls % 3) * M.slot
        a.e(f"s_add_u32 m0, s77, {base+1024*i}")
        a.e("s_nop 0")
        a.vmem(f"buffer_load_dwordx4 v{XV+i}, {sq(rX)}, s{sXO} offen lds", ("S", ls))
    def issue_stage(ls, w=True, x=True, part=None):
        ops = []
        for i in range(8):
            if i < NW and w: ops.append((issue_w, i))
            if x: ops.append((issue_x, i))
        h = OPT.get("half", 6)
        if part == 0: ops = ops[:h]
        if part == 1: ops = ops[h:]
        a.e(f"s_movk_i32 s{sXO}, {128*ls}")
        a.e(f"s_mov_b32 s{sWO}, {WSTEP*ls}")
        for f, i in ops: f(ls, i)
    stamp(a, 4)
    issue_stage(0)
    stamp(a, 5)
    if not ffn:
        a.e(f"s_lshl_b32 s{sT0}, s{sG}, 13")
        a.e(f"s_add_u32 s{sT0}, s{sT0}, {hex(AGG_OFF)}")
        srd(a, rB, pWS, 8192, add=f"s{sT0}")
        a.e(f"s_lshl_b32 s79, s{sM}, 10")
    a.e("s_waitcnt lgkmcnt(0)")
    a.e(f"s_add_u32 s{sTAG}, s{sTAG}, 0x9E3779B1")
    issue_stage(1, part=0)
    stamp(a, 6)
    CF, CA, ONE = 40, 64, 36
    for i in range(4): a.e(f"v_mov_b32 v{ONE+i}, 0x3f803f80")
    a.e("v_lshrrev_b32 v9, 4, v0")
    if ffn:
        a.e("v_bfe_u32 v8, v0, 2, 2")
        a.e("v_lshl_add_u32 v8, v9, 2, v8")
        a.e("v_mul_u32_u24 v8, 160, v8")
        a.e("v_and_b32 v10, 3, v0")
        a.e("v_lshl_add_u32 v8, v10, 3, v8")
    else:
        a.e("v_and_b32 v10, 15, v0")
        a.e("v_lshlrev_b32 v8, 7, v10")
        a.e("v_bfe_u32 v10, v0, 1, 3")
        a.e("v_xor_b32 v10, v10, v9")
        a.e("v_lshl_add_u32 v8, v10, 4, v8")
    a.e(f"s_add_u32 s{sT0}, s{sLB}, {M.woff}")
    a.e(f"v_add_u32 v8, s{sT0}, v8")
    a.e(f"v_add_u32 v11, {2*M.slot}, v8")
    if not ffn:
        a.e("v_xor_b32 v13, 64, v8")
        a.e("v_xor_b32 v14, 64, v11")
    for i in range(20): a.e(f"v_mov_b32 v{CA+i}, 0")
    def colsum(st):
        reg, off = (8, st * M.slot) if st < 2 else (11, 0)
        n = 5 if ffn else 4
        for t in range(n):
            if ffn:
                a.lds(f"ds_read_b64_tr_b16 {vr(CF+4*t,2)}, v{reg} offset:{off+32*t}", ("c", t))
                a.lds(f"ds_read_b64_tr_b16 {vr(CF+4*t+2,2)}, v{reg} offset:{off+32*t+2560}", ("c", t))
            else:
                r2 = reg if t < 2 else {8: 13, 11: 14}[reg]
                a.lds(f"ds_read_b128 {vr(CF+4*t,4)}, v{r2} offset:{off+2048*(t&1)}", ("c", t))
        for t in range(n):
            a.wait(lg=[("c", t)])
            c = vr(CA + 4 * (t if ffn else t & 1), 4)
            a.e(f"v_mfma_f32_16x16x32_bf16 {c}, {vr(ONE,4)}, {vr(CF+4*t,4)}, {c}")
    srd(a, rC, pWS, 32 * 32768, add=hex(CS_OFF))
    a.e(f"s_lshl_b32 s{sT2}, s{sGI}, 15")
    a.e(f"s_lshl_b32 s{sT1}, s{sM}, {12 if ffn else 11}")
    a.e(f"s_add_u32 s{sT2}, s{sT2}, s{sT1}")
    a.e(f"s_lshr_b32 s{sT1}, s{sHW}, 1")
    a.e(f"s_lshl_b32 s{sT1}, s{sT1}, 10")
    a.e(f"s_add_u32 s{sT2}, s{sT2}, s{sT1}")
    a.e(f"s_and_b32 s{sT1}, s{sHW}, 1")
    a.e(f"s_lshl_b32 s{sT1}, s{sT1}, {11 if ffn else 8}")
    a.e(f"s_add_u32 s78, s{sT2}, s{sT1}")
    if OPT.get("dbl", 0):
        a.e(f"s_and_b32 s87, s{sM}, 3")
        a.e("s_lshl_b32 s87, s87, 1")
        a.e(f"s_lshr_b32 s{sT0}, s{sM}, 2")
        a.e(f"s_add_u32 s87, s87, s{sT0}")
        a.e("s_add_u32 s87, s87, 2")
        a.e("s_xor_b32 s86, s87, 1")
        a.e(f"s_mul_i32 s86, s86, {WSTEP}")
        a.e(f"s_mul_i32 s87, s87, {WSTEP}")
        a.e(f"v_readfirstlane_b32 s85, v{WV}")
        if ffn:
            a.e("v_lshrrev_b32 v29, 1, v0")
            a.e("v_mul_u32_u24 v29, 3456, v29")
            a.e("v_and_b32 v30, 1, v0")
            a.e("v_mul_u32_u24 v30, 156, v30")
            a.e("v_add3_u32 v29, v29, v30, s85")
        else:
            a.e("v_and_b32 v29, 31, v0")
            a.e("v_mul_u32_u24 v29, 1280, v29")
            a.e("v_add_u32 v29, s85, v29")
    else:
        a.e(f"s_add_u32 s87, s{sM}, 2")
        a.e(f"s_mul_i32 s87, s87, {WSTEP}")
    a.e("v_lshlrev_b32 v9, 2, v0")
    a.e("v_lshlrev_b32 v12, 3, v0")
    a.e(f"s_lshl_b32 s{sT0}, s{sHW}, 2")
    a.e(f"s_add_u32 s{sT0}, s{sT0}, s{sSYN}")
    a.e(f"v_mov_b32 v15, s{sT0}")
    a.e(f"v_mov_b32 v251, s{sSYN}")
    a.e("v_mov_b32 v252, v4")
    a.e("v_mov_b32 v32, 0")
    for o in (0, 16, 32, 48): a.e(f"ds_write_b32 v15, v32 offset:{o}")
    def rdy(n):
        a.e(f"v_mov_b32 v253, {n}")
        a.e("ds_write_b32 v15, v253 offset:32")
        stamp(a, 11 + n)
    a.wait(vm=[("S", 0)])
    a.e("s_waitcnt lgkmcnt(0)")
    stamp(a, 12)
    a.bar()
    stamp(a, 1)
    def cs_publish():
      if True:
        for t in range(1, 4 if ffn else 2):
            m = 0xffff << (16 * t)
            a.e(f"s_mov_b32 exec_lo, {hex(m & 0xffffffff)}")
            a.e(f"s_mov_b32 exec_hi, {hex(m >> 32)}")
            a.e(f"v_mov_b32 v{CA}, v{CA+4*t}")
        a.e("s_mov_b64 exec, -1")
        a.e(f"v_mov_b32 v{CA+1}, s{sTAG}")
        a.e(f"v_mov_b32 v{CA+17}, s{sTAG}")
        if ffn:
            a.vmem(f"buffer_store_dwordx2 {vr(CA,2)}, v12, {sq(rC)}, s78 offen sc1", "cs")
            a.e("s_mov_b64 exec, 0xffff")
            a.vmem(f"buffer_store_dwordx2 {vr(CA+16,2)}, v12, {sq(rC)}, s78 offen offset:512 sc1", "cs")
        else:
            a.e("s_mov_b32 exec_hi, 0")
            a.vmem(f"buffer_store_dwordx2 {vr(CA,2)}, v12, {sq(rC)}, s78 offen sc1", "cs")
        a.e("s_mov_b64 exec, -1")
    r0 = 2 if ffn else 3
    if OPT.get("s2f", 0):
        issue_stage(1, part=1)
        issue_stage(2, part=0)
        a.wait(vm=[("S", 1)])
        rdy(2)
        issue_stage(2, part=1)
        a.e(f"s_cmp_lg_u32 s{sM}, 0")
        a.e(f"s_cbranch_scc1 L_h{nm}_cs0")
        colsum(0)
        colsum(1)
        a.lab(f"L_h{nm}_cs0")
        fre1_wait(a, 1, f"L_h{nm}_f3")
        for i in range(NW): issue_w(3, i, so=87, tag="slab")
        a.wait(vm=[("S", 2)])
        rdy(3)
        issue_stage(3, w=False)
        a.wait(vm=["slab"])
        colsum(0)
        issue_stage(3, x=False)
        cs_publish()
    else:
        issue_stage(1, part=1)
        for i in range(NW): issue_w(2, i, so=87, tag="slab")
        a.wait(vm=[("S", 1)])
        rdy(2)
        if OPT.get("dbl", 0) == 1: a.vmem(f"buffer_load_dword v31, v29, {sq(rW)}, s86 offen")
        issue_stage(2, w=False)
        if OPT.get("dbl", 0) == 2: a.vmem(f"buffer_load_dword v31, v29, {sq(rW)}, s86 offen")
        a.e(f"s_cmp_lg_u32 s{sM}, 0")
        a.e(f"s_cbranch_scc1 L_h{nm}_cs0")
        colsum(0)
        colsum(1)
        a.lab(f"L_h{nm}_cs0")
        a.wait(vm=["slab"])
        colsum(2)
        issue_stage(2, x=False)
        if OPT.get("dbl", 0) == 3: a.vmem(f"buffer_load_dword v31, v29, {sq(rW)}, s86 offen")
        cs_publish()
    srd(a, rD, pWS, 65536, add=hex(ST1_OFF))
    if ffn:
        a.e("v_lshlrev_b32 v10, 5, v0")
    else:
        a.e("v_bfe_u32 v10, v0, 2, 2")
        a.e("v_lshlrev_b32 v10, 4, v10")
        a.e("v_and_b32 v30, 1, v0")
        a.e("v_lshl_add_u32 v10, v30, 3, v10")
        a.e("v_lshrrev_b32 v30, 4, v0")
        a.e("v_lshl_add_u32 v10, v30, 1, v10")
        a.e("v_bfe_u32 v30, v0, 1, 1")
        a.e("v_add_u32 v10, v10, v30")
        a.e("v_lshlrev_b32 v10, 5, v10")
    a.e(f"s_lshl_b32 s18, s{sM}, 13")
    a.e(f"s_lshl_b32 s{sT1}, s{sHW}, 11")
    a.e(f"s_add_u32 s18, s18, s{sT1}")
    a.e(f"s_lshl_b32 s19, s{sGI}, 15")
    a.e(f"s_lshl_b32 s{sT1}, s{sHW}, 9")
    if ffn:
        a.e(f"s_add_u32 s19, s19, s{sT1}")
        a.e(f"s_bitcmp1_b32 s{sHW}, 0")
        a.e(f"s_cselect_b32 s{sT2}, 0x78, -1")
        a.e(f"v_and_b32 v13, s{sT2}, v12")
    else:
        a.e(f"s_and_b32 s{sT2}, s{sT1}, 0x400")
        a.e(f"s_add_u32 s19, s19, s{sT2}")
        a.e("v_mov_b32 v13, v12")
    NP = 16 if ffn else 8
    def gather(track):
        f = a.vmem if track else (lambda ins, tag: a.e(ins))
        f(f"buffer_load_dwordx4 v[32:35], v10, {sq(rD)}, s18 offen sc1", "g")
        for p in range(NP):
            if p % 2 == 0: a.e(f"s_add_u32 s{sT0}, s19, {2048*p}")
            f(f"buffer_load_dwordx2 {vr(208+2*p,2)}, v13, {sq(rC)}, s{sT0} offen offset:{2048*(p&1)} sc1", "g")
    def tables():
        a.wait(vm=["g"])
        a.e(f"s_mov_b32 s{sT3}, 0")
        a.lab(f"L_h{nm}_g")
        a.e(f"v_xor_b32 v36, s{sTAG}, v33")
        a.e(f"v_xor_b32 v37, s{sTAG}, v35")
        a.e("v_or_b32 v36, v36, v37")
        for p in range(NP):
            a.e(f"v_xor_b32 v37, s{sTAG}, v{209+2*p}")
            a.e("v_or_b32 v36, v36, v37")
        a.e("v_cmp_ne_u32 vcc, 0, v36")
        a.e(f"s_cbranch_vccz L_h{nm}_gok")
        a.e("s_sleep 4")
        gather(False)
        a.e("s_waitcnt vmcnt(0)")
        a.e(f"s_add_u32 s{sT3}, s{sT3}, 1")
        a.e(f"s_cmp_lt_u32 s{sT3}, 0x40000")
        a.e(f"s_cbranch_scc1 L_h{nm}_g")
        a.lab(f"L_h{nm}_gok")
        a.e(f"s_lshl_b32 s{sT1}, s{sHW}, 8")
        if ffn:
            a.e(f"s_lshl_b32 s{sT0}, s{sHW}, 9")
            a.e(f"s_add_u32 s{sT0}, s{sT0}, {M.tab_st}")
            a.e(f"v_add_u32 v10, s{sT0}, v12")
            a.e("v_mov_b32 v33, v34")
            a.e("ds_write_b64 v10, v[32:33]")
        else:
            a.e("v_rcp_f32 v33, v34")
            a.e(f"s_add_u32 s{sT0}, s{sT1}, {M.tab_rs}")
            a.e(f"v_add_u32 v10, s{sT0}, v9")
            a.e("v_mul_f32 v32, v32, v33")
            a.e("ds_write_b32 v10, v33")
            a.e("ds_write_b32 v10, v32 offset:1024")
        for p in range(1, NP):
            a.e(f"v_add_f32 v208, v208, v{208+2*p}")
        a.e(f"s_add_u32 s{sT0}, s{sT1}, {M.tab_cs}")
        a.e(f"v_add_u32 v10, s{sT0}, v9")
        a.e("ds_write_b32 v10, v208")
        a.e("s_waitcnt lgkmcnt(0)")
    RB_ = OPT.get("relb", 4); RD_ = OPT.get("reld", 2)
    for b in range(4 if OPT.get('s2f', 0) else 3, 10):
        fre1_wait(a, b - 2, f"L_h{nm}_f{b}")
        if r0 == 2 and b == RB_ + RD_:
            a.e(f"s_movk_i32 s{sXO}, {128*b}")
            a.e(f"s_mov_b32 s{sWO}, {WSTEP*b}")
            for i in range(NW): issue_w(b, i)
            for i in range(5, 8): issue_x(b, i)
            if RD_ == 1:
                a.wait(vm=[("S", b - 1)])
                rdy(b)
            a.wait(vm=["rl"])
            sv = list(a.vm)
            relay_finish(a, M, slot=b % 3, regs=True, mid=(lambda: None) if RD_ == 1 else (lambda: (a.wait(vm=[("S", b - 1)]), rdy(b))))
            for i in range(5): issue_x(b, i)
        else:
            issue_stage(b, part=0)
            a.wait(vm=[("S", b - 1)])
            rdy(b)
            issue_stage(b, part=1)
        if ffn and b == 9 - OPT.get("fe", 0):
            pass
        if ffn and b == 8 and OPT.get('early'):
            a.e("v_min_u32 v11, 53, v0")
            a.e("v_lshlrev_b32 v11, 7, v11")
            a.e(f"s_lshl_b32 s{sT0}, s{sNG}, 13")
            a.vmem(f"buffer_load_dword v47, v11, {sq(rA)}, s{sT0} offen sc1", "fl")
        if not ffn and b == OPT.get("stch", 6):
            a.e(f"s_lshl_b32 s{sT2}, s{sG}, 3")
            a.e(f"s_add_u32 s{sT2}, s{sT2}, s{sM}")
            a.e(f"s_lshl_b32 s{sT2}, s{sT2}, 1")
            a.e(f"s_and_b32 s{sT1}, s{sHW}, 1")
            a.e(f"s_add_u32 s{sT2}, s{sT2}, s{sT1}")
            a.e(f"s_mul_i32 s{sT0}, s{sT2}, {40*128}")
            a.e(f"s_cmp_lt_u32 s{sHW}, 2")
            a.e(f"s_cselect_b32 s80, s{pCRE}, s{pCIM}")
            a.e(f"s_cselect_b32 s81, s{pCRE+1}, s{pCIM+1}")
            a.e(f"s_mov_b32 s82, {D*P*2}")
            a.e(f"s_mov_b32 s83, 0x00020000")
            a.e("v_min_u32 v5, 39, v0")
            a.e("v_lshlrev_b32 v5, 7, v5")
            a.vmem(f"buffer_load_dword v31, v5, {sq(80)}, s{sT0} offen")
        if r0 == 2 and b == RB_:
            relay_start(a, M, regs=True)
            a.vm.append("rl")
        if (b == 3 and not r0) or (r0 == 2 and b == RB_ + RD_ + 1):
            a.e(f"v_mov_b32 v253, s{sTAG}")
            a.e("s_mov_b32 exec_hi, 0")
            a.vmem(f"buffer_store_dword v253, v9, {sq(rA)}, s89 offen sc1")
            a.e("s_mov_b64 exec, -1")
    gather(True)
    p2_helper_setup(a)
    if ffn and not OPT.get("early"):
        a.wait(vm=[("S", 9)])
        rdy(10)
        if OPT.get("early2"):
            a.e(f"s_cmp_ge_u32 s{sHW}, 2")
            a.e(f"s_cbranch_scc1 L_h{nm}_c1")
            sv = list(a.vm)
            p2_load(a, 2)
            a.vm = sv
            a.lab(f"L_h{nm}_c1")
        tables()
        rdy(11)
        xr_loads(a)
        a.e(f"s_cmp_lt_u32 s{sHW}, 2")
        a.e(f"s_cbranch_scc1 L_h{nm}_c")
        wb_switch(a, nm)
        if OPT.get("early2"): p2_load(a, 2)
        a.lab(f"L_h{nm}_c")
        a.reset()
        order = (0, 1, 3, 4, 5, 6) if OPT.get("early2") else (0, 1, 2, 3, 4, 5, 6)
    elif ffn:
        a.e(f"s_cmp_lt_u32 s{sHW}, 2")
        a.e(f"s_cbranch_scc1 L_h{nm}_c0")
        wb_switch(a, nm, early=True)
        a.lab(f"L_h{nm}_c0")
        p2_load(a, 2)
        a.wait(vm=[("S", 9)])
        rdy(10)
        p2_load(a, 3)
        tables()
        rdy(11)
        order = (0, 1, 4, 5, 6)
    else:
        a.wait(vm=[("S", 9)])
        rdy(10)
        tables()
        rdy(11)
        xr_loads(a)
        a.e(f"s_cmp_lt_u32 s{sHW}, 2")
        a.e(f"s_cbranch_scc1 L_h{nm}_c")
        ssm_exchange(a)
        lds_wait_ge(a, 251, 40, 12, "L_hssm_pause", tmp=253)
        lds_wait_ge(a, 251, 44, 12, "L_hssm_pause2", tmp=253)
        wb_switch(a, nm)
        a.lab(f"L_h{nm}_c")
        a.reset()
        order = (2, 0, 3, 1, 4, 5, 6)
    for u in order:
        if u < 2: fre1_wait(a, 8 + u, f"L_h{nm}_e{u}")
        p2_load(a, u)
        if u == 4:
            a.wait(vm=[("U", 0), ("U", 1)])
            a.e("v_mov_b32 v253, 2")
            a.e("ds_write_b32 v15, v253")
    stamp(a, 3)
    a.e("s_branch L_h_p2")

sB0, sSTEP = 4, 5
RC = 48
XR, DR = 26, 36
def p2_helper_setup(a):
    lab = len(a.l)
    perm_table(a, f"s{sHW}")
    a.e("s_mov_b32 s27, 0x00020000")
    a.e(f"s_mul_i32 s6, s{sHW}, 10240")
    a.e(f"s_add_u32 s7, s6, s{sPIT}")
    a.e(f"s_add_u32 s8, s7, s{sPIT}")
    for i in range(3): a.e(f"v_add_u32 v{248+i}, s{6+i}, v1")
    srd(a, rX, pCRE, D * P * 2)
    srd(a, rW, pCIM, D * P * 2)
    a.e(f"s_mul_i32 s{sT5}, s{sNG}, 80")
    a.e(f"v_add_u32 v5, s{sT5}, v2")
    a.e("v_mul_u32_u24 v5, 1280, v5")
    a.e("v_add_u32 v6, v5, v3")
    a.e("v_add_u32 v7, v5, v252")
    for i in range(10):
        a.e(f"v_add_u32 v{16+i}, {8*i*1280}, v{6+(i&1)}")
    a.e(f"s_mul_i32 s{sB0}, s{sHW}, 768")
    a.e(f"s_movk_i32 s{sSTEP}, 128")

NDMA = lambda: OPT.get('ndma', 10)
def xr_loads(a):
    a.e("s_load_dwordx2 s[12:13], s[0:1], 0")
    a.e("s_load_dwordx2 s[10:11], s[0:1], 64")
    srd(a, rD, pWS, 65536, add=hex(ST1_OFF))
    a.e(f"s_lshl_b32 s{sT0}, s{sMT}, 6")
    a.e(f"s_lshl_b32 s{sT1}, s{sHW}, 4")
    a.e(f"s_add_u32 s{sT0}, s{sT0}, s{sT1}")
    a.e(f"s_mul_i32 s{sT1}, s{sT0}, 1280")
    a.e(f"s_mul_i32 s{sT2}, s{sNG}, 160")
    a.e(f"s_add_u32 s{sT1}, s{sT1}, s{sT2}")
    a.e(f"s_lshl_b32 s77, s{sT1}, 1")
    a.e(f"s_lshl_b32 s78, s{sT0}, 5")
    a.e("v_and_b32 v5, 15, v0")
    a.e("v_lshrrev_b32 v6, 4, v0")
    a.e("v_mul_u32_u24 v14, 2560, v5")
    a.e("v_lshl_add_u32 v14, v6, 4, v14")
    a.e("v_lshlrev_b32 v13, 5, v5")
    a.e("s_waitcnt lgkmcnt(0)")
    srd(a, rC, 12, L * D * 2)
    for n in range(3):
        a.e(f"v_add_u32 v5, {64*n}, v0")
        if n == 2: a.e("v_min_u32 v5, 159, v5")
        a.e("v_mul_u32_u24 v6, 6554, v5")
        a.e("v_lshrrev_b32 v6, 16, v6")
        a.e("v_mul_u32_u24 v6, 1120, v6")
        a.e("v_lshl_add_u32 v6, v5, 4, v6")
        a.vmem(f"buffer_load_dwordx4 {vr(28+4*n,4)}, v6, {sq(rC)}, s{sT1} offen", "xr")
    srd(a, rC, 10, D * 2)
    a.e("v_min_u32 v5, 9, v0")
    a.e("v_lshlrev_b32 v5, 4, v5")
    a.vmem(f"buffer_load_dwordx4 v[40:43], v5, {sq(rC)}, s{sT2} offen", "xr")
    a.vmem(f"buffer_load_dwordx4 v[44:47], v13, {sq(rD)}, s78 offen sc1", "xr")

def xr_finish(a):
    e = 248 + ent(2)
    for n in range(4): a.e(f"ds_write_b128 v{e}, {vr(28+4*n,4)} offset:{1024*n}")
    a.e("v_and_b32 v5, 15, v0")
    a.e("v_lshrrev_b32 v6, 4, v0")
    a.e("v_lshlrev_b32 v6, 3, v6")
    a.e(f"v_add_u32 v6, s{6+ent(2)}, v6")
    a.e("v_mul_u32_u24 v5, 160, v5")
    a.e("v_add_u32 v5, v5, v6")
    a.lab("L_xr_st")
    a.e(f"v_xor_b32 v8, s{sTAG}, v45")
    a.e(f"v_xor_b32 v9, s{sTAG}, v47")
    a.e("v_or_b32 v8, v8, v9")
    a.e("v_cmp_ne_u32 vcc, 0, v8")
    a.e("s_cbranch_vccz L_xr_ok")
    a.e(f"buffer_load_dwordx4 v[44:47], v13, {sq(rD)}, s78 offen sc1")
    a.e("s_waitcnt vmcnt(0)")
    a.e("s_add_u32 s67, s67, 16")
    a.e("s_cmp_lt_u32 s67, 0x400000")
    a.e("s_cbranch_scc1 L_xr_st")
    a.lab("L_xr_ok")
    a.e("v_mov_b32 v8, v44")
    a.e("v_rcp_f32 v9, v46")
    a.e("s_waitcnt lgkmcnt(0)")
    for nt in range(5):
        a.e(f"ds_read_b64 {vr(XR+2*nt,2)}, v5 offset:{32*nt}")
        a.e(f"ds_read_b64 {vr(DR+2*nt,2)}, v6 offset:{3072+32*nt}")
    a.e(f"s_mov_b32 s{sT2}, 0xffff0000")
    a.e("s_waitcnt lgkmcnt(0)")

def xr_skip(a):
    for i in range(10):
        a.e(f"v_lshlrev_b32 v4, 16, v{XR+i}")
        a.e(f"v_and_b32 v5, s{sT2}, v{XR+i}")
        a.e("v_pk_add_f32 v[4:5], v[4:5], v[8:9] op_sel_hi:[1,0] neg_lo:[0,1] neg_hi:[0,1]")
        a.e("v_cvt_pk_bf16_f32 v5, v4, v5")
        a.e("v_lshlrev_b32 v4, 16, v5")
        a.e(f"v_and_b32 v5, s{sT2}, v5")
        a.e("v_pk_mul_f32 v[4:5], v[4:5], v[8:9] op_sel:[0,1] op_sel_hi:[1,1]")
        a.e("v_cvt_pk_bf16_f32 v5, v4, v5")
        a.e("v_lshlrev_b32 v4, 16, v5")
        a.e(f"v_and_b32 v5, s{sT2}, v5")
        a.e(f"v_lshlrev_b32 v6, 16, v{DR+i}")
        a.e(f"v_and_b32 v7, s{sT2}, v{DR+i}")
        a.e("v_pk_mul_f32 v[4:5], v[4:5], v[6:7]")
        a.e(f"v_cvt_pk_bf16_f32 v{DR+i}, v4, v5")

def p2_load(a, u):
    r = 24
    a.e(unit_of(sT5, u))
    a.e(f"s_bitcmp1_b32 s{sT5}, 0")
    a.e(f"s_cselect_b64 s[24:25], s[{rW}:{rW+1}], s[{rX}:{rX+1}]")
    a.e(f"s_cselect_b32 s26, s{rW+2}, s{rX+2}")
    a.e(f"s_lshr_b32 s{sT5}, s{sT5}, 1")
    a.e(f"s_mul_i32 s{sXO}, s{sSTEP}, s{sT5}")
    a.e(f"s_add_u32 s{sXO}, s{sXO}, s{sB0}")
    if OPT.get("woob"): a.e(f"s_mov_b32 s{sXO}, 0x7000000")
    if u == 11:
        a.e(f"s_cmp_eq_u32 s{sHW}, 1")
        a.e(f"s_cselect_b32 s{sXO}, 0x7000000, s{sXO}")
    for i in range(10):
        if u < 2 or u >= NDMA():
            a.e(f"s_add_u32 m0, s{6+ent(u)}, {1024*i}")
            a.e("s_nop 0")
            a.vmem(f"buffer_load_dwordx4 v{16+i}, {sq(r)}, s{sXO} offen sc1 lds", ("U", u))
        else:
            a.vmem(f"buffer_load_dwordx4 {vr(RC+40*((u-2)%5)+4*i,4)}, v{16+i}, {sq(r)}, s{sXO} offen sc1", ("U", u))

def relay_start(a, M, regs=False):
    nm = M.name
    srd(a, rA, pWS, 65536, add=hex(FL2_OFF))
    a.e(f"s_lshl_b32 s{sT2}, s{sG}, 3")
    a.e(f"s_add_u32 s{sT2}, s{sT2}, s{sM}")
    a.e(f"s_cmp_lt_u32 s{sHW}, 3")
    a.e(f"s_cbranch_scc1 L_rs_{nm}")
    a.e("s_mov_b32 s89, 0x7000000")
    srd(a, 80, pCRE, D * P * 2)
    a.e(f"s_mul_i32 s{sT0}, s{sT2}, 4736")
    if OPT.get("stch", 6) < 10: a.e(f"s_mov_b32 s{sT0}, 0x7000000")
    a.e("v_min_u32 v5, 36, v0")
    a.e("v_lshlrev_b32 v5, 7, v5")
    a.e(f"buffer_load_dword v31, v5, {sq(80)}, s{sT0} offen")
    if OPT.get("stch", 6) >= 10:
        a.e(f"s_mov_b32 s80, s{pCIM}")
        a.e(f"s_mov_b32 s81, s{pCIM+1}")
        a.e(f"buffer_load_dword v31, v5, {sq(80)}, s{sT0} offen")
    a.e(f"s_branch L_rs_{nm}x")
    a.lab(f"L_rs_{nm}")
    srd(a, 80, pW2, F * D * 2)
    a.e(f"s_lshl_b32 s{sT0}, s{sT2}, 1")
    a.e(f"s_add_u32 s{sT0}, s{sT0}, s{sHW}")
    a.e(f"s_add_u32 s{sT1}, s{sT2}, 352")
    a.e(f"s_cmp_eq_u32 s{sHW}, 2")
    a.e(f"s_cselect_b32 s{sT1}, s{sT1}, s{sT0}")
    a.e(f"s_min_u32 s{sT1}, s{sT1}, 480")
    a.e(f"s_cmp_ge_u32 s{sT1}, 432")
    a.e(f"s_cselect_b32 s{sT1}, 480, s{sT1}")
    a.e(f"s_lshr_b32 s{sT0}, s{sT1}, 3")
    a.e(f"s_and_b32 s87, s{sT1}, 7")
    a.e(f"s_lshr_b32 s88, s{sT0}, 1")
    a.e(f"s_mul_i32 s88, s88, 10240")
    a.e(f"s_and_b32 s{sT1}, s{sT0}, 1")
    a.e(f"s_lshl_b32 s{sT1}, s{sT1}, 10")
    a.e(f"s_add_u32 s88, s88, s{sT1}")
    a.e(f"s_lshl_b32 s89, s87, 6")
    a.e(f"s_add_u32 s89, s89, s{sT0}")
    a.e(f"s_lshl_b32 s89, s89, 7")
    a.e(f"s_mul_i32 s{sT1}, s{sT0}, 52")
    a.e(f"s_lshr_b32 s{sT1}, s{sT1}, 8")
    a.e(f"s_mul_i32 s{sT2}, s{sT1}, 5")
    a.e(f"s_sub_u32 s{sT2}, s{sT0}, s{sT2}")
    a.e(f"s_cmp_eq_u32 s{sT0}, 53")
    a.e(f"s_cselect_b32 s{sT2}, 4, s{sT2}")
    a.e(f"s_cselect_b32 s{sT5}, 48, 80")
    a.e(f"s_lshl_b32 s{sT3}, s{sT2}, 5")
    a.e(f"s_cmp_ge_u32 s{sT2}, 2")
    a.e(f"s_cselect_b32 s{sT4}, 16, 0")
    a.e(f"s_add_u32 s{sT3}, s{sT3}, s{sT4}")
    a.e(f"s_cmp_eq_u32 s{sT2}, 4")
    a.e(f"s_cselect_b32 s{sT3}, 64, s{sT3}")
    a.e(f"s_cselect_b32 s{sT4}, s{sT5}, 16")
    a.e(f"s_cselect_b32 s84, 3, 2")
    a.e(f"s_cselect_b32 s85, 4, 16")
    a.e(f"s_mul_i32 s{sT1}, s{sT1}, 160")
    a.e(f"s_add_u32 s{sT3}, s{sT3}, s{sT1}")
    a.e(f"s_sub_u32 s{sT4}, s{sT4}, 16")
    a.e(f"s_mul_i32 s{sT4}, s{sT4}, 1280")
    a.e(f"s_mul_i32 s86, s{sT3}, 1280")
    a.e(f"s_mul_i32 s{sT1}, s87, 160")
    a.e(f"s_add_u32 s86, s86, s{sT1}")
    a.e(f"v_mov_b32 v30, s{sT4}")
    for n in range(5):
        a.e(f"v_add_u32 v5, {64*n}, v0")
        a.e("v_mul_u32_u24 v6, 6554, v5")
        a.e("v_lshrrev_b32 v6, 16, v6")
        a.e("v_mul_u32_u24 v7, 10, v6")
        a.e("v_sub_u32 v7, v5, v7")
        a.e("v_cmp_lt_u32 vcc, 15, v6")
        a.e("v_mul_u32_u24 v6, 1280, v6")
        a.e("v_lshl_add_u32 v6, v7, 4, v6")
        a.e("v_cndmask_b32 v7, 0, v30, vcc")
        if not regs: a.e(f"s_add_u32 m0, s77, {2*M.slot+1024*n}")
        a.e("v_add_u32 v6, v6, v7")
        if regs: a.e(f"buffer_load_dwordx4 {vr(128+4*n,4)}, v6, {sq(80)}, s86 offen")
        else: a.e(f"buffer_load_dwordx4 v6, {sq(80)}, s86 offen lds")
    a.lab(f"L_rs_{nm}x")

def relay_finish(a, M, slot=2, regs=False, mid=None):
    nm = M.name
    a.e(f"s_cmp_eq_u32 s{sHW}, 3")
    a.e(f"s_cbranch_scc1 L_rf_{nm}")
    a.e("v_lshrrev_b32 v5, 4, v0")
    a.e("v_lshlrev_b32 v5, s84, v5")
    a.e("v_bfe_u32 v6, v0, 2, 2")
    a.e("v_add_u32 v5, v5, v6")
    a.e("v_add_u32 v6, s85, v5")
    a.e("v_and_b32 v7, 3, v0")
    a.e("v_lshlrev_b32 v7, 3, v7")
    a.e(f"s_add_u32 s{sT2}, s77, {slot*M.slot}")
    if regs:
        a.e(f"v_add_u32 v4, s{sT2}, v1")
        for n in range(5): a.e(f"ds_write_b128 v4, {vr(128+4*n,4)} offset:{1024*n}")
    a.e(f"v_add_u32 v7, s{sT2}, v7")
    a.e("v_mul_u32_u24 v5, 160, v5")
    a.e("v_mul_u32_u24 v6, 160, v6")
    a.e("v_add_u32 v5, v5, v7")
    a.e("v_add_u32 v6, v6, v7")
    for nt in range(5):
        a.e(f"ds_read_b64_tr_b16 {vr(96+4*nt,2)}, v5 offset:{32*nt}")
        a.e(f"ds_read_b64_tr_b16 {vr(98+4*nt,2)}, v6 offset:{32*nt}")
    a.e(f"s_mul_i32 s{sT4}, s87, {WB_SLAB}")
    a.e(f"s_add_u32 s{sT4}, s{sT4}, {hex(WB_OFF)}")
    srd(a, 80, pWS, WB_SLAB, add=f"s{sT4}")
    a.e(f"s_add_u32 s{sT0}, s88, 4096")
    a.e(f"s_add_u32 s{sT1}, s88, 8192")
    a.lab(f"L_rf_{nm}")
    mid()
    a.e(f"s_cmp_eq_u32 s{sHW}, 3")
    a.e(f"s_cbranch_scc1 L_rg_{nm}")
    a.e("s_waitcnt lgkmcnt(0)")
    for nt in range(5):
        so = (88, sT0, sT1)[nt >> 1]
        a.e(f"buffer_store_dwordx4 {vr(96+4*nt,4)}, v1, {sq(80)}, s{so} offen offset:{2048*(nt&1)} sc1")
    a.lab(f"L_rg_{nm}")

def wb_switch(a, tag, early=False):
    srd(a, rA, pWS, 65536, add=hex(FL2_OFF))
    a.e(f"s_mul_i32 s{sT4}, s{sNG}, {WB_SLAB}")
    a.e(f"s_add_u32 s{sT4}, s{sT4}, {hex(WB_OFF)}")
    srd(a, rX, pWS, WB_SLAB, add=f"s{sT4}")
    a.e(f"s_add_u32 s{sT4}, s{sT4}, 10240")
    srd(a, rW, pWS, WB_SLAB - 10240, add=f"s{sT4}")
    for i in range(10): a.e(f"v_add_u32 v{16+i}, {1024*i}, v1")
    a.e(f"s_mul_i32 s{sB0}, s{sHW}, {12*10240}")
    a.e(f"s_sub_u32 s{sB0}, s{sB0}, {20*10240}")
    a.e(f"s_lshr_b32 s{sT0}, s{sHW}, 1")
    a.e(f"s_mul_i32 s{sT0}, s{sT0}, 10240")
    a.e(f"s_sub_u32 s{sB0}, s{sB0}, s{sT0}")
    a.e(f"s_movk_i32 s{sSTEP}, 20480")
    a.e("v_min_u32 v11, 53, v0")
    a.e("v_lshlrev_b32 v11, 7, v11")
    a.e(f"s_lshl_b32 s{sT0}, s{sNG}, 13")
    a.e(f"s_mov_b32 s{sT2}, 0")
    if early:
        sv = list(a.vm)
        a.wait(vm=["fl"])
        a.vm = sv
        a.e(f"v_cmp_ne_u32 vcc, s{sTAG}, v47")
        a.e(f"s_cbranch_vccz L_f2ok{tag}")
        a.e("s_waitcnt vmcnt(0)")
        a.e("v_mov_b32 v253, 10")
        a.e("ds_write_b32 v15, v253 offset:32")
        a.e("s_waitcnt lgkmcnt(0)")
    a.lab(f"L_f2{tag}")
    a.e(f"buffer_load_dword v253, v11, {sq(rA)}, s{sT0} offen sc1")
    a.e("s_waitcnt vmcnt(0)")
    a.e(f"v_cmp_ne_u32 vcc, s{sTAG}, v253")
    a.e(f"s_cbranch_vccz L_f2ok{tag}")
    a.e(f"s_sleep {OPT.get('fsleep', 8)}")
    a.e(f"s_add_u32 s{sT2}, s{sT2}, 1")
    a.e(f"s_cmp_lt_u32 s{sT2}, 0x40000")
    a.e(f"s_cbranch_scc1 L_f2{tag}")
    a.lab(f"L_f2ok{tag}")

def ssm_exchange(a):
    M = SSM
    EL = M.scr
    X = 64; LP = 60
    a.e("s_setprio 2")
    a.e("v_lshlrev_b32 v3, 3, v0")
    a.e(f"v_add_u32 v3, {EL}, v3")
    a.e(f"s_cmp_eq_u32 s{sHW}, 3")
    a.e("s_cbranch_scc1 L_x_gather")
    a.e(f"ds_read_b64 {vr(LP,2)}, v3 offset:9728")
    a.e(f"v_mov_b32 v97, s{sTAG}")
    a.e(f"v_mov_b32 v99, s{sTAG}")
    stamp(a, 23)
    fre1_wait(a, 11, "L_x_s1")
    stamp(a, 24)
    a.lg = []
    for s in range(16):
        a.lds(f"ds_read_b64 {vr(X+2*s,2)}, v3 offset:{512*s}", ("E", s))
    for s in range(1, 16):
        a.wait(lg=[("E", s)])
        cfma(a, X + 2 * s, LP, X + 2 * (s - 1), X + 2 * s, 58)
    a.e(f"v_mov_b32 v96, v{X+30}")
    a.e(f"v_mov_b32 v98, v{X+31}")
    a.e(f"buffer_store_dwordx4 v[96:99], v1, {sq(rB)}, s79 offen sc1")
    stamp(a, 25)
    a.e("v_mov_b32 v58, 0")
    a.e("v_mov_b32 v59, 0")
    a.e("ds_write_b64 v3, v[58:59]")
    for s in range(1, 16):
        a.e(f"ds_write_b64 v3, {vr(X+2*(s-1),2)} offset:{512*s}")
    a.e("s_branch L_x_done")
    a.lab("L_x_gather")
    a.e(f"ds_read_b64 {vr(LP,2)}, v3 offset:10240")
    for i in range(1, 8):
        a.e(f"s_sub_u32 s{sT1}, s79, {1024*i}")
        a.e(f"s_cmp_ge_u32 s{sM}, {i}")
        a.e(f"s_cselect_b32 s{79+i}, s{sTAG}, 0")
        a.e(f"s_cselect_b32 s{17+i}, s{sT1}, 0x10000")
    G = 100
    a.e(f"s_mov_b32 s{sT1}, 0")
    stamp(a, 23)
    fre1_wait(a, 10, "L_x_s0")
    stamp(a, 24)
    a.lab("L_x_poll")
    for i in range(1, 8):
        a.e(f"buffer_load_dwordx4 {vr(G+4*(i-1),4)}, v1, {sq(rB)}, s{17+i} offen sc1")
    a.e("s_waitcnt vmcnt(0)")
    a.e("v_mov_b32 v58, 0")
    for i in range(1, 8):
        a.e(f"v_xor_b32 v59, s{79+i}, v{G+4*(i-1)+1}")
        a.e(f"v_xor_b32 v57, s{79+i}, v{G+4*(i-1)+3}")
        a.e("v_or3_b32 v58, v58, v59, v57")
    a.e("v_cmp_ne_u32 vcc, 0, v58")
    a.e("s_cbranch_vccz L_x_ok")
    a.e(f"s_sleep {OPT.get('xsl', 3)}")
    a.e(f"s_add_u32 s{sT1}, s{sT1}, 1")
    a.e(f"s_cmp_lt_u32 s{sT1}, 0x40000")
    a.e("s_cbranch_scc1 L_x_poll")
    a.lab("L_x_ok")
    stamp(a, 25)
    for i in range(1, 8):
        a.e(f"v_mov_b32 v{G+4*(i-1)+1}, v{G+4*(i-1)+2}")
    for i in range(6, 0, -1):
        cfma(a, G + 4 * (i - 1), LP, G + 4 * i, G + 4 * (i - 1), 58)
    a.e(f"ds_write_b64 v3, {vr(G,2)} offset:8192")
    a.lab("L_x_done")
    a.e("v_mov_b32 v253, 12")
    a.e("ds_write_b32 v15, v253 offset:32")
    stamp(a, 27)
    a.e("s_setprio 0")
    a.e("s_waitcnt lgkmcnt(0)")
    a.lg = []

def helper_p2(a):
    a.lab("L_h_p2")
    a.vm = [("U", u) for u in range(2, 7) for i in range(10)]
    a.lg = []
    fre1_wait(a, 10, "L_h_e4")
    for u in range(2, 12):
        if u == 11:
            a.e(f"s_cmp_eq_u32 s{sHW}, 1")
            a.e("s_cbranch_scc1 L_h_fin")
        lds_wait_ge(a, 15, 16, max(u - 2, 1), f"L_h_fre{u}", tmp=253)
        if u == 2: xr_finish(a)
        if u >= NDMA():
            p2_load(a, u)
            a.wait(vm=[("U", u)])
        else:
            a.wait(vm=[("U", u)])
            for i in range(0 if OPT.get("nodsw") else 10):
                a.e(f"ds_write_b128 v{248+ent(u)}, {vr(RC+40*((u-2)%5)+4*i,4)} offset:{1024*i}")
        a.e(f"v_mov_b32 v253, {u+1}")
        a.e("ds_write_b32 v15, v253")
        if u == 3:
            a.e(f"s_cmp_lg_u32 s{sHW}, 1")
            a.e("s_cbranch_scc1 L_h_nosw")
            wb_switch(a, "b")
            a.lab("L_h_nosw")
        if u + 5 < NDMA():
            a.e("s_waitcnt lgkmcnt(0)")
            p2_load(a, u + 5)
    a.lab("L_h_fin")
    stamp(a, 9)
    srd(a, rD, pOUT, L * D * 4)
    STt, XF, SK = 8, RC + 8, RC + 28
    a.e(f"s_or_b32 s{sT4}, s2, s{sHW}")
    a.e(f"s_cmp_lg_u32 s{sT4}, 0")
    a.e("s_cbranch_scc1 L_h_nonce")
    srd(a, rA, pWS, 131072, add=hex(DONE_OFF))
    a.e("v_and_b32 v5, 31, v0")
    a.e("v_lshlrev_b32 v5, 7, v5")
    a.e("v_lshrrev_b32 v6, 5, v0")
    a.e("v_lshl_add_u32 v5, v6, 14, v5")
    a.e(f"s_mov_b32 s{sT2}, 0")
    a.lab("L_h_np")
    for i in range(4):
        a.e(f"s_mov_b32 s{sT3}, {32768*i}")
        a.e(f"buffer_load_dword v{16+i}, v5, {sq(rA)}, s{sT3} offen sc1")
    a.e("s_waitcnt vmcnt(0)")
    for i in range(4): a.e(f"v_xor_b32 v{16+i}, s{sTAG}, v{16+i}")
    a.e("v_or3_b32 v16, v16, v17, v18")
    a.e("v_or_b32 v16, v16, v19")
    a.e("v_cmp_ne_u32 vcc, 0, v16")
    a.e("s_cbranch_vccz L_h_npok")
    a.e(f"s_add_u32 s{sT2}, s{sT2}, 1")
    a.e(f"s_cmp_lt_u32 s{sT2}, 0x40000")
    a.e("s_cbranch_scc1 L_h_np")
    a.lab("L_h_npok")
    srd(a, rA, pWS, 128, add=hex(NONCE_OFF))
    a.e(f"v_mov_b32 v16, s{sTAG}")
    a.e("v_lshlrev_b32 v5, 2, v0")
    a.e(f"buffer_store_dword v16, v5, {sq(rA)}, 0 offen sc1")
    a.lab("L_h_nonce")
    a.e(f"s_lshr_b32 s{sT0}, s{sHW}, 1")
    a.e(f"s_mul_i32 s{sT0}, s{sT0}, s{sPIT}")
    a.e(f"s_and_b32 s{sT1}, s{sHW}, 1")
    a.e(f"s_mul_i32 s{sT1}, s{sT1}, 5120")
    a.e(f"s_add_u32 s{sT0}, s{sT0}, s{sT1}")
    a.e(f"v_add_u32 v5, s{sT0}, v1")
    a.e(f"s_mul_i32 s{sT0}, s{sHW}, s{sPIT}")
    a.e(f"s_cmp_lt_u32 s{sGI}, 10")
    a.e(f"s_cselect_b32 s{sT1}, {147456-40960-5120}, 0")
    a.e(f"s_add_u32 s{sT1}, s{sT1}, 5120")
    a.e(f"s_cmp_eq_u32 s{sHW}, 3")
    a.e(f"s_cselect_b32 s{sT0}, s{sT1}, s{sT0}")
    a.e(f"s_add_u32 s{sT0}, s{sT0}, 40960")
    a.e(f"v_add_u32 v6, s{sT0}, v1")
    a.e(f"s_mov_b32 s{sT2}, 0xffff0000")
    a.e(f"s_mov_b32 s{sT0}, {hex(f2u(-1.4426950408889634))}")
    a.e("s_waitcnt vmcnt(0) lgkmcnt(0)")
    for i in range(10):
        a.e(f"v_lshlrev_b32 v{XF+2*i}, 16, v{XR+i}")
        a.e(f"v_and_b32 v{XF+2*i+1}, s{sT2}, v{XR+i}")
        t = SK + 2 * i
        for h in range(2): a.e(f"v_sub_f32 v{t+h}, v{XF+2*i+h}, v8")
        a.e(f"v_cvt_pk_bf16_f32 v{t+1}, v{t}, v{t+1}")
        a.e(f"v_lshlrev_b32 v{t}, 16, v{t+1}")
        a.e(f"v_and_b32 v{t+1}, s{sT2}, v{t+1}")
        for h in range(2): a.e(f"v_mul_f32 v{t+h}, v{t+h}, v9")
        a.e(f"v_cvt_pk_bf16_f32 v{t+1}, v{t}, v{t+1}")
        a.e(f"v_lshlrev_b32 v{t}, 16, v{t+1}")
        a.e(f"v_and_b32 v{t+1}, s{sT2}, v{t+1}")
        a.e(f"v_lshlrev_b32 v{RC+4}, 16, v{DR+i}")
        a.e(f"v_and_b32 v{RC+5}, s{sT2}, v{DR+i}")
        for h in range(2): a.e(f"v_mul_f32 v{t+h}, v{t+h}, v{RC+4+h}")
        a.e(f"v_cvt_pk_bf16_f32 v{t+1}, v{t}, v{t+1}")
        a.e(f"v_lshlrev_b32 v{t}, 16, v{t+1}")
        a.e(f"v_and_b32 v{t+1}, s{sT2}, v{t+1}")
    stamp(a, 10)
    a.bar()
    RB = 96
    a.lg = []
    for nt in range(5):
        b = RB + 20 * nt
        for w in (1, 2, 3, 0):
            a.lds(f"ds_read_b128 {vr(b+4*w,4)}, v5 offset:{10240*w+1024*nt}", ("r", nt))
        a.lds(f"ds_read_b128 {vr(b+16,4)}, v6 offset:{1024*nt}", ("r", nt))
    for nt in range(5):
        a.wait(lg=[("r", nt)])
        b = RB + 20 * nt
        y, o, t = b, b + 4, b + 8
        for h in range(2):
            a.e(f"v_pk_add_f32 {vr(o+2*h,2)}, {vr(o+2*h,2)}, {vr(b+8+2*h,2)}")
            a.e(f"v_pk_add_f32 {vr(y+2*h,2)}, {vr(y+2*h,2)}, {vr(b+16+2*h,2)}")
        for h in range(2):
            a.e(f"v_pk_add_f32 {vr(o+2*h,2)}, {vr(o+2*h,2)}, {vr(b+12+2*h,2)}")
            a.e(f"v_pk_add_f32 {vr(y+2*h,2)}, {vr(y+2*h,2)}, {vr(SK+4*nt+2*h,2)}")
        for h in range(2):
            a.e(f"v_pk_mul_f32 {vr(t+2*h,2)}, {vr(o+2*h,2)}, s[{sT0}:{sT1}] op_sel_hi:[1,0]")
        for r in range(4): a.e(f"v_exp_f32 v{t+r}, v{t+r}")
        for h in range(2):
            a.e(f"v_pk_mul_f32 {vr(y+2*h,2)}, {vr(y+2*h,2)}, {vr(o+2*h,2)}")
        for h in range(2):
            a.e(f"v_pk_add_f32 {vr(t+2*h,2)}, {vr(t+2*h,2)}, 1.0 op_sel_hi:[1,0]")
        for r in range(4): a.e(f"v_rcp_f32 v{t+r}, v{t+r}")
        a.e("s_nop 0")
        for h in range(2):
            a.e(f"v_pk_fma_f32 {vr(y+2*h,2)}, {vr(y+2*h,2)}, {vr(t+2*h,2)}, {vr(XF+4*nt+2*h,2)}")
        fl = {0: " sc1", 1: "", 2: " nt", 3: " sc1 nt"}[OPT.get("ofl", 0)]
        if OPT.get("fake"):
            a.e(f"v_add_u32 v4, {64*nt}, v0")
            a.e("v_mul_u32_u24 v5, 3277, v4")
            a.e("v_lshrrev_b32 v5, 16, v5")
            a.e("v_mul_u32_u24 v5, 2240, v5")
            a.e("v_lshl_add_u32 v5, v4, 4, v5")
            a.e(f"buffer_store_dwordx4 {vr(y,4)}, v5, {sq(rD)}, s77 offen{fl}")
        else:
            a.e(f"buffer_store_dwordx4 {vr(y,4)}, v14, {sq(rD)}, s77 offen offset:{64*nt}{fl}")
    if OPT.get("drain"): a.e("s_waitcnt vmcnt(0)")
    stamp(a, 11)
    stamp_flush(a)
    a.lab("L_done")
    a.e("s_endpgm")
    a.lab("L_end")

KD = f""".section .rodata,"a"
.p2align 6
.amdhsa_kernel {NAME}
  .amdhsa_next_free_vgpr 256
  .amdhsa_next_free_sgpr 100
  .amdhsa_accum_offset 256
  .amdhsa_group_segment_fixed_size 0
  .amdhsa_kernarg_size 128
  .amdhsa_user_sgpr_count 2
  .amdhsa_user_sgpr_kernarg_segment_ptr 1
  .amdhsa_system_sgpr_workgroup_id_x 1
  .amdhsa_float_denorm_mode_32 3
.end_amdhsa_kernel
"""
HEADER = open("recurrent_scan__ssm_conv_s5__glu_gated_swiglu__prompt.s.ref").read().split("; Override")[0]

def build(path):
    a = Asm()
    prologue(a)
    a.e(f"s_cmp_ge_u32 s{sGI}, 10")
    a.e("s_cbranch_scc1 L_c_nossm")
    regs = compute_ssm(a)
    a.lab("L_c_nossm")
    roles(a)
    a.e(f"s_cmp_lt_u32 s{sGI}, 10")
    a.e("s_cbranch_scc1 L_c_ssm")
    b0 = a.nbar; compute_ffn(a); nf = a.nbar - b0
    b0 = a.nbar; compute_p2(a); n2 = a.nbar - b0
    a.lab("L_c_ssm"); a.reset()
    b0 = a.nbar; compute_ssm2(a, regs); ns = a.nbar - b0
    a.e("s_branch L_p2")
    slow_paths(a)
    a.lab("L_helper"); a.reset()
    if OPT.get("hprio"): a.e(f"s_setprio {OPT['hprio']}")
    a.e(f"s_cmp_lt_u32 s{sGI}, 10")
    a.e("s_cbranch_scc1 L_h_ssm")
    b0 = a.nbar; helper(a, FFN); hf = a.nbar - b0
    a.lab("L_h_ssm"); a.reset()
    b0 = a.nbar; helper(a, SSM); hs = a.nbar - b0
    b0 = a.nbar; helper_p2(a); h2 = a.nbar - b0
    assert nf + n2 == hf + h2 and ns + n2 == hs + h2, (nf, ns, n2, hf, hs, h2)
    s = HEADER + f"; @launch grid=(256,1,1) block=(512,1,1) lds={LDS_BYTES}\n"
    s += '.amdgcn_target "amdgcn-amd-amdhsa--gfx950"\n.text\n' + a.text() + KD
    open(path, "w").write(s)
    print("pk nops inserted:", a.npk)

if __name__ == "__main__":
    out = sys.argv[1] if len(sys.argv) > 1 and not sys.argv[1].startswith("--") else "recurrent_scan__ssm_conv_s5__glu_gated_swiglu__prompt.s"
    if "--stamps" in sys.argv: STAMPS = True
    for x in sys.argv[1:]:
        if x.startswith("--opt="):
            for kv in x[6:].split(","):
                k, _, v = kv.partition("=")
                OPT[k] = int(v) if v else 1
    build(out)
```

```python
import sys, struct

NAME = "recurrent_scan__ssm_conv_s5__glu_gated_swiglu__prompt_kernel"
L, D, P, F = 2048, 640, 640, 1728
HA_OFF = 0x0
HA_SLAB = 94 * 4096
WB_OFF = 0xC00000
WB_SLAB = 27 * 10240
ST1_OFF = 0xF00000
AGG_OFF = 0xF20000
DONE_OFF = 0xF40000
FL2_OFF = 0xF60000
NONCE_OFF = 0xF80000
CS_OFF = 0x1000000
STAMP_OFF = 0x1200000
sTAG = 66
LDS_BYTES = 163840
STAMPS = False
OPT = {}

def f2u(x):
    return struct.unpack("<I", struct.pack("<f", x))[0]
def u2f(u):
    return struct.unpack("<f", struct.pack("<I", u))[0]

class Asm:
    def __init__(self):
        self.l = []; self.vm = []; self.lg = []; self.nbar = 0
    def e(self, s): self.l.append("    " + s)
    def lab(self, s): self.l.append(s + ":")
    def vmem(self, s, tag=None): self.e(s); self.vm.append(tag)
    def lds(self, s, tag=None): self.e(s); self.lg.append(tag)
    def bar(self): self.e("s_barrier"); self.nbar += 1
    def reset(self): self.vm = []; self.lg = []
    @staticmethod
    def _need(q, tags):
        idx = -1
        for i, t in enumerate(q):
            if t in tags: idx = i
        return idx
    def wait(self, vm=None, lg=None, vm_all=False, lg_all=False):
        parts = []
        i = len(self.vm) - 1 if vm_all else self._need(self.vm, vm or [])
        if i >= 0:
            n = min(len(self.vm) - 1 - i, 63)
            parts.append(f"vmcnt({n})")
            self.vm = self.vm[len(self.vm) - n:] if n else []
        i = len(self.lg) - 1 if lg_all else self._need(self.lg, lg or [])
        if i >= 0:
            n = min(len(self.lg) - 1 - i, 15)
            parts.append(f"lgkmcnt({n})")
            self.lg = self.lg[len(self.lg) - n:] if n else []
        if parts: self.e("s_waitcnt " + " ".join(parts))
    def text(self):
        import re
        def regs(tok):
            out = set()
            for m in re.finditer(r"v\[(\d+):(\d+)\]|v(\d+)", tok):
                if m.group(3): out.add(int(m.group(3)))
                else: out.update(range(int(m.group(1)), int(m.group(2)) + 1))
            return out
        out = []; prev = None; self.npk = 0
        for l in self.l:
            t = l.strip()
            if l.startswith("    "):
                if prev is not None and t.startswith("v_") and prev & regs(t.partition(" ")[2]):
                    out.append("    s_nop 0"); self.npk += 1
                prev = regs(t.partition(" ")[2].split(",")[0]) if t.startswith("v_pk_") else None
            out.append(l)
        return "\n".join(out) + "\n"

def vr(b, n=1): return f"v{b}" if n == 1 else f"v[{b}:{b+n-1}]"
def sq(b): return f"s[{b}:{b+3}]"

def srd(a, d, lo, nbytes, add=None):
    if add is None:
        a.e(f"s_mov_b32 s{d}, s{lo}"); a.e(f"s_mov_b32 s{d+1}, s{lo+1}")
    else:
        a.e(f"s_add_u32 s{d}, s{lo}, {add}"); a.e(f"s_addc_u32 s{d+1}, s{lo+1}, 0")
    a.e(f"s_mov_b32 s{d+2}, {nbytes}")
    a.e(f"s_mov_b32 s{d+3}, 0x00020000")

pX, pLRE, pLIM, pBRE, pBIM, pCRE, pCIM, pLDT, pDSK, pBX, pW1, pW3, pW2, pOUT, pDBG, pWS = range(4, 36, 2)
rX, rW, rA, rB, rC, rD = 36, 40, 44, 48, 52, 56
sM, sGI, sG, sMT, sNG, sHW = 60, 61, 62, 63, 64, 65
sT0, sT1, sT2, sT3, sT4, sT5 = 68, 69, 70, 71, 72, 73
sXO, sWO, sLB = 74, 75, 76
SV = 255

def stamp(a, slot):
    if not STAMPS: return
    if OPT.get("minst") and slot not in (0, 11): return
    a.e("s_memrealtime s[96:97]")
    a.e("s_memtime s[98:99]")
    a.e("s_waitcnt lgkmcnt(0)")
    a.e(f"v_writelane_b32 v{SV}, s96, {slot}")
    a.e(f"v_writelane_b32 v{SV}, s98, {slot+32}")
    a.lg = []
def stamp_flush(a):
    if not STAMPS: return
    if OPT.get("dbgout"):
        lab = f"L_dbg{len(a.l)}"
        a.e("s_cmp_lg_u32 s3, 0")
        a.e(f"s_cbranch_scc1 {lab}")
        srd(a, 92, pDBG, 256)
        a.e(f"v_readlane_b32 s98, v{SV}, 0")
        a.e("s_not_b32 s98, s98")
        a.e(f"v_writelane_b32 v{SV}, s98, 12")
        a.e(f"v_lshlrev_b32 v{SV-1}, 2, v0")
        a.e("s_mov_b64 exec, 0x1f07")
        a.e(f"buffer_atomic_umax v{SV}, v{SV-1}, s[92:95], 0 offen")
        a.lab(lab)
        return
    srd(a, 92, pWS, 1 << 20, add=hex(STAMP_OFF))
    a.e("s_lshl_b32 s98, s2, 3")
    a.e("s_add_u32 s98, s98, s3")
    a.e("s_lshl_b32 s98, s98, 8")
    a.e(f"v_lshlrev_b32 v{SV-1}, 2, v0")
    a.e(f"buffer_store_dword v{SV}, v{SV-1}, s[92:95], s98 offen")

def cmul(a, d, x, y, t):
    a.e(f"v_pk_mul_f32 {vr(t,2)}, {vr(x,2)}, {vr(y,2)} op_sel:[0,0] op_sel_hi:[0,1]")
    a.e(f"v_pk_fma_f32 {vr(d,2)}, {vr(x,2)}, {vr(y,2)}, {vr(t,2)} op_sel:[1,1,0] op_sel_hi:[1,0,1] neg_lo:[1,0,0]")
def cfma(a, d, x, y, z, t):
    a.e(f"v_pk_fma_f32 {vr(t,2)}, {vr(x,2)}, {vr(y,2)}, {vr(z,2)} op_sel:[0,0,0] op_sel_hi:[0,1,1]")
    a.e(f"v_pk_fma_f32 {vr(d,2)}, {vr(x,2)}, {vr(y,2)}, {vr(t,2)} op_sel:[1,1,0] op_sel_hi:[1,0,1] neg_lo:[1,0,0]")

class Map: pass
FFN = Map(); FFN.name = "ffn"; FFN.slot = 53248; FFN.woff = 32768; FFN.nfr = 10
FFN.tab_st = 159744; FFN.tab_cs = 159744 + 2048
SSM = Map(); SSM.name = "ssm"; SSM.slot = 49152; SSM.woff = 32768; SSM.nfr = 8
SSM.scr = 147456
SSM.tab_rs = 147456 + 14336 - 0
SSM.tab_rs = 161792 - 0
SSM.tab_mr = 161792 + 1024
SSM.tab_cs = 147456 + 8704
sPIT = 90
sSYN = 91
FFN.syn = 159744 + 3072
SSM.syn = 147456 + 10752
SSM.kscr = 2 * SSM.slot
def ent(u): return (u % 3 + 1) % 3

def prologue(a):
    a.l.append(f".globl {NAME}"); a.l.append(".p2align 8"); a.l.append(f".type {NAME},@function")
    a.lab(NAME)
    a.e("s_cmp_ge_u32 s2, 256")
    a.e("s_cbranch_scc1 L_done")
    a.e("s_load_dwordx16 s[4:19], s[0:1], 0")
    a.e("s_load_dwordx16 s[20:35], s[0:1], 64")
    a.e("v_lshrrev_b32 v1, 6, v0")
    a.e("v_and_b32 v0, 63, v0")
    a.e("v_readfirstlane_b32 s3, v1")
    if OPT.get("scramble"):
        a.e(f"s_lshr_b32 s{sT0}, s2, 5")
        a.e(f"s_and_b32 s{sT1}, s2, 31")
    else:
        a.e(f"s_and_b32 s{sT0}, s2, 7")
        a.e(f"s_lshr_b32 s{sT1}, s2, 3")
    a.e(f"s_and_b32 s{sM}, s{sT0}, 1")
    a.e(f"s_lshl_b32 s{sM}, s{sM}, 2")
    a.e(f"s_and_b32 s{sT2}, s{sT1}, 3")
    a.e(f"s_add_u32 s{sM}, s{sM}, s{sT2}")
    a.e(f"s_lshr_b32 s{sT2}, s{sT0}, 1")
    a.e(f"s_lshr_b32 s{sT3}, s{sT1}, 2")
    a.e(f"s_lshl_b32 s{sMT}, s{sT2}, 3")
    a.e(f"s_and_b32 s{sT4}, s{sT1}, 7")
    a.e(f"s_add_u32 s{sMT}, s{sMT}, s{sT4}")
    a.e(f"s_and_b32 s{sNG}, s{sT0}, 1")
    a.e(f"s_lshl_b32 s{sNG}, s{sNG}, 2")
    a.e(f"s_lshr_b32 s{sT4}, s{sT1}, 3")
    a.e(f"s_add_u32 s{sNG}, s{sNG}, s{sT4}")
    if OPT.get("map2"):
        a.e(f"s_lshl_b32 s{sMT}, s{sT0}, 2")
        a.e(f"s_and_b32 s{sT4}, s{sT1}, 3")
        a.e(f"s_add_u32 s{sMT}, s{sMT}, s{sT4}")
        a.e(f"s_lshr_b32 s{sNG}, s{sT1}, 2")
    a.e(f"s_mul_i32 s{sT4}, s{sT2}, 3")
    a.e(f"s_lshl_b32 s{sT5}, s{sT2}, 1")
    a.e(f"s_add_u32 s{sT5}, s{sT5}, 2")
    a.e(f"s_cmp_lt_u32 s{sT2}, 2")
    a.e(f"s_cselect_b32 s{sT4}, s{sT4}, s{sT5}")
    a.e(f"s_cselect_b32 s{sT5}, 3, 2")
    a.e(f"s_lshl_b32 s{sT0}, s{sT2}, 3")
    a.e(f"s_sub_u32 s{sT0}, s{sT0}, s{sT4}")
    a.e(f"s_add_u32 s{sT0}, s{sT0}, s{sT3}")
    a.e(f"s_sub_u32 s{sT0}, s{sT0}, s{sT5}")
    a.e(f"s_add_u32 s{sT0}, s{sT0}, 10")
    a.e(f"s_add_u32 s{sT4}, s{sT4}, s{sT3}")
    a.e(f"s_cmp_lt_u32 s{sT3}, s{sT5}")
    a.e(f"s_cselect_b32 s{sGI}, s{sT4}, s{sT0}")
    a.e(f"s_cselect_b32 s{sPIT}, {SSM.slot >> 12}, {FFN.slot >> 12}")
    a.e(f"s_cselect_b32 s{sSYN}, {(FFN.syn - SSM.syn)}, 0")
    a.e(f"s_sub_u32 s{sSYN}, {FFN.syn}, s{sSYN}")
    a.e(f"s_lshl_b32 s{sPIT}, s{sPIT}, 12")
    a.e(f"s_and_b32 s{sHW}, s3, 3")
    a.e("s_mov_b32 s67, 0")
    a.e("v_lshlrev_b32 v1, 4, v0")
    a.e("s_waitcnt lgkmcnt(0)")
    stamp(a, 0)
    a.e(f"s_add_u32 s{sT0}, s{pWS}, {hex(NONCE_OFF)}")
    a.e(f"s_addc_u32 s{sT1}, s{pWS+1}, 0")
    a.e(f"s_load_dword s{sTAG}, s[{sT0}:{sT1}], 0")
    a.e("s_cmp_ge_u32 s3, 4")
    a.e("s_cbranch_scc1 L_helper")

def roles(a):
    a.e("s_mov_b32 s89, 0x7000000")
    a.e("s_cmp_ge_u32 s3, 2")
    a.e("s_cbranch_scc1 L_relay")
    srd(a, rX, pX, L * D * 2)
    a.e(f"s_lshl_b32 s{sT0}, s{sM}, 8")
    a.e(f"s_lshl_b32 s{sT1}, s{sGI}, 3")
    a.e(f"s_add_u32 s{sT0}, s{sT0}, s{sT1}")
    a.e(f"s_lshl_b32 s{sT1}, s3, 2")
    a.e(f"s_add_u32 s{sT0}, s{sT0}, s{sT1}")
    a.e(f"s_mul_i32 s{sT1}, s{sT0}, 1280")
    a.e("v_lshrrev_b32 v2, 4, v0")
    a.e("v_and_b32 v3, 15, v0")
    a.e("v_mul_u32_u24 v4, 1280, v2")
    a.e("v_lshl_add_u32 v4, v3, 4, v4")
    for n in range(5):
        a.vmem(f"buffer_load_dwordx4 {vr(8+4*n,4)}, v4, {sq(rX)}, s{sT1} offen offset:{256*n}", ("x", n))
    srd(a, rA, pWS, 65536, add=hex(ST1_OFF))
    a.e(f"s_lshl_b32 s{sT0}, s{sT0}, 5")
    a.e("v_lshlrev_b32 v5, 5, v2")
    a.e("v_lshl_add_u32 v5, v3, 4, v5")
    a.e(f"s_mov_b32 s{sT2}, 0xffff0000")
    FB = 32
    for n in range(5):
        a.wait(vm=[("x", n)])
        for i in range(4):
            s = 8 + 4 * n + i; d = FB + 2 * (4 * n + i)
            a.e(f"v_lshlrev_b32 v{d}, 16, v{s}")
            a.e(f"v_and_b32 v{d+1}, s{sT2}, v{s}")
    a.e(f"v_pk_add_f32 v[72:73], {vr(FB,2)}, {vr(FB+2,2)}")
    a.e(f"v_pk_add_f32 v[74:75], {vr(FB+4,2)}, {vr(FB+6,2)}")
    for i in range(4, 20):
        t = 72 + 2 * (i & 1)
        a.e(f"v_pk_add_f32 {vr(t,2)}, {vr(t,2)}, {vr(FB+2*i,2)}")
    a.e("v_pk_add_f32 v[72:73], v[72:73], v[74:75]")
    a.e("v_add_f32 v72, v72, v73")
    def red16(r):
        for m in ("quad_perm:[1,0,3,2]", "quad_perm:[2,3,0,1]", "row_half_mirror", "row_mirror"):
            a.e("s_nop 1")
            a.e(f"v_add_f32_dpp v{r}, v{r}, v{r} {m} row_mask:0xf bank_mask:0xf")
    red16(72)
    a.e(f"v_mul_f32 v72, {hex(f2u(1.0/640))}, v72")
    a.e("v_cvt_pk_bf16_f32 v74, v72, v72")
    a.e("v_lshlrev_b32 v74, 16, v74")
    a.e("v_sub_f32 v73, v72, v74")
    for i in range(20):
        a.e(f"v_pk_add_f32 {vr(FB+2*i,2)}, {vr(FB+2*i,2)}, v[74:75] op_sel_hi:[1,0] neg_lo:[0,1] neg_hi:[0,1]")
    a.e(f"v_pk_mul_f32 v[76:77], {vr(FB,2)}, {vr(FB,2)}")
    a.e(f"v_pk_mul_f32 v[78:79], {vr(FB+2,2)}, {vr(FB+2,2)}")
    for i in range(2, 20):
        t = 76 + 2 * (i & 1)
        a.e(f"v_pk_fma_f32 {vr(t,2)}, {vr(FB+2*i,2)}, {vr(FB+2*i,2)}, {vr(t,2)}")
    a.e("v_pk_add_f32 v[76:77], v[76:77], v[78:79]")
    a.e("v_add_f32 v76, v76, v77")
    red16(76)
    a.e(f"v_mul_f32 v76, {hex(f2u(1.0/640))}, v76")
    a.e("v_fma_f32 v76, -v73, v73, v76")
    a.e("v_max_f32 v76, 0, v76")
    a.e("v_cvt_pk_bf16_f32 v76, v76, v76")
    a.e("v_lshlrev_b32 v76, 16, v76")
    a.e(f"v_add_f32 v76, {hex(f2u(1e-5))}, v76")
    a.e("v_cvt_pk_bf16_f32 v76, v76, v76")
    a.e("v_lshlrev_b32 v76, 16, v76")
    a.e("v_sqrt_f32 v76, v76")
    a.e("s_nop 0")
    a.e("v_cvt_pk_bf16_f32 v76, v76, v76")
    a.e("v_lshlrev_b32 v76, 16, v76")
    a.e("s_waitcnt lgkmcnt(0)")
    a.e(f"s_add_u32 s{sT1}, s{sTAG}, 0x9E3779B1")
    a.e(f"v_mov_b32 v75, s{sT1}")
    a.e(f"v_mov_b32 v77, s{sT1}")
    a.e("v_cmp_gt_u32 vcc, 2, v3")
    a.e(f"s_and_saveexec_b64 s[{sT2}:{sT3}], vcc")
    a.e(f"buffer_store_dwordx4 v[74:77], v5, {sq(rA)}, s{sT0} offen sc1")
    a.e(f"s_mov_b64 exec, s[{sT2}:{sT3}]")
    a.e("s_branch L_roles_done")
    a.lab("L_relay")
    a.e(f"s_cmp_lt_u32 s{sGI}, 10")
    a.e("s_cbranch_scc1 L_tssm")
    a.e("s_cmp_eq_u32 s3, 2")
    a.e(f"s_cselect_b32 s{rX}, s{pW1}, s{pW3}")
    a.e(f"s_cselect_b32 s{rX+1}, s{pW1+1}, s{pW3+1}")
    a.e(f"s_mov_b32 s{rX+2}, {D*F*2}")
    a.e(f"s_mov_b32 s{rX+3}, 0x00020000")
    a.e(f"s_sub_u32 s{sT0}, s{sGI}, 10")
    a.e(f"s_mul_i32 s{sT0}, s{sT0}, 160")
    a.e(f"s_min_u32 s{sT0}, s{sT0}, 3296")
    NT0 = OPT.get("nt0", 3 if OPT.get("s2f", 0) else 2)
    a.e(f"s_mul_i32 s{sT1}, s{sM}, {8*NT0*3456}")
    a.e(f"s_add_u32 s{sT0}, s{sT0}, s{sT1}")
    a.e("v_lshrrev_b32 v2, 1, v0")
    a.e(f"v_min_u32 v2, {8*NT0-1}, v2")
    a.e("v_mul_u32_u24 v2, 3456, v2")
    a.e("v_and_b32 v3, 1, v0")
    a.e("v_mul_u32_u24 v3, 156, v3")
    a.e("v_add_u32 v2, v2, v3")
    a.e("s_branch L_tgo")
    a.lab("L_tssm")
    a.e("s_cmp_eq_u32 s3, 2")
    a.e(f"s_cselect_b32 s{rX}, s{pBRE}, s{pBIM}")
    a.e(f"s_cselect_b32 s{rX+1}, s{pBRE+1}, s{pBIM+1}")
    a.e(f"s_mov_b32 s{rX+2}, {P*D*2}")
    a.e(f"s_mov_b32 s{rX+3}, 0x00020000")
    a.e(f"s_lshl_b32 s{sT0}, s{sGI}, 3")
    a.e(f"s_add_u32 s{sT0}, s{sT0}, s{sM}")
    a.e(f"s_mul_i32 s{sT0}, s{sT0}, {8*1280}")
    a.e("v_bfe_u32 v2, v0, 2, 3")
    a.e("v_mul_u32_u24 v2, 1280, v2")
    a.e("v_and_b32 v3, 3, v0")
    a.e(f"v_min_u32 v3, {NT0-1}, v3")
    a.e("v_lshl_add_u32 v2, v3, 7, v2")
    a.lab("L_tgo")
    a.e(f"buffer_load_dword v4, v2, {sq(rX)}, s{sT0} offen")
    if OPT.get("rel0", 2) == 1:
        srd(a, rX, pW2, F * D * 2)
        a.e(f"s_lshl_b32 s{sT0}, s{sMT}, 1")
        a.e(f"s_and_b32 s{sT1}, s3, 1")
        a.e(f"s_add_u32 s{sT0}, s{sT0}, s{sT1}")
        a.e(f"s_mul_i32 s88, s{sMT}, 10240")
        a.e(f"s_lshl_b32 s{sT1}, s{sT1}, 10")
        a.e(f"s_add_u32 s88, s88, s{sT1}")
        a.e(f"s_lshl_b32 s89, s{sNG}, 6")
        a.e(f"s_add_u32 s89, s89, s{sT0}")
        a.e(f"s_lshl_b32 s89, s89, 7")
        a.e(f"s_mul_i32 s{sT1}, s{sT0}, 52")
        a.e(f"s_lshr_b32 s{sT1}, s{sT1}, 8")
        a.e(f"s_mul_i32 s{sT2}, s{sT1}, 5")
        a.e(f"s_sub_u32 s{sT2}, s{sT0}, s{sT2}")
        a.e(f"s_cmp_eq_u32 s{sT0}, 53")
        a.e(f"s_cselect_b32 s{sT2}, 4, s{sT2}")
        a.e(f"s_cselect_b32 s{sT5}, 48, 80")
        a.e(f"s_lshl_b32 s{sT3}, s{sT2}, 5")
        a.e(f"s_cmp_ge_u32 s{sT2}, 2")
        a.e(f"s_cselect_b32 s{sT4}, 16, 0")
        a.e(f"s_add_u32 s{sT3}, s{sT3}, s{sT4}")
        a.e(f"s_cmp_eq_u32 s{sT2}, 4")
        a.e(f"s_cselect_b32 s{sT3}, 64, s{sT3}")
        a.e(f"s_cselect_b32 s{sT4}, s{sT5}, 16")
        a.e(f"s_cselect_b32 s80, 3, 2")
        a.e(f"s_cselect_b32 s81, 4, 16")
        a.e(f"s_mul_i32 s{sT1}, s{sT1}, 160")
        a.e(f"s_add_u32 s{sT3}, s{sT3}, s{sT1}")
        a.e(f"s_sub_u32 s{sT4}, s{sT4}, 16")
        a.e(f"s_mul_i32 s{sT4}, s{sT4}, 1280")
        a.e(f"s_mul_i32 s{sXO}, s{sT3}, 1280")
        a.e(f"s_mul_i32 s{sT1}, s{sNG}, 160")
        a.e(f"s_add_u32 s{sXO}, s{sXO}, s{sT1}")
        a.e(f"v_mov_b32 v8, s{sT4}")
        RL = 2 * FFN.slot + 8192
        a.e(f"s_mul_i32 s{sT2}, s3, 5120")
        a.e(f"s_add_u32 s{sT2}, s{sT2}, {RL - 10240}")
        for n in range(5):
            a.e(f"v_add_u32 v5, {64*n}, v0")
            a.e("v_mul_u32_u24 v6, 6554, v5")
            a.e("v_lshrrev_b32 v6, 16, v6")
            a.e("v_mul_u32_u24 v7, 10, v6")
            a.e("v_sub_u32 v7, v5, v7")
            a.e("v_cmp_lt_u32 vcc, 15, v6")
            a.e("v_mul_u32_u24 v6, 1280, v6")
            a.e("v_lshl_add_u32 v6, v7, 4, v6")
            a.e("v_cndmask_b32 v7, 0, v8, vcc")
            a.e(f"s_add_u32 m0, s{sT2}, {1024*n}")
            a.e("v_add_u32 v6, v6, v7")
            a.e(f"buffer_load_dwordx4 v6, {sq(rX)}, s{sXO} offen lds")
        a.e("s_cmp_eq_u32 s3, 2")
        a.e(f"s_cselect_b32 s{rA}, s{pCRE}, s{pCIM}")
        a.e(f"s_cselect_b32 s{rA+1}, s{pCRE+1}, s{pCIM+1}")
        a.e(f"s_mov_b32 s{rA+2}, {D*P*2}")
        a.e(f"s_mov_b32 s{rA+3}, 0x00020000")
        a.e(f"s_mul_i32 s{sT0}, s2, 3200")
        a.e("v_min_u32 v9, 24, v0")
        a.e("v_lshlrev_b32 v9, 7, v9")
        a.e(f"buffer_load_dword v10, v9, {sq(rA)}, s{sT0} offen")
        a.e("v_lshrrev_b32 v5, 4, v0")
        a.e("v_lshlrev_b32 v5, s80, v5")
        a.e("v_bfe_u32 v6, v0, 2, 2")
        a.e("v_add_u32 v5, v5, v6")
        a.e("v_add_u32 v6, s81, v5")
        a.e("v_and_b32 v7, 3, v0")
        a.e("v_lshlrev_b32 v7, 3, v7")
        a.e(f"v_add_u32 v7, s{sT2}, v7")
        a.e("v_mul_u32_u24 v5, 160, v5")
        a.e("v_mul_u32_u24 v6, 160, v6")
        a.e("v_add_u32 v5, v5, v7")
        a.e("v_add_u32 v6, v6, v7")
        a.e(f"s_mul_i32 s{sT4}, s{sNG}, {WB_SLAB}")
        a.e(f"s_add_u32 s{sT4}, s{sT4}, {hex(WB_OFF)}")
        srd(a, rW, pWS, WB_SLAB, add=f"s{sT4}")
        a.e(f"s_add_u32 s{sT0}, s88, 4096")
        a.e(f"s_add_u32 s{sT1}, s88, 8192")
        a.e("s_waitcnt vmcnt(0)")
        for nt in range(5):
            a.e(f"ds_read_b64_tr_b16 {vr(16+4*nt,2)}, v5 offset:{32*nt}")
            a.e(f"ds_read_b64_tr_b16 {vr(18+4*nt,2)}, v6 offset:{32*nt}")
        a.e("s_waitcnt lgkmcnt(0)")
        for nt in range(5):
            so = (88, sT0, sT1)[nt >> 1]
            a.e(f"buffer_store_dwordx4 {vr(16+4*nt,4)}, v1, {sq(rW)}, s{so} offen offset:{2048*(nt&1)} sc1")
    else:
        a.e("s_waitcnt vmcnt(0)")
    a.lab("L_roles_done")
    a.e("s_waitcnt lgkmcnt(0)")
    a.e(f"s_add_u32 s{sTAG}, s{sTAG}, 0x9E3779B1")
    a.reset()
    stamp(a, 6)

SLOW = []
def slow_paths(a):
    for lab, val, SA in SLOW:
        a.lab(lab + "a")
        a.e(f"ds_read_b128 v[8:11], v{SA} offset:32")
        a.e("s_waitcnt lgkmcnt(0)")
        a.e("v_min3_u32 v8, v8, v9, v10")
        a.e("v_min_u32 v8, v8, v11")
        a.e(f"v_cmp_gt_u32 vcc, {val}, v8")
        a.e(f"s_cbranch_vccz {lab}b")
        if OPT.get("csl"): a.e(f"s_sleep {OPT['csl']}")
        a.e("s_add_u32 s67, s67, 1")
        a.e("s_cmp_lt_u32 s67, 0x2000000")
        a.e(f"s_cbranch_scc1 {lab}a")
        a.e(f"s_branch {lab}b")

def p1_loop(a, M, ACC, WB, XB, xread, wread, mfma, hooks):
    nfr = M.nfr; NG = 20 * nfr; SG = 2 * nfr
    WR = 10 if M is FFN else 8
    LA = WR - 2; BP = LA - 4 if M is FFN else 2
    pend = []
    for ks in range(20):
        for i in range(len(xread(ks))):
            pend.append((nfr * ks - 0.5, "X", (ks, i), nfr * (ks - 1) + 1 if ks else -99, ks >> 1))
    for g in range(NG):
        for i in range(len(wread(g))):
            pend.append((g, "W", (g, i), g - LA, g // SG))
    pend.sort(key=lambda t: t[0])
    avail = 0
    def issue(g, n):
        k = 0
        while k < len(pend) and n > 0:
            need, kind, idx, early, st = pend[k]
            if need > g + WR + nfr: break
            if early <= g and st < avail:
                ins = (xread if kind == "X" else wread)(idx[0])[idx[1]]
                a.lds(ins, (kind, idx[0]))
                pend.pop(k); n -= 1
            else:
                k += 1
    SA, FA, FV = hooks
    a.e(f"v_mov_b32 v{SA}, s{sSYN}")
    a.e(f"s_lshl_b32 s{sT0}, s3, 2")
    a.e(f"v_add_u32 v{FA}, s{sT0}, v{SA}")
    if OPT.get("prio", 1): a.e("s_setprio 3")
    srd(a, rD, pWS, 65536, add=hex(FL2_OFF))
    stamp(a, 7)
    a.bar(); avail = 1
    stamp(a, 1)
    issue(-1, 14)
    slow = []
    for g in range(NG):
        ks, fr = divmod(g, nfr)
        extra = [[], [], [], []]
        if (g + BP + 3) % SG == 0:
            extra[0] = [("lds", f"ds_read_b128 v[8:11], v{SA} offset:32")]
        if (g + BP + 1) % SG == 0:
            st = (g + BP + 1) // SG
            assert not any(p[4] < st for p in pend), (g, st)
            a.wait(lg_all=True)
            lab = f"L_{M.name}_s{st}"
            extra[0] = [("e", f"v_mov_b32 v{FV}, {st}"), ("e", "v_min3_u32 v8, v8, v9, v10")]
            extra[1] = [("lds", f"ds_write_b32 v{FA}, v{FV} offset:48"), ("e", "v_min_u32 v8, v8, v11")]
            extra[2] = [("e", f"v_cmp_gt_u32 vcc, {st+1}, v8")]
            extra[3] = [("e", f"s_cbranch_vccnz {lab}a"), ("lab", lab + "b"), ("avail", st + 1)]
            slow.append((lab, st + 1))
        if g == 2 * SG + 2 and OPT.get("rel0", 2) == 1:
            extra[0] = [("e", f"v_mov_b32 v8, s{sTAG}"), ("e", f"v_mov_b32 v9, s{sTAG}")]
            extra[1] = [("e", f"v_mov_b32 v10, s{sTAG}"), ("e", f"v_mov_b32 v11, s{sTAG}")]
            extra[2] = [("e", "s_waitcnt vmcnt(0)")]
            extra[3] = [("e", "s_mov_b64 exec, 0xff"), ("e", f"buffer_store_dwordx4 v[8:11], v1, {sq(rD)}, s89 offen sc1"), ("e", "s_mov_b64 exec, -1")]
        a.wait(lg=[("W", g), ("X", ks)])
        for tt in range(4):
            a.e(mfma(g, tt))
            for kind, x in extra[tt]:
                if kind == "lds": a.lds(x)
                elif kind == "e": a.e(x)
                elif kind == "lab": a.lab(x)
                else: avail = x
            issue(g if tt == 3 else g - 1, 1 if tt < 3 else 2)
    SLOW.extend((lab, val, SA) for lab, val in slow)
    a.e("v_and_b32 v8, 15, v0")
    a.e("v_lshrrev_b32 v9, 4, v0")
    assert not pend

def compute_ffn(a):
    M = FFN
    WB, XB, ACC = 16, 56, 88
    a.e(f"s_sub_u32 s{sG}, s{sGI}, 10")
    a.e("v_and_b32 v8, 15, v0")
    a.e("v_lshrrev_b32 v9, 4, v0")
    a.e("v_bfe_u32 v10, v0, 1, 3")
    a.e("v_xor_b32 v10, v10, v9")
    a.e("v_lshlrev_b32 v10, 4, v10")
    a.e("v_lshl_add_u32 v10, v8, 7, v10")
    a.e("v_and_b32 v11, 1, v9")
    a.e("v_lshl_add_u32 v10, v11, 3, v10")
    a.e(f"s_lshl_b32 s{sT0}, s3, 13")
    a.e(f"v_add_u32 v10, s{sT0}, v10")
    a.e("v_mov_b32 v2, v10")
    a.e("v_xor_b32 v3, 8, v10")
    a.e("v_xor_b32 v4, 64, v10")
    a.e("v_xor_b32 v5, 0x48, v10")
    for i in range(4):
        a.e(f"v_add_u32 v{248+i}, {2*M.slot}, v{2+i}")
    a.e("v_bfe_u32 v12, v0, 2, 2")
    a.e("v_lshl_add_u32 v12, v9, 3, v12")
    a.e("v_lshl_add_u32 v13, v11, 2, v12")
    a.e("v_xor_b32 v11, 1, v11")
    a.e("v_lshl_add_u32 v14, v11, 2, v12")
    a.e("v_and_b32 v12, 3, v0")
    a.e("v_lshlrev_b32 v12, 3, v12")
    a.e(f"v_add_u32 v12, {M.woff}, v12")
    a.e("v_mul_u32_u24 v13, 160, v13")
    a.e("v_mul_u32_u24 v14, 160, v14")
    a.e("v_add_u32 v6, v13, v12")
    a.e("v_add_u32 v7, v14, v12")
    a.e(f"v_add_u32 v13, {M.slot}, v6")
    a.e(f"v_add_u32 v14, {M.slot}, v7")
    a.e(f"v_add_u32 v252, {2*M.slot}, v6")
    a.e(f"v_add_u32 v253, {2*M.slot}, v7")
    wbase = {0: (6, 7), 1: (13, 14), 2: (252, 253)}
    def xread(ks):
        sl = (ks >> 1) % 3; kk = ks & 1
        out = []
        for tt in range(4):
            for h in range(2):
                reg = (2 if sl < 2 else 248) + 2 * kk + h
                off = (sl * M.slot if sl < 2 else 0) + tt * 2048
                out.append(f"ds_read_b64 {vr(XB+16*kk+4*tt+2*h,2)}, v{reg} offset:{off}")
        return out
    def wread(g):
        ks, fr = divmod(g, 10); sl = (ks >> 1) % 3
        off = (fr & 1) * 10240 + (ks & 1) * 5120 + 32 * (fr >> 1)
        return [f"ds_read_b64_tr_b16 {vr(WB+4*(g%10)+2*s,2)}, v{wbase[sl][s]} offset:{off}" for s in range(2)]
    def acc(tt, fr): return ACC + 40 * tt + 4 * fr
    def mfma(g, tt):
        ks, fr = divmod(g, 10)
        c = "0" if ks == 0 else vr(acc(tt, fr), 4)
        return f"v_mfma_f32_16x16x32_bf16 {vr(acc(tt,fr),4)}, {vr(WB+4*(g%10),4)}, {vr(XB+16*(ks&1)+4*tt,4)}, {c}"
    p1_loop(a, M, ACC, WB, XB, xread, wread, mfma, (12, 254, 15))
    stamp(a, 2)
    CS = 16
    ST = 56
    a.e(f"s_lshl_b32 s{sT0}, s3, 9")
    a.e(f"s_add_u32 s{sT0}, s{sT0}, {M.tab_st}")
    a.e("v_lshlrev_b32 v2, 3, v8")
    a.e(f"v_add_u32 v2, s{sT0}, v2")
    a.e("v_lshlrev_b32 v3, 4, v9")
    a.e(f"v_add_u32 v3, {M.tab_cs}, v3")
    for tt in range(4):
        a.lds(f"ds_read_b64 {vr(ST+2*tt,2)}, v2 offset:{128*tt}", "st")
    for fr in range(10):
        a.lds(f"ds_read_b128 {vr(CS+4*fr,4)}, v3 offset:{(fr&1)*512+(fr>>1)*64}", ("cs", fr))
    a.e(f"s_lshl_b32 s{sT0}, s{sM}, 2")
    a.e(f"s_add_u32 s{sT0}, s{sT0}, s3")
    a.e(f"s_mul_i32 s{sT0}, s{sT0}, {HA_SLAB}")
    srd(a, rA, pWS, 0 if OPT.get("nost") else HA_SLAB, add=f"s{sT0}")
    a.e(f"s_lshr_b32 s{sT1}, s{sG}, 1")
    a.e(f"s_mul_i32 s{sT1}, s{sT1}, 5")
    a.e(f"s_add_u32 s{sT1}, s{sT1}, 40")
    a.e(f"s_and_b32 s{sT2}, s{sG}, 1")
    a.e(f"s_lshl_b32 s{sT3}, s{sT2}, 1")
    a.e(f"s_add_u32 s{sT3}, s{sT3}, s{sT1}")
    a.e(f"s_lshl_b32 s{sT3}, s{sT3}, 12")
    a.e(f"s_add_u32 s{sT4}, s{sT3}, 4096")
    a.e(f"s_add_u32 s{sT1}, s{sT1}, 4")
    a.e(f"s_min_u32 s{sT1}, s{sT1}, 93")
    a.e(f"s_lshl_b32 s{sT1}, s{sT1}, 12")
    a.e(f"s_lshl_b32 s{sT2}, s{sT2}, 9")
    a.e(f"s_add_u32 s{sT1}, s{sT1}, s{sT2}")
    a.e(f"s_cmp_eq_u32 s{sG}, 21")
    a.e(f"s_cselect_b32 s{sT4}, s{sT3}, s{sT4}")
    a.e(f"s_cselect_b32 s{sT3}, 0x7000000, s{sT3}")
    a.e("v_lshrrev_b32 v4, 1, v9")
    a.e("v_lshlrev_b32 v4, 8, v4")
    a.e("v_lshl_add_u32 v4, v8, 4, v4")
    a.e("v_and_b32 v5, 1, v9")
    a.e("v_lshl_add_u32 v4, v5, 3, v4")
    C1 = 64; C2 = 72
    a.wait(lg=["st"])
    for tt in range(4):
        a.e(f"v_rcp_f32 v{C1+2*tt}, v{ST+2*tt+1}")
        a.e(f"v_mul_f32 v{C2+2*tt}, v{ST+2*tt+1}, v{ST+2*tt+1}")
    for tt in range(4):
        a.e(f"v_mul_f32 v{C1+2*tt}, {hex(f2u(-1.4426950408889634))}, v{C1+2*tt}")
    a.wait(lg_all=True)
    items = [(tt, j) for tt in range(4) for j in range(5)]
    def A(tt, j):
        g, u_ = acc(tt, 2 * j), acc(tt, 2 * j + 1)
        t = 80 + 4 * ((5 * tt + j) & 1)
        out = []
        for mat, r in ((0, g), (1, u_)):
            for h in range(2):
                out.append(f"v_pk_fma_f32 {vr(r+2*h,2)}, {vr(ST+2*tt,2)}, {vr(CS+4*(2*j+mat)+2*h,2)}, {vr(r+2*h,2)} op_sel:[0,0,0] op_sel_hi:[0,1,1] neg_lo:[1,0,0] neg_hi:[1,0,0]")
        for h in range(2):
            out.append(f"v_pk_mul_f32 {vr(t+2*h,2)}, {vr(g+2*h,2)}, {vr(C1+2*tt,2)} op_sel_hi:[1,0]")
        for h in range(2):
            out.append(f"v_pk_mul_f32 {vr(g+2*h,2)}, {vr(g+2*h,2)}, {vr(u_+2*h,2)}")
        return out
    def B(tt, j):
        t = 80 + 4 * ((5 * tt + j) & 1); u_ = acc(tt, 2 * j + 1)
        return [f"v_exp_f32 v{u_+p}, v{t+p}" for p in range(4)]
    def Cc(tt, j):
        u_ = acc(tt, 2 * j + 1)
        return [f"v_pk_fma_f32 {vr(u_+2*h,2)}, {vr(u_+2*h,2)}, {vr(C2+2*tt,2)}, {vr(C2+2*tt,2)} op_sel_hi:[1,0,0]" for h in range(2)]
    def Dd(tt, j):
        u_ = acc(tt, 2 * j + 1)
        return [f"v_rcp_f32 v{u_+p}, v{u_+p}" for p in range(4)]
    def E(tt, j):
        g, u_ = acc(tt, 2 * j), acc(tt, 2 * j + 1)
        out = [f"v_pk_mul_f32 {vr(g+2*h,2)}, {vr(g+2*h,2)}, {vr(u_+2*h,2)}" for h in range(2)]
        o = acc(tt, 2 * (j & ~1) + 1) + 2 * (j & 1)
        out += [f"v_cvt_pk_bf16_f32 v{o+h}, v{g+2*h}, v{g+2*h+1}" for h in range(2)]
        if j in (1, 3):
            out.append(f"buffer_store_dwordx4 {vr(o-2,4)}, v1, {sq(rA)}, s{sT3 if j == 1 else sT4} offen offset:{1024*tt} sc1")
        if j == 4:
            out.append(f"buffer_store_dwordx2 {vr(o,2)}, v4, {sq(rA)}, s{sT1} offen offset:{1024*tt} sc1")
        return out
    n = len(items)
    get = lambda f, i: f(*items[i]) if 0 <= i < n else []
    for i in range(n + 4):
        plain = get(E, i - 4) + get(Cc, i - 2) + get(A, i)
        trans = get(B, i - 1) + get(Dd, i - 3)
        k = 0
        while plain or trans:
            if trans and (k & 1 or not plain): a.e(trans.pop(0))
            else:
                a.e(plain.pop(0))
                if len(plain) > len(trans) + 1 and plain: a.e(plain.pop(0))
            k += 1
        a.e("s_nop 0") if i >= n else None
    stamp(a, 3)

def compute_ssm(a):
    M = SSM
    WB, XB, ACC = 16, 48, 80
    KL, KC, K8, KP = 208, 216, 224, 232
    L16, L256 = 240, 242
    a.e(f"s_mov_b32 s{sG}, s{sGI}")
    srd(a, rB, pLRE, P * 2); srd(a, rC, pLIM, P * 2); srd(a, rD, pLDT, P * 2)
    a.e("v_lshlrev_b32 v2, 1, v0")
    a.e(f"s_lshl_b32 s{sT0}, s{sG}, 7")
    a.e(f"buffer_load_ushort v100, v2, {sq(rB)}, s{sT0} offen")
    a.e(f"buffer_load_ushort v101, v2, {sq(rC)}, s{sT0} offen")
    a.e(f"buffer_load_ushort v102, v2, {sq(rD)}, s{sT0} offen")
    return WB, XB, ACC, KL, KC, K8, KP, L16, L256

def compute_ssm2(a, regs):
    M = SSM
    WB, XB, ACC, KL, KC, K8, KP, L16, L256 = regs
    a.e("v_lshlrev_b32 v100, 16, v100")
    a.e("v_lshlrev_b32 v101, 16, v101")
    a.e("v_lshlrev_b32 v102, 16, v102")
    HI = f2u(1.4426950408889634)
    a.e(f"s_mov_b32 s{sT0}, {hex(HI)}")
    a.e(f"s_mov_b32 s{sT1}, {hex(f2u(1.4426950408889634 - u2f(HI)))}")
    a.e(f"s_mov_b32 s{sT2}, {hex(f2u(0.6931471805599453))}")
    def expf(d, x, t0, t1):
        a.e(f"v_mul_f32 v{t0}, s{sT0}, v{x}")
        a.e(f"v_fma_f32 v{t1}, v{x}, s{sT0}, -v{t0}")
        a.e(f"v_fma_f32 v{t1}, v{x}, s{sT1}, v{t1}")
        a.e(f"v_exp_f32 v{t0}, v{t0}")
        a.e(f"v_mul_f32 v{t1}, s{sT2}, v{t1}")
        a.e(f"v_fma_f32 v{d}, v{t0}, v{t1}, v{t0}")
    expf(102, 102, 104, 105)
    a.e("v_cvt_pk_bf16_f32 v102, v102, v102")
    a.e("v_lshlrev_b32 v102, 16, v102")
    a.e("v_mul_f32 v106, v102, v100")
    a.e("v_mul_f32 v107, v102, v101")
    expf(106, 106, 104, 105)
    HI = f2u(0.15915494309189535)
    a.e(f"s_mov_b32 s{sT0}, {hex(HI)}")
    a.e(f"s_mov_b32 s{sT1}, {hex(f2u(0.15915494309189535 - u2f(HI)))}")
    a.e(f"v_mul_f32 v104, s{sT0}, v107")
    a.e(f"v_fma_f32 v105, v107, s{sT0}, -v104")
    a.e(f"v_fma_f32 v105, v107, s{sT1}, v105")
    a.e("v_rndne_f32 v103, v104")
    a.e("v_sub_f32 v104, v104, v103")
    a.e("v_add_f32 v104, v104, v105")
    a.e("v_cos_f32 v108, v104")
    a.e("v_sin_f32 v109, v104")
    a.e("s_nop 0")
    LAM, COEF, L8, P0, TMP, TMP2, L32, L64, L128 = 110, 112, 114, 116, 124, 126, 128, 130, 132
    a.e(f"v_mul_f32 v{LAM}, v106, v108")
    a.e(f"v_mul_f32 v{LAM+1}, v106, v109")
    a.e("v_max_f32 v106, |v100|, |v101|")
    a.e("v_rcp_f32 v107, v106")
    a.e(f"v_add_f32 v108, -1.0, v{LAM}")
    a.e("v_mul_f32 v100, v100, v107")
    a.e("v_mul_f32 v101, v101, v107")
    a.e("v_mul_f32 v109, v100, v100")
    a.e("v_fma_f32 v109, v101, v101, v109")
    a.e("v_mul_f32 v109, v109, v106")
    a.e("v_rcp_f32 v109, v109")
    a.e("v_mul_f32 v104, v108, v100")
    a.e(f"v_fma_f32 v104, v{LAM+1}, v101, v104")
    a.e(f"v_mul_f32 v105, v{LAM+1}, v100")
    a.e("v_fma_f32 v105, -v108, v101, v105")
    a.e("v_add_f32 v109, v109, v109")
    a.e(f"v_mul_f32 v{COEF}, v104, v109")
    a.e(f"v_mul_f32 v{COEF+1}, v105, v109")
    cmul(a, L8, LAM, LAM, TMP)
    cmul(a, TMP2, L8, L8, TMP)
    cmul(a, L8, TMP2, TMP2, TMP)
    cmul(a, L16, L8, L8, TMP)
    cmul(a, L32, L16, L16, TMP)
    cmul(a, L64, L32, L32, TMP)
    cmul(a, L128, L64, L64, TMP)
    cmul(a, L256, L128, L128, TMP)
    a.e(f"v_mov_b32 v{P0}, 1.0")
    a.e(f"v_mov_b32 v{P0+1}, 0")
    for bit, src in ((0, L64), (1, L128)):
        a.e(f"s_bitcmp0_b32 s3, {bit}")
        a.e(f"s_cbranch_scc1 L_pw{bit}")
        cmul(a, TMP2, P0, src, TMP)
        a.e(f"v_mov_b32 v{P0}, v{TMP2}")
        a.e(f"v_mov_b32 v{P0+1}, v{TMP2+1}")
        a.lab(f"L_pw{bit}")
    cmul(a, P0 + 2, P0, L16, TMP)
    cmul(a, P0 + 4, P0, L32, TMP)
    cmul(a, P0 + 6, P0 + 4, L16, TMP)
    a.e("v_lshlrev_b32 v6, 3, v0")
    a.e(f"v_add_u32 v6, {M.scr}, v6")
    a.e(f"ds_write_b64 v6, {vr(L16,2)} offset:9728")
    a.e(f"ds_write_b64 v6, {vr(L256,2)} offset:10240")
    a.e(f"s_mul_i32 s{sT0}, s3, 3584")
    a.e(f"s_add_u32 s{sT0}, s{sT0}, {M.kscr}")
    a.e("v_lshlrev_b32 v2, 3, v0")
    a.e(f"v_add_u32 v2, s{sT0}, v2")
    for i in range(7):
        a.e(f"ds_write_b64 v2, {vr(LAM+2*i,2)} offset:{512*i}")
    a.e("v_and_b32 v8, 15, v0")
    a.e("v_lshrrev_b32 v9, 4, v0")
    a.e("v_lshlrev_b32 v2, 3, v8")
    a.e(f"v_add_u32 v2, s{sT0}, v2")
    a.e("v_lshl_add_u32 v3, v9, 9, v2")
    a.e("s_waitcnt lgkmcnt(0)")
    for ct in range(4):
        a.e(f"ds_read_b64 {vr(KL+2*ct,2)}, v2 offset:{128*ct}")
        a.e(f"ds_read_b64 {vr(KC+2*ct,2)}, v2 offset:{512+128*ct}")
        a.e(f"ds_read_b64 {vr(K8+2*ct,2)}, v2 offset:{1024+128*ct}")
        a.e(f"ds_read_b64 {vr(KP+2*ct,2)}, v3 offset:{1536+128*ct}")
    a.e("v_bfe_u32 v10, v0, 1, 3")
    a.e("v_xor_b32 v10, v10, v9")
    a.e("v_lshlrev_b32 v10, 4, v10")
    a.e("v_lshl_add_u32 v10, v8, 7, v10")
    a.e(f"s_lshl_b32 s{sT0}, s3, 13")
    a.e(f"v_add_u32 v2, s{sT0}, v10")
    a.e("v_xor_b32 v3, 64, v2")
    a.e(f"v_add_u32 v4, {2*M.slot}, v2")
    a.e(f"v_add_u32 v5, {2*M.slot}, v3")
    a.e(f"v_add_u32 v6, {M.woff}, v10")
    a.e("v_xor_b32 v7, 64, v6")
    a.e(f"v_add_u32 v12, {2*M.slot}, v6")
    a.e(f"v_add_u32 v13, {2*M.slot}, v7")
    a.e("s_waitcnt lgkmcnt(0)")
    def xread(ks):
        sl = (ks >> 1) % 3; kk = ks & 1
        reg = (2 if sl < 2 else 4) + kk
        return [f"ds_read_b128 {vr(XB+16*kk+4*tt,4)}, v{reg} offset:{(sl*M.slot if sl < 2 else 0)+tt*2048}" for tt in range(4)]
    def wread(g):
        ks, fr = divmod(g, 8); sl = (ks >> 1) % 3
        reg = (6 if sl < 2 else 12) + (ks & 1)
        return [f"ds_read_b128 {vr(WB+4*(g%8),4)}, v{reg} offset:{(sl*M.slot if sl < 2 else 0)+fr*2048}"]
    def acc(tt, fr): return ACC + 16 * fr + 4 * tt
    def mfma(g, tt):
        ks, fr = divmod(g, 8)
        c = "0" if ks == 0 else vr(acc(tt, fr), 4)
        return f"v_mfma_f32_16x16x32_bf16 {vr(acc(tt,fr),4)}, {vr(XB+16*(ks&1)+4*tt,4)}, {vr(WB+4*(g%8),4)}, {c}"
    p1_loop(a, M, ACC, WB, XB, xread, wread, mfma, (14, 254, 15))
    stamp(a, 2)
    RS, MR, CSR, CSI = 16, 32, 48, 52
    a.e(f"s_lshl_b32 s{sT0}, s3, 8")
    a.e(f"s_add_u32 s{sT0}, s{sT0}, {M.tab_rs}")
    a.e("v_lshlrev_b32 v2, 4, v9")
    a.e(f"v_add_u32 v2, s{sT0}, v2")
    a.e("v_lshlrev_b32 v3, 2, v8")
    a.e(f"v_add_u32 v3, {M.tab_cs}, v3")
    for tt in range(4):
        a.lds(f"ds_read_b128 {vr(RS+4*tt,4)}, v2 offset:{64*tt}", "t")
        a.lds(f"ds_read_b128 {vr(MR+4*tt,4)}, v2 offset:{1024+64*tt}", "t")
    for fr in range(8):
        a.lds(f"ds_read_b32 v{CSR+fr}, v3 offset:{(fr>>2)*512+64*(fr&3)}", "t")
    EL = M.scr; CAR = EL + 8192
    a.e(f"s_lshl_b32 s{sT0}, s3, 11")
    a.e(f"s_add_u32 s{sT0}, s{sT0}, {EL}")
    a.e("v_lshlrev_b32 v4, 3, v8")
    a.e("v_lshl_add_u32 v5, v9, 9, v4")
    a.e(f"v_add_u32 v5, s{sT0}, v5")
    a.e(f"v_add_u32 v4, {CAR}, v4")
    a.wait(lg=["t"])
    R = lambda ct: ACC + 16 * ct
    I = lambda ct: ACC + 64 + 16 * ct
    H = 56
    def scan_step(ct, hr, hi, ur, ui, dr, di, tr, ti):
        lam = KL + 2 * ct
        a.e(f"v_pk_fma_f32 {vr(tr,2)}, {vr(lam,2)}, {vr(hr,2)}, {vr(ur,2)} op_sel:[0,0,0] op_sel_hi:[0,1,1]")
        a.e(f"v_pk_fma_f32 {vr(ti,2)}, {vr(lam,2)}, {vr(hi,2)}, {vr(ui,2)} op_sel:[0,0,0] op_sel_hi:[0,1,1]")
        a.e(f"v_pk_fma_f32 {vr(dr,2)}, {vr(lam,2)}, {vr(hi,2)}, {vr(tr,2)} op_sel:[1,0,0] op_sel_hi:[1,1,1] neg_lo:[1,0,0] neg_hi:[1,0,0]")
        a.e(f"v_pk_fma_f32 {vr(di,2)}, {vr(lam,2)}, {vr(hr,2)}, {vr(ti,2)} op_sel:[1,0,0] op_sel_hi:[1,1,1]")
    def lncorr(frs, j):
        for fr in frs:
            u = ACC + 16 * fr + 2 * j
            a.e(f"v_pk_mul_f32 {vr(u,2)}, {vr(u,2)}, {vr(RS+2*j,2)}")
        for fr in frs:
            u = ACC + 16 * fr + 2 * j
            cs = CSR + fr
            sel = cs & 1; csp = cs - sel
            a.e(f"v_pk_fma_f32 {vr(u,2)}, {vr(MR+2*j,2)}, {vr(csp,2)}, {vr(u,2)} op_sel:[0,{sel},0] op_sel_hi:[1,{sel},1] neg_lo:[1,0,0] neg_hi:[1,0,0]")
    E0 = 244
    for cp in range(2):
        cts = (2 * cp, 2 * cp + 1)
        cur = {}
        for j in range(8):
            lncorr((cts[0], 4 + cts[0], cts[1], 4 + cts[1]), j)
            if j == 0: continue
            for i, ct in enumerate(cts):
                b = H + 12 * i
                hr, hi = (R(ct), I(ct)) if j == 1 else cur[ct]
                dr, di = b + 4 * (j & 1), b + 4 * (j & 1) + 2
                scan_step(ct, hr, hi, R(ct) + 2 * j, I(ct) + 2 * j, dr, di, b + 8, b + 10)
                cur[ct] = (dr, di)
        for i, ct in enumerate(cts):
            hr, hi = cur[ct]; b = H + 12 * i
            a.e(f"v_mov_b32 v{E0+2*ct}, v{hr}")
            a.e(f"v_mov_b32 v{E0+2*ct+1}, v{hi}")
            a.e(f"v_mov_b32 v{b}, v{hr+1}")
            a.e(f"v_mov_b32 v{b+1}, v{hi+1}")
            cfma(a, b + 2, K8 + 2 * ct, E0 + 2 * ct, b, b + 8)
            a.lds(f"ds_write_b64 v5, {vr(b+2,2)} offset:{128*ct}")
    a.e("v_mov_b32 v15, 11")
    a.lds("ds_write_b32 v254, v15 offset:48")
    a.e("s_setprio 0")
    stamp(a, 3)
    for ct in range(4):
        cf = KC + 2 * ct
        for j in range(8):
            ur, ui = R(ct) + 2 * j, I(ct) + 2 * j
            t = H + 4 * (j & 1)
            a.e(f"v_pk_mul_f32 {vr(t,2)}, {vr(cf,2)}, {vr(ur,2)} op_sel:[0,0] op_sel_hi:[0,1]")
            a.e(f"v_pk_mul_f32 {vr(t+2,2)}, {vr(cf,2)}, {vr(ur,2)} op_sel:[1,0] op_sel_hi:[1,1]")
            a.e(f"v_pk_fma_f32 {vr(ur,2)}, {vr(cf,2)}, {vr(ui,2)}, {vr(t,2)} op_sel:[1,0,0] op_sel_hi:[1,1,1] neg_lo:[1,0,0] neg_hi:[1,0,0]")
            a.e(f"v_pk_fma_f32 {vr(ui,2)}, {vr(cf,2)}, {vr(ui,2)}, {vr(t+2,2)} op_sel:[0,0,0] op_sel_hi:[0,1,1]")
    a.e(f"s_mul_i32 s{sT0}, s3, 10240")
    a.e("v_mul_u32_u24 v6, 144, v8")
    a.e("v_lshl_add_u32 v6, v9, 5, v6")
    a.e(f"v_add_u32 v6, s{sT0}, v6")
    a.e("v_bfe_u32 v7, v0, 2, 2")
    a.e("v_lshl_add_u32 v7, v9, 3, v7")
    a.e("v_mul_u32_u24 v7, 144, v7")
    a.e("v_and_b32 v10, 3, v0")
    a.e("v_lshl_add_u32 v7, v10, 3, v7")
    a.e(f"v_add_u32 v7, s{sT0}, v7")
    a.e(f"s_lshl_b32 s{sT0}, s{sM}, 2")
    a.e(f"s_add_u32 s{sT0}, s{sT0}, s3")
    a.e(f"s_mul_i32 s{sT0}, s{sT0}, {HA_SLAB}")
    srd(a, rA, pWS, 0 if OPT.get("nost") else HA_SLAB, add=f"s{sT0}")
    a.e(f"s_lshl_b32 s{sT1}, s{sG}, 14")
    lds_wait_ge(a, 14, 40, 12, "L_s2a", tmp=10)
    lds_wait_ge(a, 14, 44, 12, "L_s2", tmp=10)
    a.e("s_setprio 3")
    stamp(a, 4)
    PS, CW = 16, 24
    for ct in range(4):
        a.lds(f"ds_read_b64 {vr(PS+2*ct,2)}, v5 offset:{128*ct}", ("c", ct))
        a.lds(f"ds_read_b64 {vr(CW+2*ct,2)}, v4 offset:{128*ct}", ("c", ct))
    INI = 32
    a.wait(lg_all=True)
    for cp in range(2):
        seqs = []
        for i, ct in enumerate((2 * cp, 2 * cp + 1)):
            t = Asm(); Hh = H + 12 * i
            c0, c1 = Hh, Hh + 2
            cfma(t, c0, KP + 2 * ct, CW + 2 * ct, PS + 2 * ct, Hh + 8)
            cfma(t, c1, K8 + 2 * ct, c0, E0 + 2 * ct, Hh + 8)
            cmul(t, Hh + 4, KC + 2 * ct, c0, Hh + 8)
            cmul(t, Hh + 6, KC + 2 * ct, c1, Hh + 10)
            b = INI + 4 * ct
            t.e(f"v_mov_b32 v{b}, v{Hh+4}")
            t.e(f"v_mov_b32 v{b+1}, v{Hh+6}")
            t.e(f"v_mov_b32 v{b+2}, v{Hh+5}")
            t.e(f"v_mov_b32 v{b+3}, v{Hh+7}")
            seqs.append(t.l)
        for x, y in zip(*seqs): a.l += [x, y]
    PK = 56
    def scan2(cp):
        for j in range(8):
            for ct in (2 * cp, 2 * cp + 1):
                b = INI + 4 * ct
                hr, hi = (b, b + 2) if j == 0 else (R(ct) + 2 * (j - 1), I(ct) + 2 * (j - 1))
                ur, ui = R(ct) + 2 * j, I(ct) + 2 * j
                scan_step(ct, hr, hi, ur, ui, ur, ui, ur, ui)
    def pack(cp):
        k = 0
        for ct in (2 * cp, 2 * cp + 1):
            for comp in range(2):
                base = ACC + 64 * comp + 16 * ct
                neg = "-" if comp else ""
                for sg in range(2):
                    q = PK + 4 * (k % 6); k += 1
                    for tt in range(4):
                        a.e(f"v_cvt_pk_bf16_f32 v{q+tt}, {neg}v{base+4*tt+sg}, {neg}v{base+4*tt+2+sg}")
                    a.lds(f"ds_write_b128 v6, {vr(q,4)} offset:{(32*comp+16*(ct&1))*144+16*sg}", ("w", cp, k))
                    if k >= 5: a.wait(lg=[("w", cp, k - 4)])
    def tread(cp):
        O = ACC + 32 * cp
        for kk, ksl in enumerate((cp, 2 + cp)):
            for mi in range(4):
                o = O + 16 * kk + 4 * mi
                for sub in range(2):
                    a.lds(f"ds_read_b64_tr_b16 {vr(o+2*sub,2)}, v7 offset:{(32*kk+4*sub)*144+32*mi}", ("o", cp, kk, mi))
    def tstore(cp):
        O = ACC + 32 * cp
        for kk, ksl in enumerate((cp, 2 + cp)):
            a.e(f"s_add_u32 s{sT2}, s{sT1}, {4096*ksl}")
            for mi in range(4):
                o = O + 16 * kk + 4 * mi
                a.wait(lg=[("o", cp, kk, mi)])
                a.e(f"buffer_store_dwordx4 {vr(o,4)}, v1, {sq(rA)}, s{sT2} offen offset:{1024*mi} sc1")
    scan2(0); pack(0); scan2(1)
    a.wait(lg_all=True)
    tread(0); pack(1); tstore(0)
    a.wait(lg_all=True)
    tread(1); tstore(1)
    stamp(a, 5)

def lds_wait_ge(a, addr_v, off, val, lab, tmp=13, sreg=None):
    sreg = sreg or sT5
    a.lab(lab)
    a.e(f"ds_read_b32 v{tmp}, v{addr_v} offset:{off}")
    a.e("s_waitcnt lgkmcnt(0)")
    a.e(f"v_readfirstlane_b32 s{sreg}, v{tmp}")
    a.e("s_nop 0")
    a.e(f"s_cmp_ge_u32 s{sreg}, {val}")
    a.e(f"s_cbranch_scc1 {lab}x")
    if tmp == 253 and OPT.get("hsl", 3): a.e(f"s_sleep {OPT.get('hsl', 3)}")
    a.e("s_add_u32 s67, s67, 1")
    a.e("s_cmp_lt_u32 s67, 0x2000000")
    a.e(f"s_cbranch_scc1 {lab}")
    a.lab(lab + "x")
    a.lg = []

def fre1_wait(a, val, lab):
    a.lab(lab)
    a.e("ds_read_b128 v[4:7], v251 offset:48")
    a.e("s_waitcnt lgkmcnt(0)")
    a.e("v_min3_u32 v4, v4, v5, v6")
    a.e("v_min_u32 v4, v4, v7")
    a.e(f"v_cmp_gt_u32 vcc, {val}, v4")
    a.e(f"s_cbranch_vccz {lab}x")
    a.e(f"s_sleep {OPT.get('fsl', 1)}")
    a.e("s_add_u32 s67, s67, 1")
    a.e("s_cmp_lt_u32 s67, 0x2000000")
    a.e(f"s_cbranch_scc1 {lab}")
    a.lab(lab + "x")
    a.lg = []

def perm_table(a, w):
    a.e(f"s_add_u32 s{sT0}, s{sNG}, s{sMT}")
    a.e(f"s_and_b32 s{sT0}, s{sT0}, 3")
    if not OPT.get("perm", 0): a.e(f"s_mov_b32 s{sT0}, 0")
    a.e(f"s_lshl_b32 s{sT0}, s{sT0}, 2")
    a.e(f"s_lshr_b32 s{sT0}, 0x2103210, s{sT0}")
    a.e(f"s_and_b32 s{sT0}, s{sT0}, 0xffff")
    a.e(f"s_mul_i32 s{sT1}, s{sT0}, 0x10001")
    if OPT.get("perm", 0): a.e(f"s_bitcmp1_b32 s{sMT}, 2")
    else: a.e("s_cmp_eq_u32 0, 1")
    a.e(f"s_cselect_b32 s{sT2}, 0x44444444, 0")
    a.e(f"s_cselect_b32 s{sT3}, 0, 0x8888")
    a.e(f"s_cselect_b32 s{sT4}, 0x4444, 0")
    a.e(f"s_add_u32 s92, s{sT2}, 0x44440000")
    a.e(f"s_add_u32 s93, s{sT3}, s{sT0}")
    a.e(f"s_xor_b32 s{sT2}, s{sT2}, 0x44440000")
    a.e(f"s_cmp_eq_u32 {w}, 1")
    a.e(f"s_cselect_b32 s92, s{sT2}, s92")
    a.e(f"s_cselect_b32 s93, 0xba98, s93")
    a.e(f"s_add_u32 s92, s92, s{sT1}")
def unit_of(d, p): return f"s_bfe_u32 s{d}, s{92 + (p >> 3)}, {hex((4 << 16) | (4 * (p & 7)))}"

def compute_p2(a):
    a.lab("L_p2")
    a.reset()
    perm_table(a, "s3")
    a.e("v_add_u32 v246, 4096, v1")
    srd(a, rW, pWS, 131072, add=hex(DONE_OFF))
    a.e(f"s_lshl_b32 s{sT3}, s{sM}, 2")
    a.e(f"s_add_u32 s{sT3}, s{sT3}, s3")
    a.e(f"s_lshl_b32 s{sT3}, s{sT3}, 5")
    a.e(f"s_add_u32 s{sT3}, s{sT3}, s{sGI}")
    a.e(f"s_lshl_b32 s{sT3}, s{sT3}, 7")
    a.e(f"v_mov_b32 v14, s{sTAG}")
    a.e("v_lshlrev_b32 v15, 2, v0")
    a.e("v_and_b32 v8, 15, v0")
    a.e("v_lshrrev_b32 v9, 4, v0")
    a.e("v_bfe_u32 v2, v0, 1, 3")
    a.e("v_xor_b32 v2, v2, v9")
    a.e("v_lshlrev_b32 v2, 4, v2")
    a.e("v_lshl_add_u32 v2, v8, 7, v2")
    a.e("v_xor_b32 v3, 64, v2")
    a.e("s_cmp_lt_u32 s3, 2")
    a.e("s_cbranch_scc1 L_p2_c")
    a.e("v_mov_b32 v2, v1")
    a.e("v_add_u32 v3, 1024, v1")
    a.lab("L_p2_c")
    a.e(f"s_mul_i32 s{sLB}, s3, 10240")
    def bases():
        a.e(f"v_add_u32 v2, s{sLB}, v2")
        a.e(f"v_add_u32 v3, s{sLB}, v3")
        for i in range(4): a.e(f"v_add_u32 v{4+i}, s{sPIT}, v{2+i}")
    bases()
    a.e(f"s_lshl_b32 s{sT0}, s3, 2")
    a.e(f"s_add_u32 s{sT0}, s{sT0}, s{sSYN}")
    a.e(f"v_mov_b32 v12, s{sT0}")
    def done():
        a.e("s_waitcnt vmcnt(0)")
        a.e("s_mov_b32 exec_hi, 0")
        a.e(f"buffer_store_dword v14, v15, {sq(rW)}, s87 offen sc1")
        a.e("s_mov_b64 exec, -1")
        stamp(a, 8)
    a.e(f"s_mov_b32 s87, s{sT3}")
    LATE = OPT.get("late", 0)
    if not LATE: done()
    ACC, WB, XB = 16, 96, 176
    wreg = lambda u, kk, nt: WB + 40 * (u & 1) + 20 * kk + 4 * nt
    xreg = lambda u, kk, mi: XB + 32 * (u & 1) + 16 * kk + 4 * mi
    def pulls(u):
        if OPT.get("nopull") and u > 1: return []
        return [(f"ds_read_b128 {vr(wreg(u,kk,nt),4)}, v{2+2*ent(u)+kk} offset:{2048*nt}", ("W", u)) for kk in range(2) for nt in range(5)]
    def freed(n):
        a.e(f"v_mov_b32 v13, {n}")
        a.lds("ds_write_b32 v12, v13 offset:16")
    if LATE:
        a.e("ds_read_b32 v13, v12")
        a.e("s_waitcnt lgkmcnt(0)")
        a.e("v_cmp_gt_u32 vcc, 2, v13")
        a.e("s_cbranch_vccz L_p2_pl")
        done()
        a.e("s_mov_b32 s87, 0x7000000")
        a.lab("L_p2_pl")
    for u in range(2):
        lds_wait_ge(a, 12, 0, u + 1, f"L_p2_r{u}")
        for ins, tag in pulls(u): a.lds(ins, tag)
        a.wait(lg_all=True)
        freed(u + 1)
    a.e(f"v_add_u32 v10, s{sLB}, v1")
    a.e(f"v_add_u32 v11, s{sPIT}, v10")
    a.e(f"s_mov_b32 s{sT0}, 0x160c0600")
    a.e(f"s_mov_b32 s{sT1}, 0x09090605")
    a.e(f"s_lshl_b32 s{sT2}, s3, 3")
    a.e(f"s_lshr_b32 s{sT0}, s{sT0}, s{sT2}")
    a.e(f"s_lshr_b32 s{sT1}, s{sT1}, s{sT2}")
    a.e(f"s_and_b32 s{sT0}, s{sT0}, 0xff")
    a.e(f"s_and_b32 s{sT1}, s{sT1}, 0xff")
    a.e(f"v_min_u32 v244, s{sT1}, v0")
    a.e("v_lshlrev_b32 v244, 7, v244")
    a.e(f"s_lshl_b32 s{sT2}, s{sMT}, 5")
    a.e(f"s_add_u32 s{sT0}, s{sT0}, s{sT2}")
    a.e(f"s_lshl_b32 s{sT0}, s{sT0}, 7")
    a.e(f"s_mul_i32 s{sT2}, s{sMT}, {HA_SLAB}")
    srd(a, rA, pWS, HA_SLAB, add=f"s{sT2}")
    a.e(f"s_mul_i32 s{sXO}, s3, {24*4096}")
    a.e(f"s_lshr_b32 s{sT1}, s3, 1")
    a.e(f"s_lshl_b32 s{sT1}, s{sT1}, 13")
    a.e(f"s_sub_u32 s{sXO}, s{sXO}, s{sT1}")
    if OPT.get("xoob"): a.e(f"s_mov_b32 s{sXO}, 0x7000000")
    def gi_of(slot):
        if slot < 40: return slot >> 2
        o = slot - 40
        if o >= 52: return 31
        return 10 + 2 * (o // 5) + (1 if o % 5 >= 2 else 0)
    U0 = (0, 12, 23, 35); LO = (0, 6, 12, 22); NN = (6, 7, 10, 10)
    tabs = []
    for w in range(4):
        t = 0
        for u in range(12):
            n = min(max(gi_of(min(sl, 93)) for sl in range(2 * U0[w], 2 * (U0[w] + u) + 2)) - LO[w] + 1, NN[w])
            if not OPT.get("dep", 0): n = NN[w]
            t |= n << (4 * u)
        tabs.append(t)
    for half, sr_ in ((0, 80), (1, 81)):
        v = [(t >> (32 * half)) & 0xffffffff for t in tabs]
        a.e(f"s_mov_b32 s{sr_}, {hex(v[0])}")
        for w in range(1, 4):
            a.e(f"s_cmp_eq_u32 s3, {w}")
            a.e(f"s_cselect_b32 s{sr_}, {hex(v[w])}, s{sr_}")
    a.e(f"s_mov_b32 s84, s{sT0}")
    def need(u): return f"s_bfe_u32 s82, s{80 + (u >> 3)}, {hex((4 << 16) | (4 * (u & 7)))}"
    def pollsync(lab, back):
        a.lab(lab)
        a.e(f"buffer_load_dword v245, v244, {sq(rW)}, s84 offen sc1")
        a.e("s_waitcnt vmcnt(0)")
        a.e(f"v_cmp_ne_u32 vcc, s{sTAG}, v245")
        a.e("s_nop 1")
        a.e("s_ff1_i32_b64 s83, vcc")
        a.e("s_cmp_ge_u32 s83, s82")
        a.e(f"s_cbranch_scc1 {back}")
        a.e(f"s_sleep {OPT.get('psleep', 2)}")
        a.e("s_add_u32 s67, s67, 16")
        a.e("s_cmp_lt_u32 s67, 0x2000000")
        a.e(f"s_cbranch_scc1 {lab}")
    a.e(need(1))
    if LATE: done()
    if not OPT.get("nowait"): pollsync("L_p2_poll", "L_p2_go")
    a.lab("L_p2_go")
    stamp(a, 9)
    def xl(u, kk, mi):
        so = 85 + (u & 1)
        def f():
            if mi == 0 and kk == 0:
                a.e(unit_of(so, u))
                a.e(f"s_lshl_b32 s{so}, s{so}, 13")
                a.e(f"s_add_u32 s{so}, s{so}, s{sXO}")
            a.vmem(f"buffer_load_dwordx4 {vr(xreg(u,kk,mi),4)}, v{246 if kk else 1}, {sq(rA)}, s{so} offen offset:{1024*mi} sc1", ("X", u, kk))
        return f
    poll = lambda: a.vmem(f"buffer_load_dword v245, v244, {sq(rW)}, s84 offen sc1", "poll")
    for kk in range(2):
        for mi in range(4): xl(0, kk, mi)()
    if OPT.get("dep", 0): poll()
    for mi in range(4): xl(1, 0, mi)()
    dslow = []
    acc = lambda mi, nt: ACC + 4 * (5 * mi + nt)
    def pwrite(mi, nt):
        a.lds(f"ds_write_b128 v{10+(mi>>1)}, {vr(acc(mi,nt),4)} offset:{1024*(5*(mi&1)+nt)}")
    def mf(u, kk, mi, nt):
        c = "0" if (u == 0 and kk == 0) else vr(acc(mi, nt), 4)
        a.e(f"v_mfma_f32_16x16x32_bf16 {vr(acc(mi,nt),4)}, {vr(wreg(u,kk,nt),4)}, {vr(xreg(u,kk,mi),4)}, {c}")
    def last(u):
        a.wait(vm=[("X", u, 0), ("X", u, 1)])
        tiles = [(mi, nt) for mi in range(4) for nt in range(5)]
        for i in range(0, 20, 2):
            for kk in range(2):
                for mi, nt in tiles[i:i+2]: mf(u, kk, mi, nt)
            if i >= 4:
                for t in tiles[i-4:i-2]: pwrite(*t)
        a.e("s_nop 3")
        for t in tiles[16:18]: pwrite(*t)
        a.e("s_nop 3")
        for t in tiles[18:20]: pwrite(*t)
    slow = []
    for u in range(11):
        if u == 7:
            a.e("s_cmp_lg_u32 s3, 1")
            a.e("s_cbranch_scc1 L_p2_nosw")
            a.e("v_mov_b32 v2, v1")
            a.e("v_add_u32 v3, 1024, v1")
            bases()
            a.lab("L_p2_nosw")
        if u == 8:
            a.e("s_cmp_eq_u32 s3, 1")
            a.e("s_cbranch_scc1 L_p2_fl")
            a.lab("L_p2_nofl")
        if u == 10:
            a.e("s_cmp_eq_u32 s3, 1")
            a.e("s_cbranch_scc1 L_p2_w1")
            vm10 = list(a.vm)
        if OPT.get("ust"): stamp(a, 12 + u)
        fill = {i: [] for i in range(40)}
        if u >= 1:
            lab = f"L_p2_r{u+1}"
            fill[0].append(lambda: a.wait(lg=["rdy"]))
            fill[0].append(lambda u=u: a.e(f"v_cmp_gt_u32 vcc, {u+2}, v9"))
            fill[1].append(lambda lab=lab: (a.e(f"s_cbranch_vccnz {lab}a"), a.lab(lab + "b")))
            slow.append((lab, u + 2))
            for i, (ins, tag) in enumerate(pulls(u + 1)):
                fill[2 + 2 * i].append(lambda ins=ins, tag=tag: a.lds(ins, tag))
            fill[30].append(lambda u=u: a.wait(lg=[("W", u + 1)]))
            if u <= 8:
                fill[30].append(lambda u=u: a.e(f"v_mov_b32 v13, {u+2}"))
                fill[31].append(lambda: a.lds("ds_write_b32 v12, v13 offset:16"))
        for mi in range(4): fill[3 + 4 * mi].append(xl(u + 1, 1, mi))
        if u + 2 < 12:
            dl = f"L_p2_d{u+2}"
        if u + 2 < 12 and OPT.get("dep", 0):
            fill[20].append(lambda: a.e(f"v_cmp_ne_u32 vcc, s{sTAG}, v245"))
            fill[20].append(lambda u=u: a.e(need(u + 2)))
            fill[21].append(lambda: (a.e("s_ff1_i32_b64 s83, vcc"), a.e("s_cmp_lt_u32 s83, s82")))
            fill[22].append(lambda dl=dl: (a.e(f"s_cbranch_scc1 {dl}a"), a.lab(dl + "b")))
            dslow.append(dl)
            if u + 3 < 12: fill[22].append(poll)
        if u + 2 < 12:
            for mi in range(4): fill[21 + 4 * mi].append(xl(u + 2, 0, mi))
            fill[34].append(lambda: a.lds("ds_read_b32 v9, v12", "rdy"))
        i = 0
        for kk in range(2):
            a.wait(vm=[("X", u, kk)] + (["poll"] if kk else []))
            for nt in range(5):
                for mi in range(4):
                    mf(u, kk, mi, nt)
                    for f in fill[i]: f()
                    i += 1
    if OPT.get("ust"): stamp(a, 23)
    last(11)
    a.lab("L_p2_end")
    stamp(a, 10)
    a.e("s_waitcnt lgkmcnt(0)")
    a.bar()
    stamp_flush(a)
    a.e("s_endpgm")
    a.lab("L_p2_w1")
    a.vm = vm10; a.lg = []
    last(10)
    a.e("s_branch L_p2_end")
    a.lab("L_p2_fl")
    a.e("v_add_u32 v240, 40960, v1")
    a.e(f"v_add_u32 v241, s{sPIT}, v240")
    a.e(f"v_add_u32 v242, s{sPIT}, v241")
    a.e(f"s_cmp_lt_u32 s{sGI}, 10")
    a.e(f"s_cselect_b32 s{sT0}, {147456-40960-5120}, 0")
    a.e(f"s_add_u32 s{sT0}, s{sT0}, 5120")
    a.e(f"v_add_u32 v243, s{sT0}, v240")
    for nt in range(5):
        for mi in range(4):
            a.e(f"ds_write_b128 v{240+mi}, {vr(acc(mi,nt),4)} offset:{1024*nt}")
    a.e("s_waitcnt lgkmcnt(0)")
    for i in range(80): a.e(f"v_mov_b32 v{ACC+i}, 0")
    a.e("s_nop 1")
    a.e("s_branch L_p2_nofl")
    for dl in dslow:
        pollsync(dl + "a", dl + "b")
        a.e(f"s_branch {dl}b")
    for lab, val in slow:
        a.lab(lab + "a")
        a.e("ds_read_b32 v9, v12")
        a.e("s_waitcnt lgkmcnt(0)")
        a.e(f"v_cmp_gt_u32 vcc, {val}, v9")
        a.e(f"s_cbranch_vccz {lab}b")
        if OPT.get("csl"): a.e(f"s_sleep {OPT['csl']}")
        a.e("s_add_u32 s67, s67, 1")
        a.e("s_cmp_lt_u32 s67, 0x2000000")
        a.e(f"s_cbranch_scc1 {lab}a")
        a.e(f"s_branch {lab}b")

def helper(a, M):
    ffn = M is FFN
    nm = M.name
    XV, WV = 16, 24
    srd(a, rX, pX, L * D * 2)
    a.e("v_lshrrev_b32 v2, 3, v0")
    a.e("v_and_b32 v3, 7, v0")
    a.e("v_lshrrev_b32 v4, 4, v0")
    a.e("v_xor_b32 v3, v3, v4")
    a.e("v_lshlrev_b32 v3, 4, v3")
    a.e("v_xor_b32 v4, 64, v3")
    if ffn:
        a.e("v_mov_b32 v5, v2")
    else:
        a.e("v_lshrrev_b32 v5, 2, v2")
        a.e("v_lshlrev_b32 v5, 4, v5")
        a.e("v_and_b32 v6, 1, v2")
        a.e("v_lshl_add_u32 v5, v6, 3, v5")
        a.e("v_bfe_u32 v6, v2, 1, 1")
        a.e("v_add_u32 v5, v5, v6")
    a.e(f"s_lshl_b32 s{sT0}, s{sM}, 8")
    a.e(f"s_lshl_b32 s{sT1}, s{sHW}, 6")
    a.e(f"s_add_u32 s{sT0}, s{sT0}, s{sT1}")
    a.e(f"v_add_u32 v5, s{sT0}, v5")
    a.e("v_mul_u32_u24 v5, 1280, v5")
    a.e("v_add_u32 v6, v5, v3")
    a.e("v_add_u32 v7, v5, v4")
    for i in range(8):
        rows = 8 * i if ffn else 32 * (i & 1) + 2 * (i >> 1)
        a.e(f"v_add_u32 v{XV+i}, {rows*1280}, v{6+(i&1)}")
    a.e(f"s_cmp_ge_u32 s{sHW}, 2")
    if ffn:
        a.e(f"s_cselect_b32 s{rW}, s{pW3}, s{pW1}")
        a.e(f"s_cselect_b32 s{rW+1}, s{pW3+1}, s{pW1+1}")
        a.e(f"s_mov_b32 s{rW+2}, {D*F*2}")
        a.e(f"s_mov_b32 s{rW+3}, 0x00020000")
        a.e(f"s_sub_u32 s{sG}, s{sGI}, 10")
        a.e(f"s_mul_i32 s{sT0}, s{sG}, 160")
        a.e(f"s_min_u32 s{sT0}, s{sT0}, 3296")
        a.e(f"s_and_b32 s{sT1}, s{sHW}, 1")
        a.e(f"s_mul_i32 s{sT1}, s{sT1}, {32*3456}")
        a.e(f"s_add_u32 s{sT0}, s{sT0}, s{sT1}")
        for n in range(5):
            a.e(f"v_add_u32 v8, {64*n}, v0")
            a.e("v_mul_u32_u24 v9, 6554, v8")
            a.e("v_lshrrev_b32 v9, 16, v9")
            a.e("v_mul_u32_u24 v10, 10, v9")
            a.e("v_sub_u32 v10, v8, v10")
            a.e("v_mul_u32_u24 v9, 3456, v9")
            a.e("v_lshl_add_u32 v9, v10, 4, v9")
            a.e(f"v_add_u32 v{WV+n}, s{sT0}, v9")
        a.e(f"s_mul_i32 s{sLB}, s{sHW}, 5120")
        NW = 5; WSTEP = 64 * 3456
    else:
        a.e(f"s_cselect_b32 s{rW}, s{pBIM}, s{pBRE}")
        a.e(f"s_cselect_b32 s{rW+1}, s{pBIM+1}, s{pBRE+1}")
        a.e(f"s_mov_b32 s{rW+2}, {P*D*2}")
        a.e(f"s_mov_b32 s{rW+3}, 0x00020000")
        a.e(f"s_mov_b32 s{sG}, s{sGI}")
        a.e(f"s_lshl_b32 s{sT0}, s{sG}, 6")
        a.e(f"s_and_b32 s{sT1}, s{sHW}, 1")
        a.e(f"s_lshl_b32 s{sT1}, s{sT1}, 5")
        a.e(f"s_add_u32 s{sT0}, s{sT0}, s{sT1}")
        a.e(f"v_add_u32 v5, s{sT0}, v2")
        a.e("v_mul_u32_u24 v5, 1280, v5")
        a.e("v_add_u32 v6, v5, v3")
        a.e("v_add_u32 v7, v5, v4")
        for n in range(4):
            a.e(f"v_add_u32 v{WV+n}, {8*n*1280}, v{6+(n&1)}")
        a.e(f"s_lshl_b32 s{sLB}, s{sHW}, 12")
        NW = 4; WSTEP = 128
    a.e(f"s_lshl_b32 s77, s{sHW}, 13")
    def issue_w(ls, i, so=None, tag=None):
        base = (ls % 3) * M.slot
        a.e(f"s_add_u32 m0, s{sLB}, {base+M.woff+1024*i}")
        a.e("s_nop 0"); so = so or sWO
        a.vmem(f"buffer_load_dwordx4 v{WV+i}, {sq(rW)}, s{so} offen lds", tag or ("S", ls))
    def issue_x(ls, i):
        base = (ls % 3) * M.slot
        a.e(f"s_add_u32 m0, s77, {base+1024*i}")
        a.e("s_nop 0")
        a.vmem(f"buffer_load_dwordx4 v{XV+i}, {sq(rX)}, s{sXO} offen lds", ("S", ls))
    def issue_stage(ls, w=True, x=True, part=None):
        ops = []
        for i in range(8):
            if i < NW and w: ops.append((issue_w, i))
            if x: ops.append((issue_x, i))
        h = OPT.get("half", 6)
        if part == 0: ops = ops[:h]
        if part == 1: ops = ops[h:]
        a.e(f"s_movk_i32 s{sXO}, {128*ls}")
        a.e(f"s_mov_b32 s{sWO}, {WSTEP*ls}")
        for f, i in ops: f(ls, i)
    stamp(a, 4)
    issue_stage(0)
    stamp(a, 5)
    if not ffn:
        a.e(f"s_lshl_b32 s{sT0}, s{sG}, 13")
        a.e(f"s_add_u32 s{sT0}, s{sT0}, {hex(AGG_OFF)}")
        srd(a, rB, pWS, 8192, add=f"s{sT0}")
        a.e(f"s_lshl_b32 s79, s{sM}, 10")
    a.e("s_waitcnt lgkmcnt(0)")
    a.e(f"s_add_u32 s{sTAG}, s{sTAG}, 0x9E3779B1")
    issue_stage(1, part=0)
    stamp(a, 6)
    CF, CA, ONE = 40, 64, 36
    for i in range(4): a.e(f"v_mov_b32 v{ONE+i}, 0x3f803f80")
    a.e("v_lshrrev_b32 v9, 4, v0")
    if ffn:
        a.e("v_bfe_u32 v8, v0, 2, 2")
        a.e("v_lshl_add_u32 v8, v9, 2, v8")
        a.e("v_mul_u32_u24 v8, 160, v8")
        a.e("v_and_b32 v10, 3, v0")
        a.e("v_lshl_add_u32 v8, v10, 3, v8")
    else:
        a.e("v_and_b32 v10, 15, v0")
        a.e("v_lshlrev_b32 v8, 7, v10")
        a.e("v_bfe_u32 v10, v0, 1, 3")
        a.e("v_xor_b32 v10, v10, v9")
        a.e("v_lshl_add_u32 v8, v10, 4, v8")
    a.e(f"s_add_u32 s{sT0}, s{sLB}, {M.woff}")
    a.e(f"v_add_u32 v8, s{sT0}, v8")
    a.e(f"v_add_u32 v11, {2*M.slot}, v8")
    if not ffn:
        a.e("v_xor_b32 v13, 64, v8")
        a.e("v_xor_b32 v14, 64, v11")
    for i in range(20): a.e(f"v_mov_b32 v{CA+i}, 0")
    def colsum(st):
        reg, off = (8, st * M.slot) if st < 2 else (11, 0)
        n = 5 if ffn else 4
        for t in range(n):
            if ffn:
                a.lds(f"ds_read_b64_tr_b16 {vr(CF+4*t,2)}, v{reg} offset:{off+32*t}", ("c", t))
                a.lds(f"ds_read_b64_tr_b16 {vr(CF+4*t+2,2)}, v{reg} offset:{off+32*t+2560}", ("c", t))
            else:
                r2 = reg if t < 2 else {8: 13, 11: 14}[reg]
                a.lds(f"ds_read_b128 {vr(CF+4*t,4)}, v{r2} offset:{off+2048*(t&1)}", ("c", t))
        for t in range(n):
            a.wait(lg=[("c", t)])
            c = vr(CA + 4 * (t if ffn else t & 1), 4)
            a.e(f"v_mfma_f32_16x16x32_bf16 {c}, {vr(ONE,4)}, {vr(CF+4*t,4)}, {c}")
    srd(a, rC, pWS, 32 * 32768, add=hex(CS_OFF))
    a.e(f"s_lshl_b32 s{sT2}, s{sGI}, 15")
    a.e(f"s_lshl_b32 s{sT1}, s{sM}, {12 if ffn else 11}")
    a.e(f"s_add_u32 s{sT2}, s{sT2}, s{sT1}")
    a.e(f"s_lshr_b32 s{sT1}, s{sHW}, 1")
    a.e(f"s_lshl_b32 s{sT1}, s{sT1}, 10")
    a.e(f"s_add_u32 s{sT2}, s{sT2}, s{sT1}")
    a.e(f"s_and_b32 s{sT1}, s{sHW}, 1")
    a.e(f"s_lshl_b32 s{sT1}, s{sT1}, {11 if ffn else 8}")
    a.e(f"s_add_u32 s78, s{sT2}, s{sT1}")
    if OPT.get("dbl", 0):
        a.e(f"s_and_b32 s87, s{sM}, 3")
        a.e("s_lshl_b32 s87, s87, 1")
        a.e(f"s_lshr_b32 s{sT0}, s{sM}, 2")
        a.e(f"s_add_u32 s87, s87, s{sT0}")
        a.e("s_add_u32 s87, s87, 2")
        a.e("s_xor_b32 s86, s87, 1")
        a.e(f"s_mul_i32 s86, s86, {WSTEP}")
        a.e(f"s_mul_i32 s87, s87, {WSTEP}")
        a.e(f"v_readfirstlane_b32 s85, v{WV}")
        if ffn:
            a.e("v_lshrrev_b32 v29, 1, v0")
            a.e("v_mul_u32_u24 v29, 3456, v29")
            a.e("v_and_b32 v30, 1, v0")
            a.e("v_mul_u32_u24 v30, 156, v30")
            a.e("v_add3_u32 v29, v29, v30, s85")
        else:
            a.e("v_and_b32 v29, 31, v0")
            a.e("v_mul_u32_u24 v29, 1280, v29")
            a.e("v_add_u32 v29, s85, v29")
    else:
        a.e(f"s_add_u32 s87, s{sM}, 2")
        a.e(f"s_mul_i32 s87, s87, {WSTEP}")
    a.e("v_lshlrev_b32 v9, 2, v0")
    a.e("v_lshlrev_b32 v12, 3, v0")
    a.e(f"s_lshl_b32 s{sT0}, s{sHW}, 2")
    a.e(f"s_add_u32 s{sT0}, s{sT0}, s{sSYN}")
    a.e(f"v_mov_b32 v15, s{sT0}")
    a.e(f"v_mov_b32 v251, s{sSYN}")
    a.e("v_mov_b32 v252, v4")
    a.e("v_mov_b32 v32, 0")
    for o in (0, 16, 32, 48): a.e(f"ds_write_b32 v15, v32 offset:{o}")
    def rdy(n):
        a.e(f"v_mov_b32 v253, {n}")
        a.e("ds_write_b32 v15, v253 offset:32")
        stamp(a, 11 + n)
    if ffn and OPT.get("relb", 4) == 1:
        a.e("s_mov_b32 s9, s87")
        relay_start(a, M, regs=True)
        a.e("s_mov_b32 s10, s87")
        a.e("s_mov_b32 s87, s9")
        a.vm.append("rl")
    a.wait(vm=[("S", 0)])
    a.e("s_waitcnt lgkmcnt(0)")
    stamp(a, 12)
    a.bar()
    stamp(a, 1)
    def cs_publish():
      if True:
        for t in range(1, 4 if ffn else 2):
            m = 0xffff << (16 * t)
            a.e(f"s_mov_b32 exec_lo, {hex(m & 0xffffffff)}")
            a.e(f"s_mov_b32 exec_hi, {hex(m >> 32)}")
            a.e(f"v_mov_b32 v{CA}, v{CA+4*t}")
        a.e("s_mov_b64 exec, -1")
        a.e(f"v_mov_b32 v{CA+1}, s{sTAG}")
        a.e(f"v_mov_b32 v{CA+17}, s{sTAG}")
        if ffn:
            a.vmem(f"buffer_store_dwordx2 {vr(CA,2)}, v12, {sq(rC)}, s78 offen sc1", "cs")
            a.e("s_mov_b64 exec, 0xffff")
            a.vmem(f"buffer_store_dwordx2 {vr(CA+16,2)}, v12, {sq(rC)}, s78 offen offset:512 sc1", "cs")
        else:
            a.e("s_mov_b32 exec_hi, 0")
            a.vmem(f"buffer_store_dwordx2 {vr(CA,2)}, v12, {sq(rC)}, s78 offen sc1", "cs")
        a.e("s_mov_b64 exec, -1")
    r0 = 2 if ffn else 3
    if OPT.get("s2f", 0):
        issue_stage(1, part=1)
        issue_stage(2, part=0)
        a.wait(vm=[("S", 1)])
        rdy(2)
        issue_stage(2, part=1)
        a.e(f"s_cmp_lg_u32 s{sM}, 0")
        a.e(f"s_cbranch_scc1 L_h{nm}_cs0")
        colsum(0)
        colsum(1)
        a.lab(f"L_h{nm}_cs0")
        fre1_wait(a, 1, f"L_h{nm}_f3")
        for i in range(NW): issue_w(3, i, so=87, tag="slab")
        a.wait(vm=[("S", 2)])
        rdy(3)
        issue_stage(3, w=False)
        a.wait(vm=["slab"])
        colsum(0)
        issue_stage(3, x=False)
        cs_publish()
    else:
        issue_stage(1, part=1)
        for i in range(NW): issue_w(2, i, so=87, tag="slab")
        if ffn and OPT.get("relb", 4) == 1: a.e("s_mov_b32 s87, s10")
        a.wait(vm=[("S", 1)])
        rdy(2)
        if ffn and OPT.get("relb", 4) == 2:
            relay_start(a, M, regs=True)
            a.vm.append("rl")
        if OPT.get("dbl", 0) == 1: a.vmem(f"buffer_load_dword v31, v29, {sq(rW)}, s86 offen")
        issue_stage(2, w=False)
        if OPT.get("dbl", 0) == 2: a.vmem(f"buffer_load_dword v31, v29, {sq(rW)}, s86 offen")
        a.e(f"s_cmp_lg_u32 s{sM}, 0")
        a.e(f"s_cbranch_scc1 L_h{nm}_cs0")
        colsum(0)
        colsum(1)
        a.lab(f"L_h{nm}_cs0")
        a.wait(vm=["slab"])
        colsum(2)
        issue_stage(2, x=False)
        if OPT.get("dbl", 0) == 3: a.vmem(f"buffer_load_dword v31, v29, {sq(rW)}, s86 offen")
        cs_publish()
    srd(a, rD, pWS, 65536, add=hex(ST1_OFF))
    if ffn:
        a.e("v_lshlrev_b32 v10, 5, v0")
    else:
        a.e("v_bfe_u32 v10, v0, 2, 2")
        a.e("v_lshlrev_b32 v10, 4, v10")
        a.e("v_and_b32 v30, 1, v0")
        a.e("v_lshl_add_u32 v10, v30, 3, v10")
        a.e("v_lshrrev_b32 v30, 4, v0")
        a.e("v_lshl_add_u32 v10, v30, 1, v10")
        a.e("v_bfe_u32 v30, v0, 1, 1")
        a.e("v_add_u32 v10, v10, v30")
        a.e("v_lshlrev_b32 v10, 5, v10")
    a.e(f"s_lshl_b32 s18, s{sM}, 13")
    a.e(f"s_lshl_b32 s{sT1}, s{sHW}, 11")
    a.e(f"s_add_u32 s18, s18, s{sT1}")
    a.e(f"s_lshl_b32 s19, s{sGI}, 15")
    a.e(f"s_lshl_b32 s{sT1}, s{sHW}, 9")
    if ffn:
        a.e(f"s_add_u32 s19, s19, s{sT1}")
        a.e(f"s_bitcmp1_b32 s{sHW}, 0")
        a.e(f"s_cselect_b32 s{sT2}, 0x78, -1")
        a.e(f"v_and_b32 v13, s{sT2}, v12")
    else:
        a.e(f"s_and_b32 s{sT2}, s{sT1}, 0x400")
        a.e(f"s_add_u32 s19, s19, s{sT2}")
        a.e("v_mov_b32 v13, v12")
    NP = 16 if ffn else 8
    def gather(track):
        f = a.vmem if track else (lambda ins, tag: a.e(ins))
        f(f"buffer_load_dwordx4 v[32:35], v10, {sq(rD)}, s18 offen sc1", "g")
        for p in range(NP):
            if p % 2 == 0: a.e(f"s_add_u32 s{sT0}, s19, {2048*p}")
            f(f"buffer_load_dwordx2 {vr(208+2*p,2)}, v13, {sq(rC)}, s{sT0} offen offset:{2048*(p&1)} sc1", "g")
    def tables():
        a.wait(vm=["g"])
        a.e(f"s_mov_b32 s{sT3}, 0")
        a.lab(f"L_h{nm}_g")
        a.e(f"v_xor_b32 v36, s{sTAG}, v33")
        a.e(f"v_xor_b32 v37, s{sTAG}, v35")
        a.e("v_or_b32 v36, v36, v37")
        for p in range(NP):
            a.e(f"v_xor_b32 v37, s{sTAG}, v{209+2*p}")
            a.e("v_or_b32 v36, v36, v37")
        a.e("v_cmp_ne_u32 vcc, 0, v36")
        a.e(f"s_cbranch_vccz L_h{nm}_gok")
        a.e("s_sleep 4")
        gather(False)
        a.e("s_waitcnt vmcnt(0)")
        a.e(f"s_add_u32 s{sT3}, s{sT3}, 1")
        a.e(f"s_cmp_lt_u32 s{sT3}, 0x200000")
        a.e(f"s_cbranch_scc1 L_h{nm}_g")
        a.lab(f"L_h{nm}_gok")
        a.e(f"s_lshl_b32 s{sT1}, s{sHW}, 8")
        if ffn:
            a.e(f"s_lshl_b32 s{sT0}, s{sHW}, 9")
            a.e(f"s_add_u32 s{sT0}, s{sT0}, {M.tab_st}")
            a.e(f"v_add_u32 v10, s{sT0}, v12")
            a.e("v_mov_b32 v33, v34")
            a.e("ds_write_b64 v10, v[32:33]")
        else:
            a.e("v_rcp_f32 v33, v34")
            a.e(f"s_add_u32 s{sT0}, s{sT1}, {M.tab_rs}")
            a.e(f"v_add_u32 v10, s{sT0}, v9")
            a.e("v_mul_f32 v32, v32, v33")
            a.e("ds_write_b32 v10, v33")
            a.e("ds_write_b32 v10, v32 offset:1024")
        for p in range(1, NP):
            a.e(f"v_add_f32 v208, v208, v{208+2*p}")
        a.e(f"s_add_u32 s{sT0}, s{sT1}, {M.tab_cs}")
        a.e(f"v_add_u32 v10, s{sT0}, v9")
        a.e("ds_write_b32 v10, v208")
        a.e("s_waitcnt lgkmcnt(0)")
    RB_ = OPT.get("relb", 4); RD_ = OPT.get("reld", 2)
    for b in range(4 if OPT.get('s2f', 0) else 3, 10):
        fre1_wait(a, b - 2, f"L_h{nm}_f{b}")
        if r0 == 2 and b == RB_ + RD_:
            a.e(f"s_movk_i32 s{sXO}, {128*b}")
            a.e(f"s_mov_b32 s{sWO}, {WSTEP*b}")
            for i in range(NW): issue_w(b, i)
            for i in range(5, 8): issue_x(b, i)
            if RD_ == 1:
                a.wait(vm=[("S", b - 1)])
                rdy(b)
            a.wait(vm=["rl"])
            sv = list(a.vm)
            relay_finish(a, M, slot=b % 3, regs=True, mid=(lambda: None) if RD_ == 1 else (lambda: (a.wait(vm=[("S", b - 1)]), rdy(b))))
            for i in range(5): issue_x(b, i)
        else:
            issue_stage(b, part=0)
            a.wait(vm=[("S", b - 1)])
            rdy(b)
            issue_stage(b, part=1)
        if ffn and b == 9 - OPT.get("fe", 0):
            pass
        if ffn and b == 8 and OPT.get('early'):
            a.e("v_min_u32 v11, 53, v0")
            a.e("v_lshlrev_b32 v11, 7, v11")
            a.e(f"s_lshl_b32 s{sT0}, s{sNG}, 13")
            a.vmem(f"buffer_load_dword v47, v11, {sq(rA)}, s{sT0} offen sc1", "fl")
        if not ffn and b == OPT.get("stch", 6):
            a.e(f"s_lshl_b32 s{sT2}, s{sG}, 3")
            a.e(f"s_add_u32 s{sT2}, s{sT2}, s{sM}")
            a.e(f"s_lshl_b32 s{sT2}, s{sT2}, 1")
            a.e(f"s_and_b32 s{sT1}, s{sHW}, 1")
            a.e(f"s_add_u32 s{sT2}, s{sT2}, s{sT1}")
            a.e(f"s_mul_i32 s{sT0}, s{sT2}, {40*128}")
            a.e(f"s_cmp_lt_u32 s{sHW}, 2")
            a.e(f"s_cselect_b32 s80, s{pCRE}, s{pCIM}")
            a.e(f"s_cselect_b32 s81, s{pCRE+1}, s{pCIM+1}")
            a.e(f"s_mov_b32 s82, {D*P*2}")
            a.e(f"s_mov_b32 s83, 0x00020000")
            a.e("v_min_u32 v5, 39, v0")
            a.e("v_lshlrev_b32 v5, 7, v5")
            a.vmem(f"buffer_load_dword v31, v5, {sq(80)}, s{sT0} offen")
        if r0 == 2 and b == RB_:
            relay_start(a, M, regs=True)
            a.vm.append("rl")
        if (b == 3 and not r0) or (r0 == 2 and b == RB_ + RD_ + 1):
            a.e(f"v_mov_b32 v253, s{sTAG}")
            a.e("s_mov_b32 exec_hi, 0")
            a.vmem(f"buffer_store_dword v253, v9, {sq(rA)}, s89 offen sc1")
            a.e("s_mov_b64 exec, -1")
    gather(True)
    p2_helper_setup(a)
    if ffn and not OPT.get("early"):
        a.wait(vm=[("S", 9)])
        rdy(10)
        if OPT.get("early2"):
            a.e(f"s_cmp_ge_u32 s{sHW}, 2")
            a.e(f"s_cbranch_scc1 L_h{nm}_c1")
            sv = list(a.vm)
            p2_load(a, 2)
            a.vm = sv
            a.lab(f"L_h{nm}_c1")
        tables()
        rdy(11)
        xr_loads(a)
        a.e(f"s_cmp_lt_u32 s{sHW}, 2")
        a.e(f"s_cbranch_scc1 L_h{nm}_c")
        wb_switch(a, nm)
        if OPT.get("early2"): p2_load(a, 2)
        a.lab(f"L_h{nm}_c")
        a.reset()
        order = (0, 1, 3, 4, 5, 6) if OPT.get("early2") else (0, 1, 2, 3, 4, 5, 6)
    elif ffn:
        a.e(f"s_cmp_lt_u32 s{sHW}, 2")
        a.e(f"s_cbranch_scc1 L_h{nm}_c0")
        wb_switch(a, nm, early=True)
        a.lab(f"L_h{nm}_c0")
        p2_load(a, 2)
        a.wait(vm=[("S", 9)])
        rdy(10)
        p2_load(a, 3)
        tables()
        rdy(11)
        order = (0, 1, 4, 5, 6)
    else:
        a.wait(vm=[("S", 9)])
        rdy(10)
        tables()
        rdy(11)
        xr_loads(a)
        a.e(f"s_cmp_lt_u32 s{sHW}, 2")
        a.e(f"s_cbranch_scc1 L_h{nm}_c")
        ssm_exchange(a)
        lds_wait_ge(a, 251, 40, 12, "L_hssm_pause", tmp=253)
        lds_wait_ge(a, 251, 44, 12, "L_hssm_pause2", tmp=253)
        wb_switch(a, nm)
        a.lab(f"L_h{nm}_c")
        a.reset()
        order = (2, 0, 3, 1, 4, 5, 6)
    for u in order:
        if u < 2: fre1_wait(a, 8 + u, f"L_h{nm}_e{u}")
        p2_load(a, u)
        if u == 4:
            a.wait(vm=[("U", 0), ("U", 1)])
            a.e("v_mov_b32 v253, 2")
            a.e("ds_write_b32 v15, v253")
    stamp(a, 3)
    a.e("s_branch L_h_p2")

sB0, sSTEP = 4, 5
RC = 48
XR, DR = 26, 36
def p2_helper_setup(a):
    lab = len(a.l)
    perm_table(a, f"s{sHW}")
    a.e("s_mov_b32 s27, 0x00020000")
    a.e(f"s_mul_i32 s6, s{sHW}, 10240")
    a.e(f"s_add_u32 s7, s6, s{sPIT}")
    a.e(f"s_add_u32 s8, s7, s{sPIT}")
    for i in range(3): a.e(f"v_add_u32 v{248+i}, s{6+i}, v1")
    srd(a, rX, pCRE, D * P * 2)
    srd(a, rW, pCIM, D * P * 2)
    a.e(f"s_mul_i32 s{sT5}, s{sNG}, 80")
    a.e(f"v_add_u32 v5, s{sT5}, v2")
    a.e("v_mul_u32_u24 v5, 1280, v5")
    a.e("v_add_u32 v6, v5, v3")
    a.e("v_add_u32 v7, v5, v252")
    for i in range(10):
        a.e(f"v_add_u32 v{16+i}, {8*i*1280}, v{6+(i&1)}")
    a.e(f"s_mul_i32 s{sB0}, s{sHW}, 768")
    a.e(f"s_movk_i32 s{sSTEP}, 128")

NDMA = lambda: OPT.get('ndma', 10)
def xr_loads(a):
    a.e("s_load_dwordx2 s[12:13], s[0:1], 0")
    a.e("s_load_dwordx2 s[10:11], s[0:1], 64")
    srd(a, rD, pWS, 65536, add=hex(ST1_OFF))
    a.e(f"s_lshl_b32 s{sT0}, s{sMT}, 6")
    a.e(f"s_lshl_b32 s{sT1}, s{sHW}, 4")
    a.e(f"s_add_u32 s{sT0}, s{sT0}, s{sT1}")
    a.e(f"s_mul_i32 s{sT1}, s{sT0}, 1280")
    a.e(f"s_mul_i32 s{sT2}, s{sNG}, 160")
    a.e(f"s_add_u32 s{sT1}, s{sT1}, s{sT2}")
    a.e(f"s_lshl_b32 s77, s{sT1}, 1")
    a.e(f"s_lshl_b32 s78, s{sT0}, 5")
    a.e("v_and_b32 v5, 15, v0")
    a.e("v_lshrrev_b32 v6, 4, v0")
    a.e("v_mul_u32_u24 v14, 2560, v5")
    a.e("v_lshl_add_u32 v14, v6, 4, v14")
    a.e("v_lshlrev_b32 v13, 5, v5")
    a.e("s_waitcnt lgkmcnt(0)")
    srd(a, rC, 12, L * D * 2)
    for n in range(3):
        a.e(f"v_add_u32 v5, {64*n}, v0")
        if n == 2: a.e("v_min_u32 v5, 159, v5")
        a.e("v_mul_u32_u24 v6, 6554, v5")
        a.e("v_lshrrev_b32 v6, 16, v6")
        a.e("v_mul_u32_u24 v6, 1120, v6")
        a.e("v_lshl_add_u32 v6, v5, 4, v6")
        a.vmem(f"buffer_load_dwordx4 {vr(28+4*n,4)}, v6, {sq(rC)}, s{sT1} offen", "xr")
    srd(a, rC, 10, D * 2)
    a.e("v_min_u32 v5, 9, v0")
    a.e("v_lshlrev_b32 v5, 4, v5")
    a.vmem(f"buffer_load_dwordx4 v[40:43], v5, {sq(rC)}, s{sT2} offen", "xr")
    a.vmem(f"buffer_load_dwordx4 v[44:47], v13, {sq(rD)}, s78 offen sc1", "xr")

def xr_finish(a):
    e = 248 + ent(2)
    for n in range(4): a.e(f"ds_write_b128 v{e}, {vr(28+4*n,4)} offset:{1024*n}")
    a.e("v_and_b32 v5, 15, v0")
    a.e("v_lshrrev_b32 v6, 4, v0")
    a.e("v_lshlrev_b32 v6, 3, v6")
    a.e(f"v_add_u32 v6, s{6+ent(2)}, v6")
    a.e("v_mul_u32_u24 v5, 160, v5")
    a.e("v_add_u32 v5, v5, v6")
    a.lab("L_xr_st")
    a.e(f"v_xor_b32 v8, s{sTAG}, v45")
    a.e(f"v_xor_b32 v9, s{sTAG}, v47")
    a.e("v_or_b32 v8, v8, v9")
    a.e("v_cmp_ne_u32 vcc, 0, v8")
    a.e("s_cbranch_vccz L_xr_ok")
    a.e(f"buffer_load_dwordx4 v[44:47], v13, {sq(rD)}, s78 offen sc1")
    a.e("s_waitcnt vmcnt(0)")
    a.e("s_add_u32 s67, s67, 16")
    a.e("s_cmp_lt_u32 s67, 0x2000000")
    a.e("s_cbranch_scc1 L_xr_st")
    a.lab("L_xr_ok")
    a.e("v_mov_b32 v8, v44")
    a.e("v_rcp_f32 v9, v46")
    a.e("s_waitcnt lgkmcnt(0)")
    for nt in range(5):
        a.e(f"ds_read_b64 {vr(XR+2*nt,2)}, v5 offset:{32*nt}")
        a.e(f"ds_read_b64 {vr(DR+2*nt,2)}, v6 offset:{3072+32*nt}")
    a.e(f"s_mov_b32 s{sT2}, 0xffff0000")
    a.e("s_waitcnt lgkmcnt(0)")

def xr_skip(a):
    for i in range(10):
        a.e(f"v_lshlrev_b32 v4, 16, v{XR+i}")
        a.e(f"v_and_b32 v5, s{sT2}, v{XR+i}")
        a.e("v_pk_add_f32 v[4:5], v[4:5], v[8:9] op_sel_hi:[1,0] neg_lo:[0,1] neg_hi:[0,1]")
        a.e("v_cvt_pk_bf16_f32 v5, v4, v5")
        a.e("v_lshlrev_b32 v4, 16, v5")
        a.e(f"v_and_b32 v5, s{sT2}, v5")
        a.e("v_pk_mul_f32 v[4:5], v[4:5], v[8:9] op_sel:[0,1] op_sel_hi:[1,1]")
        a.e("v_cvt_pk_bf16_f32 v5, v4, v5")
        a.e("v_lshlrev_b32 v4, 16, v5")
        a.e(f"v_and_b32 v5, s{sT2}, v5")
        a.e(f"v_lshlrev_b32 v6, 16, v{DR+i}")
        a.e(f"v_and_b32 v7, s{sT2}, v{DR+i}")
        a.e("v_pk_mul_f32 v[4:5], v[4:5], v[6:7]")
        a.e(f"v_cvt_pk_bf16_f32 v{DR+i}, v4, v5")

def p2_load(a, u):
    r = 24
    a.e(unit_of(sT5, u))
    a.e(f"s_bitcmp1_b32 s{sT5}, 0")
    a.e(f"s_cselect_b64 s[24:25], s[{rW}:{rW+1}], s[{rX}:{rX+1}]")
    a.e(f"s_cselect_b32 s26, s{rW+2}, s{rX+2}")
    a.e(f"s_lshr_b32 s{sT5}, s{sT5}, 1")
    a.e(f"s_mul_i32 s{sXO}, s{sSTEP}, s{sT5}")
    a.e(f"s_add_u32 s{sXO}, s{sXO}, s{sB0}")
    if OPT.get("woob"): a.e(f"s_mov_b32 s{sXO}, 0x7000000")
    if u == 11:
        a.e(f"s_cmp_eq_u32 s{sHW}, 1")
        a.e(f"s_cselect_b32 s{sXO}, 0x7000000, s{sXO}")
    for i in range(10):
        if u < 2 or u >= NDMA():
            a.e(f"s_add_u32 m0, s{6+ent(u)}, {1024*i}")
            a.e("s_nop 0")
            a.vmem(f"buffer_load_dwordx4 v{16+i}, {sq(r)}, s{sXO} offen sc1 lds", ("U", u))
        else:
            a.vmem(f"buffer_load_dwordx4 {vr(RC+40*((u-2)%5)+4*i,4)}, v{16+i}, {sq(r)}, s{sXO} offen sc1", ("U", u))

def relay_start(a, M, regs=False):
    nm = M.name
    srd(a, rA, pWS, 65536, add=hex(FL2_OFF))
    a.e(f"s_lshl_b32 s{sT2}, s{sG}, 3")
    a.e(f"s_add_u32 s{sT2}, s{sT2}, s{sM}")
    a.e(f"s_cmp_lt_u32 s{sHW}, 3")
    a.e(f"s_cbranch_scc1 L_rs_{nm}")
    a.e("s_mov_b32 s89, 0x7000000")
    srd(a, 80, pCRE, D * P * 2)
    a.e(f"s_mul_i32 s{sT0}, s{sT2}, 4736")
    if OPT.get("stch", 6) < 10: a.e(f"s_mov_b32 s{sT0}, 0x7000000")
    a.e("v_min_u32 v5, 36, v0")
    a.e("v_lshlrev_b32 v5, 7, v5")
    a.e(f"buffer_load_dword v31, v5, {sq(80)}, s{sT0} offen")
    if OPT.get("stch", 6) >= 10:
        a.e(f"s_mov_b32 s80, s{pCIM}")
        a.e(f"s_mov_b32 s81, s{pCIM+1}")
        a.e(f"buffer_load_dword v31, v5, {sq(80)}, s{sT0} offen")
    a.e(f"s_branch L_rs_{nm}x")
    a.lab(f"L_rs_{nm}")
    srd(a, 80, pW2, F * D * 2)
    a.e(f"s_lshl_b32 s{sT0}, s{sT2}, 1")
    a.e(f"s_add_u32 s{sT0}, s{sT0}, s{sHW}")
    a.e(f"s_add_u32 s{sT1}, s{sT2}, 352")
    a.e(f"s_cmp_eq_u32 s{sHW}, 2")
    a.e(f"s_cselect_b32 s{sT1}, s{sT1}, s{sT0}")
    a.e(f"s_min_u32 s{sT1}, s{sT1}, 480")
    a.e(f"s_cmp_ge_u32 s{sT1}, 432")
    a.e(f"s_cselect_b32 s{sT1}, 480, s{sT1}")
    a.e(f"s_lshr_b32 s{sT0}, s{sT1}, 3")
    a.e(f"s_and_b32 s87, s{sT1}, 7")
    a.e(f"s_lshr_b32 s88, s{sT0}, 1")
    a.e(f"s_mul_i32 s88, s88, 10240")
    a.e(f"s_and_b32 s{sT1}, s{sT0}, 1")
    a.e(f"s_lshl_b32 s{sT1}, s{sT1}, 10")
    a.e(f"s_add_u32 s88, s88, s{sT1}")
    a.e(f"s_lshl_b32 s89, s87, 6")
    a.e(f"s_add_u32 s89, s89, s{sT0}")
    a.e(f"s_lshl_b32 s89, s89, 7")
    a.e(f"s_mul_i32 s{sT1}, s{sT0}, 52")
    a.e(f"s_lshr_b32 s{sT1}, s{sT1}, 8")
    a.e(f"s_mul_i32 s{sT2}, s{sT1}, 5")
    a.e(f"s_sub_u32 s{sT2}, s{sT0}, s{sT2}")
    a.e(f"s_cmp_eq_u32 s{sT0}, 53")
    a.e(f"s_cselect_b32 s{sT2}, 4, s{sT2}")
    a.e(f"s_cselect_b32 s{sT5}, 48, 80")
    a.e(f"s_lshl_b32 s{sT3}, s{sT2}, 5")
    a.e(f"s_cmp_ge_u32 s{sT2}, 2")
    a.e(f"s_cselect_b32 s{sT4}, 16, 0")
    a.e(f"s_add_u32 s{sT3}, s{sT3}, s{sT4}")
    a.e(f"s_cmp_eq_u32 s{sT2}, 4")
    a.e(f"s_cselect_b32 s{sT3}, 64, s{sT3}")
    a.e(f"s_cselect_b32 s{sT4}, s{sT5}, 16")
    a.e(f"s_cselect_b32 s84, 3, 2")
    a.e(f"s_cselect_b32 s85, 4, 16")
    a.e(f"s_mul_i32 s{sT1}, s{sT1}, 160")
    a.e(f"s_add_u32 s{sT3}, s{sT3}, s{sT1}")
    a.e(f"s_sub_u32 s{sT4}, s{sT4}, 16")
    a.e(f"s_mul_i32 s{sT4}, s{sT4}, 1280")
    a.e(f"s_mul_i32 s86, s{sT3}, 1280")
    a.e(f"s_mul_i32 s{sT1}, s87, 160")
    a.e(f"s_add_u32 s86, s86, s{sT1}")
    a.e(f"v_mov_b32 v30, s{sT4}")
    for n in range(5):
        a.e(f"v_add_u32 v5, {64*n}, v0")
        a.e("v_mul_u32_u24 v6, 6554, v5")
        a.e("v_lshrrev_b32 v6, 16, v6")
        a.e("v_mul_u32_u24 v7, 10, v6")
        a.e("v_sub_u32 v7, v5, v7")
        a.e("v_cmp_lt_u32 vcc, 15, v6")
        a.e("v_mul_u32_u24 v6, 1280, v6")
        a.e("v_lshl_add_u32 v6, v7, 4, v6")
        a.e("v_cndmask_b32 v7, 0, v30, vcc")
        if not regs: a.e(f"s_add_u32 m0, s77, {2*M.slot+1024*n}")
        a.e("v_add_u32 v6, v6, v7")
        if regs: a.e(f"buffer_load_dwordx4 {vr(128+4*n,4)}, v6, {sq(80)}, s86 offen")
        else: a.e(f"buffer_load_dwordx4 v6, {sq(80)}, s86 offen lds")
    a.lab(f"L_rs_{nm}x")

def relay_finish(a, M, slot=2, regs=False, mid=None):
    nm = M.name
    a.e(f"s_cmp_eq_u32 s{sHW}, 3")
    a.e(f"s_cbranch_scc1 L_rf_{nm}")
    a.e("v_lshrrev_b32 v5, 4, v0")
    a.e("v_lshlrev_b32 v5, s84, v5")
    a.e("v_bfe_u32 v6, v0, 2, 2")
    a.e("v_add_u32 v5, v5, v6")
    a.e("v_add_u32 v6, s85, v5")
    a.e("v_and_b32 v7, 3, v0")
    a.e("v_lshlrev_b32 v7, 3, v7")
    a.e(f"s_add_u32 s{sT2}, s77, {slot*M.slot}")
    if regs:
        a.e(f"v_add_u32 v4, s{sT2}, v1")
        for n in range(5): a.e(f"ds_write_b128 v4, {vr(128+4*n,4)} offset:{1024*n}")
    a.e(f"v_add_u32 v7, s{sT2}, v7")
    a.e("v_mul_u32_u24 v5, 160, v5")
    a.e("v_mul_u32_u24 v6, 160, v6")
    a.e("v_add_u32 v5, v5, v7")
    a.e("v_add_u32 v6, v6, v7")
    for nt in range(5):
        a.e(f"ds_read_b64_tr_b16 {vr(96+4*nt,2)}, v5 offset:{32*nt}")
        a.e(f"ds_read_b64_tr_b16 {vr(98+4*nt,2)}, v6 offset:{32*nt}")
    a.e(f"s_mul_i32 s{sT4}, s87, {WB_SLAB}")
    a.e(f"s_add_u32 s{sT4}, s{sT4}, {hex(WB_OFF)}")
    srd(a, 80, pWS, WB_SLAB, add=f"s{sT4}")
    a.e(f"s_add_u32 s{sT0}, s88, 4096")
    a.e(f"s_add_u32 s{sT1}, s88, 8192")
    a.lab(f"L_rf_{nm}")
    mid()
    a.e(f"s_cmp_eq_u32 s{sHW}, 3")
    a.e(f"s_cbranch_scc1 L_rg_{nm}")
    a.e("s_waitcnt lgkmcnt(0)")
    for nt in range(5):
        so = (88, sT0, sT1)[nt >> 1]
        a.e(f"buffer_store_dwordx4 {vr(96+4*nt,4)}, v1, {sq(80)}, s{so} offen offset:{2048*(nt&1)} sc1")
    a.lab(f"L_rg_{nm}")

def wb_switch(a, tag, early=False):
    srd(a, rA, pWS, 65536, add=hex(FL2_OFF))
    a.e(f"s_mul_i32 s{sT4}, s{sNG}, {WB_SLAB}")
    a.e(f"s_add_u32 s{sT4}, s{sT4}, {hex(WB_OFF)}")
    srd(a, rX, pWS, WB_SLAB, add=f"s{sT4}")
    a.e(f"s_add_u32 s{sT4}, s{sT4}, 10240")
    srd(a, rW, pWS, WB_SLAB - 10240, add=f"s{sT4}")
    for i in range(10): a.e(f"v_add_u32 v{16+i}, {1024*i}, v1")
    a.e(f"s_mul_i32 s{sB0}, s{sHW}, {12*10240}")
    a.e(f"s_sub_u32 s{sB0}, s{sB0}, {20*10240}")
    a.e(f"s_lshr_b32 s{sT0}, s{sHW}, 1")
    a.e(f"s_mul_i32 s{sT0}, s{sT0}, 10240")
    a.e(f"s_sub_u32 s{sB0}, s{sB0}, s{sT0}")
    a.e(f"s_movk_i32 s{sSTEP}, 20480")
    if OPT.get("frng", 1):
        a.e(f"s_cmp_eq_u32 s{sHW}, 1")
        a.e(f"s_cselect_b32 s{sT2}, 5, 23")
        a.e(f"v_min_u32 v11, s{sT2}, v0")
        a.e("v_lshlrev_b32 v11, 7, v11")
        a.e(f"s_mul_i32 s{sT2}, s{sHW}, {24*128}")
        a.e(f"s_sub_u32 s{sT2}, s{sT2}, {42*128}")
        a.e(f"s_max_i32 s{sT2}, s{sT2}, 0")
        a.e(f"s_lshl_b32 s{sT0}, s{sNG}, 13")
        a.e(f"s_add_u32 s{sT0}, s{sT0}, s{sT2}")
    else:
        a.e("v_min_u32 v11, 53, v0")
        a.e("v_lshlrev_b32 v11, 7, v11")
        a.e(f"s_lshl_b32 s{sT0}, s{sNG}, 13")
    a.e(f"s_mov_b32 s{sT2}, 0")
    if early:
        sv = list(a.vm)
        a.wait(vm=["fl"])
        a.vm = sv
        a.e(f"v_cmp_ne_u32 vcc, s{sTAG}, v47")
        a.e(f"s_cbranch_vccz L_f2ok{tag}")
        a.e("s_waitcnt vmcnt(0)")
        a.e("v_mov_b32 v253, 10")
        a.e("ds_write_b32 v15, v253 offset:32")
        a.e("s_waitcnt lgkmcnt(0)")
    a.lab(f"L_f2{tag}")
    a.e(f"buffer_load_dword v253, v11, {sq(rA)}, s{sT0} offen sc1")
    a.e("s_waitcnt vmcnt(0)")
    a.e(f"v_cmp_ne_u32 vcc, s{sTAG}, v253")
    a.e(f"s_cbranch_vccz L_f2ok{tag}")
    a.e(f"s_sleep {OPT.get('fsleep', 8)}")
    a.e(f"s_add_u32 s{sT2}, s{sT2}, 1")
    a.e(f"s_cmp_lt_u32 s{sT2}, 0x200000")
    a.e(f"s_cbranch_scc1 L_f2{tag}")
    a.lab(f"L_f2ok{tag}")

def ssm_exchange(a):
    M = SSM
    EL = M.scr
    X = 64; LP = 60
    a.e("s_setprio 2")
    a.e("v_lshlrev_b32 v3, 3, v0")
    a.e(f"v_add_u32 v3, {EL}, v3")
    a.e(f"s_cmp_eq_u32 s{sHW}, 3")
    a.e("s_cbranch_scc1 L_x_gather")
    a.e(f"ds_read_b64 {vr(LP,2)}, v3 offset:9728")
    a.e(f"v_mov_b32 v97, s{sTAG}")
    a.e(f"v_mov_b32 v99, s{sTAG}")
    stamp(a, 23)
    fre1_wait(a, 11, "L_x_s1")
    stamp(a, 24)
    a.lg = []
    for s in range(16):
        a.lds(f"ds_read_b64 {vr(X+2*s,2)}, v3 offset:{512*s}", ("E", s))
    for s in range(1, 16):
        a.wait(lg=[("E", s)])
        cfma(a, X + 2 * s, LP, X + 2 * (s - 1), X + 2 * s, 58)
    a.e(f"v_mov_b32 v96, v{X+30}")
    a.e(f"v_mov_b32 v98, v{X+31}")
    a.e(f"buffer_store_dwordx4 v[96:99], v1, {sq(rB)}, s79 offen sc1")
    stamp(a, 25)
    a.e("v_mov_b32 v58, 0")
    a.e("v_mov_b32 v59, 0")
    a.e("ds_write_b64 v3, v[58:59]")
    for s in range(1, 16):
        a.e(f"ds_write_b64 v3, {vr(X+2*(s-1),2)} offset:{512*s}")
    a.e("s_branch L_x_done")
    a.lab("L_x_gather")
    a.e(f"ds_read_b64 {vr(LP,2)}, v3 offset:10240")
    for i in range(1, 8):
        a.e(f"s_sub_u32 s{sT1}, s79, {1024*i}")
        a.e(f"s_cmp_ge_u32 s{sM}, {i}")
        a.e(f"s_cselect_b32 s{79+i}, s{sTAG}, 0")
        a.e(f"s_cselect_b32 s{17+i}, s{sT1}, 0x10000")
    G = 100
    a.e(f"s_mov_b32 s{sT1}, 0")
    stamp(a, 23)
    fre1_wait(a, 10, "L_x_s0")
    stamp(a, 24)
    a.lab("L_x_poll")
    for i in range(1, 8):
        a.e(f"buffer_load_dwordx4 {vr(G+4*(i-1),4)}, v1, {sq(rB)}, s{17+i} offen sc1")
    a.e("s_waitcnt vmcnt(0)")
    a.e("v_mov_b32 v58, 0")
    for i in range(1, 8):
        a.e(f"v_xor_b32 v59, s{79+i}, v{G+4*(i-1)+1}")
        a.e(f"v_xor_b32 v57, s{79+i}, v{G+4*(i-1)+3}")
        a.e("v_or3_b32 v58, v58, v59, v57")
    a.e("v_cmp_ne_u32 vcc, 0, v58")
    a.e("s_cbranch_vccz L_x_ok")
    a.e(f"s_sleep {OPT.get('xsl', 3)}")
    a.e(f"s_add_u32 s{sT1}, s{sT1}, 1")
    a.e(f"s_cmp_lt_u32 s{sT1}, 0x200000")
    a.e("s_cbranch_scc1 L_x_poll")
    a.lab("L_x_ok")
    stamp(a, 25)
    for i in range(1, 8):
        a.e(f"v_mov_b32 v{G+4*(i-1)+1}, v{G+4*(i-1)+2}")
    for i in range(6, 0, -1):
        cfma(a, G + 4 * (i - 1), LP, G + 4 * i, G + 4 * (i - 1), 58)
    a.e(f"ds_write_b64 v3, {vr(G,2)} offset:8192")
    a.lab("L_x_done")
    a.e("v_mov_b32 v253, 12")
    a.e("ds_write_b32 v15, v253 offset:32")
    stamp(a, 27)
    a.e("s_setprio 0")
    a.e("s_waitcnt lgkmcnt(0)")
    a.lg = []

def helper_p2(a):
    a.lab("L_h_p2")
    a.vm = [("U", u) for u in range(2, 7) for i in range(10)]
    a.lg = []
    fre1_wait(a, 10, "L_h_e4")
    for u in range(2, 12):
        if u == 11:
            a.e(f"s_cmp_eq_u32 s{sHW}, 1")
            a.e("s_cbranch_scc1 L_h_fin")
        lds_wait_ge(a, 15, 16, max(u - 2, 1), f"L_h_fre{u}", tmp=253)
        if u == 2: xr_finish(a)
        if u >= NDMA():
            p2_load(a, u)
            a.wait(vm=[("U", u)])
        else:
            a.wait(vm=[("U", u)])
            for i in range(0 if OPT.get("nodsw") else 10):
                a.e(f"ds_write_b128 v{248+ent(u)}, {vr(RC+40*((u-2)%5)+4*i,4)} offset:{1024*i}")
        a.e(f"v_mov_b32 v253, {u+1}")
        a.e("ds_write_b32 v15, v253")
        if u == 3:
            a.e(f"s_cmp_lg_u32 s{sHW}, 1")
            a.e("s_cbranch_scc1 L_h_nosw")
            wb_switch(a, "b")
            a.lab("L_h_nosw")
        if u + 5 < NDMA():
            a.e("s_waitcnt lgkmcnt(0)")
            p2_load(a, u + 5)
    a.lab("L_h_fin")
    stamp(a, 9)
    srd(a, rD, pOUT, L * D * 4)
    STt, XF, SK = 8, RC + 8, RC + 28
    a.e(f"s_or_b32 s{sT4}, s2, s{sHW}")
    a.e(f"s_cmp_lg_u32 s{sT4}, 0")
    a.e("s_cbranch_scc1 L_h_nonce")
    srd(a, rA, pWS, 131072, add=hex(DONE_OFF))
    a.e("v_and_b32 v5, 31, v0")
    a.e("v_lshlrev_b32 v5, 7, v5")
    a.e("v_lshrrev_b32 v6, 5, v0")
    a.e("v_lshl_add_u32 v5, v6, 14, v5")
    a.e(f"s_mov_b32 s{sT2}, 0")
    a.lab("L_h_np")
    for i in range(4):
        a.e(f"s_mov_b32 s{sT3}, {32768*i}")
        a.e(f"buffer_load_dword v{16+i}, v5, {sq(rA)}, s{sT3} offen sc1")
    a.e("s_waitcnt vmcnt(0)")
    for i in range(4): a.e(f"v_xor_b32 v{16+i}, s{sTAG}, v{16+i}")
    a.e("v_or3_b32 v16, v16, v17, v18")
    a.e("v_or_b32 v16, v16, v19")
    a.e("v_cmp_ne_u32 vcc, 0, v16")
    a.e("s_cbranch_vccz L_h_npok")
    a.e(f"s_add_u32 s{sT2}, s{sT2}, 1")
    a.e(f"s_cmp_lt_u32 s{sT2}, 0x200000")
    a.e("s_cbranch_scc1 L_h_np")
    a.lab("L_h_npok")
    srd(a, rA, pWS, 128, add=hex(NONCE_OFF))
    a.e(f"v_mov_b32 v16, s{sTAG}")
    a.e("v_lshlrev_b32 v5, 2, v0")
    a.e(f"buffer_store_dword v16, v5, {sq(rA)}, 0 offen sc1")
    a.lab("L_h_nonce")
    a.e(f"s_lshr_b32 s{sT0}, s{sHW}, 1")
    a.e(f"s_mul_i32 s{sT0}, s{sT0}, s{sPIT}")
    a.e(f"s_and_b32 s{sT1}, s{sHW}, 1")
    a.e(f"s_mul_i32 s{sT1}, s{sT1}, 5120")
    a.e(f"s_add_u32 s{sT0}, s{sT0}, s{sT1}")
    a.e(f"v_add_u32 v5, s{sT0}, v1")
    a.e(f"s_mul_i32 s{sT0}, s{sHW}, s{sPIT}")
    a.e(f"s_cmp_lt_u32 s{sGI}, 10")
    a.e(f"s_cselect_b32 s{sT1}, {147456-40960-5120}, 0")
    a.e(f"s_add_u32 s{sT1}, s{sT1}, 5120")
    a.e(f"s_cmp_eq_u32 s{sHW}, 3")
    a.e(f"s_cselect_b32 s{sT0}, s{sT1}, s{sT0}")
    a.e(f"s_add_u32 s{sT0}, s{sT0}, 40960")
    a.e(f"v_add_u32 v6, s{sT0}, v1")
    a.e(f"s_mov_b32 s{sT2}, 0xffff0000")
    a.e(f"s_mov_b32 s{sT0}, {hex(f2u(-1.4426950408889634))}")
    a.e("s_waitcnt vmcnt(0) lgkmcnt(0)")
    for i in range(10):
        a.e(f"v_lshlrev_b32 v{XF+2*i}, 16, v{XR+i}")
        a.e(f"v_and_b32 v{XF+2*i+1}, s{sT2}, v{XR+i}")
        t = SK + 2 * i
        for h in range(2): a.e(f"v_sub_f32 v{t+h}, v{XF+2*i+h}, v8")
        a.e(f"v_cvt_pk_bf16_f32 v{t+1}, v{t}, v{t+1}")
        a.e(f"v_lshlrev_b32 v{t}, 16, v{t+1}")
        a.e(f"v_and_b32 v{t+1}, s{sT2}, v{t+1}")
        for h in range(2): a.e(f"v_mul_f32 v{t+h}, v{t+h}, v9")
        a.e(f"v_cvt_pk_bf16_f32 v{t+1}, v{t}, v{t+1}")
        a.e(f"v_lshlrev_b32 v{t}, 16, v{t+1}")
        a.e(f"v_and_b32 v{t+1}, s{sT2}, v{t+1}")
        a.e(f"v_lshlrev_b32 v{RC+4}, 16, v{DR+i}")
        a.e(f"v_and_b32 v{RC+5}, s{sT2}, v{DR+i}")
        for h in range(2): a.e(f"v_mul_f32 v{t+h}, v{t+h}, v{RC+4+h}")
        a.e(f"v_cvt_pk_bf16_f32 v{t+1}, v{t}, v{t+1}")
        a.e(f"v_lshlrev_b32 v{t}, 16, v{t+1}")
        a.e(f"v_and_b32 v{t+1}, s{sT2}, v{t+1}")
    stamp(a, 10)
    a.bar()
    RB = 96
    a.lg = []
    for nt in range(5):
        b = RB + 20 * nt
        for w in (1, 2, 3, 0):
            a.lds(f"ds_read_b128 {vr(b+4*w,4)}, v5 offset:{10240*w+1024*nt}", ("r", nt))
        a.lds(f"ds_read_b128 {vr(b+16,4)}, v6 offset:{1024*nt}", ("r", nt))
    for nt in range(5):
        a.wait(lg=[("r", nt)])
        b = RB + 20 * nt
        y, o, t = b, b + 4, b + 8
        for h in range(2):
            a.e(f"v_pk_add_f32 {vr(o+2*h,2)}, {vr(o+2*h,2)}, {vr(b+8+2*h,2)}")
            a.e(f"v_pk_add_f32 {vr(y+2*h,2)}, {vr(y+2*h,2)}, {vr(b+16+2*h,2)}")
        for h in range(2):
            a.e(f"v_pk_add_f32 {vr(o+2*h,2)}, {vr(o+2*h,2)}, {vr(b+12+2*h,2)}")
            a.e(f"v_pk_add_f32 {vr(y+2*h,2)}, {vr(y+2*h,2)}, {vr(SK+4*nt+2*h,2)}")
        for h in range(2):
            a.e(f"v_pk_mul_f32 {vr(t+2*h,2)}, {vr(o+2*h,2)}, s[{sT0}:{sT1}] op_sel_hi:[1,0]")
        for r in range(4): a.e(f"v_exp_f32 v{t+r}, v{t+r}")
        for h in range(2):
            a.e(f"v_pk_mul_f32 {vr(y+2*h,2)}, {vr(y+2*h,2)}, {vr(o+2*h,2)}")
        for h in range(2):
            a.e(f"v_pk_add_f32 {vr(t+2*h,2)}, {vr(t+2*h,2)}, 1.0 op_sel_hi:[1,0]")
        for r in range(4): a.e(f"v_rcp_f32 v{t+r}, v{t+r}")
        a.e("s_nop 0")
        for h in range(2):
            a.e(f"v_pk_fma_f32 {vr(y+2*h,2)}, {vr(y+2*h,2)}, {vr(t+2*h,2)}, {vr(XF+4*nt+2*h,2)}")
        fl = {0: " sc1", 1: "", 2: " nt", 3: " sc1 nt"}[OPT.get("ofl", 0)]
        if OPT.get("fake"):
            a.e(f"v_add_u32 v4, {64*nt}, v0")
            a.e("v_mul_u32_u24 v5, 3277, v4")
            a.e("v_lshrrev_b32 v5, 16, v5")
            a.e("v_mul_u32_u24 v5, 2240, v5")
            a.e("v_lshl_add_u32 v5, v4, 4, v5")
            a.e(f"buffer_store_dwordx4 {vr(y,4)}, v5, {sq(rD)}, s77 offen{fl}")
        else:
            a.e(f"buffer_store_dwordx4 {vr(y,4)}, v14, {sq(rD)}, s77 offen offset:{64*nt}{fl}")
    if OPT.get("drain"): a.e("s_waitcnt vmcnt(0)")
    stamp(a, 11)
    stamp_flush(a)
    a.lab("L_done")
    a.e("s_endpgm")
    a.lab("L_end")

KD = f""".section .rodata,"a"
.p2align 6
.amdhsa_kernel {NAME}
  .amdhsa_next_free_vgpr 256
  .amdhsa_next_free_sgpr 100
  .amdhsa_accum_offset 256
  .amdhsa_group_segment_fixed_size 0
  .amdhsa_kernarg_size 128
  .amdhsa_user_sgpr_count 2
  .amdhsa_user_sgpr_kernarg_segment_ptr 1
  .amdhsa_system_sgpr_workgroup_id_x 1
  .amdhsa_float_denorm_mode_32 3
.end_amdhsa_kernel
"""
HEADER = open("recurrent_scan__ssm_conv_s5__glu_gated_swiglu__prompt.s.ref").read().split("; Override")[0]

def build(path):
    a = Asm()
    prologue(a)
    a.e(f"s_cmp_ge_u32 s{sGI}, 10")
    a.e("s_cbranch_scc1 L_c_nossm")
    regs = compute_ssm(a)
    a.lab("L_c_nossm")
    roles(a)
    a.e(f"s_cmp_lt_u32 s{sGI}, 10")
    a.e("s_cbranch_scc1 L_c_ssm")
    b0 = a.nbar; compute_ffn(a); nf = a.nbar - b0
    b0 = a.nbar; compute_p2(a); n2 = a.nbar - b0
    a.lab("L_c_ssm"); a.reset()
    b0 = a.nbar; compute_ssm2(a, regs); ns = a.nbar - b0
    a.e("s_branch L_p2")
    slow_paths(a)
    a.lab("L_helper"); a.reset()
    if OPT.get("hprio"): a.e(f"s_setprio {OPT['hprio']}")
    a.e(f"s_cmp_lt_u32 s{sGI}, 10")
    a.e("s_cbranch_scc1 L_h_ssm")
    b0 = a.nbar; helper(a, FFN); hf = a.nbar - b0
    a.lab("L_h_ssm"); a.reset()
    b0 = a.nbar; helper(a, SSM); hs = a.nbar - b0
    b0 = a.nbar; helper_p2(a); h2 = a.nbar - b0
    assert nf + n2 == hf + h2 and ns + n2 == hs + h2, (nf, ns, n2, hf, hs, h2)
    s = HEADER + f"; @launch grid=(256,1,1) block=(512,1,1) lds={LDS_BYTES}\n"
    s += '.amdgcn_target "amdgcn-amd-amdhsa--gfx950"\n.text\n' + a.text() + KD
    open(path, "w").write(s)
    print("pk nops inserted:", a.npk)

if __name__ == "__main__":
    out = sys.argv[1] if len(sys.argv) > 1 and not sys.argv[1].startswith("--") else "recurrent_scan__ssm_conv_s5__glu_gated_swiglu__prompt.s"
    if "--stamps" in sys.argv: STAMPS = True
    for x in sys.argv[1:]:
        if x.startswith("--opt="):
            for kv in x[6:].split(","):
                k, _, v = kv.partition("=")
                OPT[k] = int(v) if v else 1
    build(out)
```
